```python
import torch

def _softmax(x, axis=-1):
    return torch.softmax(x, dim=axis)
def _gelu(x):
    return torch.nn.functional.gelu(x, approximate="tanh")
def _silu(x):
    return torch.nn.functional.silu(x)
def _sigmoid(x):
    return torch.sigmoid(x)
def _layernorm(x, axis=-1, eps=1e-5):
    m = x.mean(dim=axis, keepdim=True)
    v = x.var(dim=axis, keepdim=True, unbiased=False)
    return (x - m) / torch.sqrt(v + eps)
def _scatter_add(tgt, idx, src, axis=0):
    return tgt.clone().index_add_(axis, idx, src)
def _segment_sum(src, seg, n):
    out = torch.zeros((n,) + src.shape[1:], dtype=src.dtype)
    return out.index_add_(0, seg, src)
def _pad(x, pw):
    flat = tuple(v for pair in reversed(pw) for v in pair)
    return torch.nn.functional.pad(x, flat)

kernel_name = 'standalone__gqa_block_cached__near_ridge'

def setup_inputs():

    _w = (lambda a: (lambda t: t.to(torch.bfloat16) if t.is_floating_point() else t)(torch.as_tensor(a)))
    B, Sq, D = 8, 32, 512
    Hq, Hkv, Sk, Dh = 32, 8, 2048, 128
    assert Hq % Hkv == 0, (Hq, Hkv)
    return {
        "x": _w((lambda *s: torch.randn(*s, dtype=torch.bfloat16) * 0.8)(B, Sq, D)),
        "k_cache": _w((lambda *s: torch.randn(*s, dtype=torch.bfloat16) * 0.8)(B, Hkv, Sk, Dh)),
        "v_cache": _w((lambda *s: torch.randn(*s, dtype=torch.bfloat16) * 0.05)(B, Hkv, Sk, Dh)),
        "wq": _w((lambda *s: torch.randn(*s, dtype=torch.bfloat16) * 0.8)(D, Hq * Dh) * (D ** -0.5)),
        "wo": _w((lambda *s: torch.randn(*s, dtype=torch.bfloat16) * 0.05)(Hq * Dh, D) * ((Hq * Dh) ** -0.5)),
    }

def reference(x, k_cache, v_cache, wq, wo):
    B, Sq, D = x.shape
    Hq, Dh = 32, 128
    Hkv = k_cache.shape[1]
    rep = Hq // Hkv
    q = (lambda x, *d: x.permute(*d))((x @ wq).reshape(B, Sq, Hq, Dh), 0, 2, 1, 3)
    k = (lambda x, n, axis: torch.repeat_interleave(x, n, dim=axis))(k_cache, rep, axis=1)
    v = (lambda x, n, axis: torch.repeat_interleave(x, n, dim=axis))(v_cache, rep, axis=1)
    scores = torch.einsum("bhqd,bhkd->bhqk", q, k) * (Dh ** -0.5)
    p = _softmax(scores, axis=-1)
    o = torch.einsum("bhqk,bhkd->bhqd", p, v)
    return (lambda x, *d: x.permute(*d))(o, 0, 2, 1, 3).reshape(B, Sq, Hq * Dh) @ wo
```

```python
import re

TRANS = ("v_exp_f32", "v_log_f32", "v_rcp_f32", "v_rsq_f32", "v_sqrt_f32", "v_sin_f32", "v_cos_f32", "v_rcp_iflag_f32")

def _regs(tok):
    tok = tok.strip()
    neg = tok.lstrip("-")
    if neg.startswith("abs(") and neg.endswith(")"):
        neg = neg[4:-1]
    if neg.startswith("|") and neg.endswith("|"):
        neg = neg[1:-1]
    tok = neg
    m = re.fullmatch(r"([vas])(\d+)", tok)
    if m:
        return {(m.group(1), int(m.group(2)))}
    m = re.fullmatch(r"([vas])\[(\d+):(\d+)\]", tok)
    if m:
        return {(m.group(1), i) for i in range(int(m.group(2)), int(m.group(3)) + 1)}
    if tok == "vcc":
        return {("s", "vcc")}
    if tok == "exec":
        return {("s", "exec")}
    if tok == "m0":
        return {("s", "m0")}
    return set()

class Ins:
    __slots__ = ("text", "op", "kind", "dst", "src", "srcC", "passes", "states", "islabel", "store_data", "sdst")
    def __init__(self, text):
        self.text = text
        t = text.split(";")[0].strip()
        self.islabel = t.endswith(":")
        self.op = t.split()[0] if t else ""
        self.dst = set(); self.src = set(); self.srcC = set(); self.passes = 0
        self.states = 1; self.store_data = set(); self.sdst = set()
        self.kind = "other"
        if self.islabel or not t or t.startswith("."):
            self.kind = "label"; self.states = 0
            return
        rest = t[len(self.op):].strip()
        ops = [o.strip() for o in re.split(r",(?![^\[]*\])", rest)] if rest else []
        clean = []
        for o in ops:
            clean.append(o.split()[0] if o else o)
        op = self.op
        if op == "s_nop":
            self.kind = "salu"; self.states = int(clean[0], 0) + 1
        elif op.startswith("v_mfma"):
            self.kind = "mfma"
            self.dst = _regs(clean[0]); self.src = _regs(clean[1]) | _regs(clean[2]); self.srcC = _regs(clean[3])
            self.passes = 8 if "32x32" in op else 4
        elif op.startswith("v_readfirstlane") or op.startswith("v_readlane"):
            self.kind = "valu"; self.sdst = _regs(clean[0]); self.src = _regs(clean[1])
            self.op = "v_readlane"
        elif op.startswith("v_cmp"):
            self.kind = "valu"; self.sdst = _regs(clean[0])
            for c in clean[1:]: self.src |= _regs(c)
            if op.startswith("v_cmpx"): self.sdst |= {("s", "exec")}
        elif op.startswith("v_permlane32_swap") or op.startswith("v_permlane16_swap"):
            self.kind = "valu"; self.op = "v_permlane"
            self.dst = _regs(clean[0]) | _regs(clean[1]); self.src = set(self.dst)
        elif op.startswith("v_"):
            self.kind = "valu"
            self.dst = _regs(clean[0])
            k = 1
            if op.startswith(("v_add_co", "v_sub_co", "v_addc_co", "v_subb_co", "v_subrev_co", "v_div_scale")):
                self.sdst = _regs(clean[1]); k = 2
            for c in clean[k:]: self.src |= _regs(c)
            if op.startswith(("v_fmac", "v_mac", "v_dot2c", "v_pk_fmac")): self.src |= self.dst
            if op.startswith("v_cndmask") and len(clean) == 3: self.src |= {("s", "vcc")}
            if "dpp" in t or "row_" in t or "quad_perm" in t: self.op = op + "_dpp"
        elif op.startswith("ds_read") or op.startswith("ds_bpermute") or op.startswith("ds_swizzle") or op.startswith("ds_permute"):
            self.kind = "ds"; self.dst = _regs(clean[0])
            for c in clean[1:]: self.src |= _regs(c)
        elif op.startswith("ds_"):
            self.kind = "ds"
            for c in clean: self.src |= _regs(c)
        elif op.startswith("buffer_") or op.startswith("global_"):
            self.kind = "vmem"
            islds = re.search(r"\blds\b", t) is not None or "_lds_" in op
            if op in ("buffer_inv", "buffer_wbl2"):
                pass
            elif "load" in op and not islds:
                self.dst = _regs(clean[0])
                for c in clean[1:]: self.src |= _regs(c)
            elif "store" in op:
                for c in clean: self.src |= _regs(c)
                dtok = clean[0] if op.startswith("buffer_") else clean[1]
                if op.endswith("x4") or op.endswith("x3"): self.store_data = _regs(dtok)
            elif "atomic" in op:
                for c in clean: self.src |= _regs(c)
                if re.search(r"\bsc0\b", t): self.dst = _regs(clean[0])
            else:
                for c in clean: self.src |= _regs(c)
            if islds: self.src |= {("s", "m0")}; self.kind = "vmem_lds"
        elif op.startswith("s_"):
            self.kind = "salu"
            if op.startswith(("s_cmp", "s_cbranch", "s_branch", "s_waitcnt", "s_barrier", "s_endpgm", "s_sleep", "s_setprio", "s_bitcmp")):
                for c in clean: self.src |= _regs(c)
            elif clean:
                self.sdst = _regs(clean[0])
                for c in clean[1:]: self.src |= _regs(c)
                if "saveexec" in op: self.sdst |= {("s", "exec")}

def need(prod, cons):
    n = 0
    pv = prod.dst
    if prod.kind == "valu":
        if cons.kind == "mfma" and (pv & (cons.src | cons.srcC)): n = max(n, 2)
        if cons.op == "v_permlane" and (pv & cons.src): n = max(n, 2)
        if cons.op == "v_readlane" and (pv & cons.src): n = max(n, 1)
        if cons.op.endswith("_dpp") and (pv & cons.src): n = max(n, 2)
        if prod.op in TRANS and cons.kind in ("valu", "mfma") and (pv & (cons.src | cons.dst)) : n = max(n, 1)
        if prod.sdst:
            if cons.kind in ("vmem", "vmem_lds") and (prod.sdst & cons.src): n = max(n, 5)
            if cons.kind == "valu" and (prod.sdst & cons.src): n = max(n, 2)
            if cons.op == "v_readlane" and (prod.sdst & cons.src): n = max(n, 4)
            if ("s", "exec") in prod.sdst:
                if cons.kind == "mfma": n = max(n, 4)
                if cons.op in ("v_readlane", "v_permlane"): n = max(n, 4)
    if prod.kind == "mfma":
        big = 12 if prod.passes == 8 else 8
        if cons.kind == "mfma":
            if pv & cons.src: n = max(n, big)
            if pv & cons.srcC:
                if cons.srcC == pv and cons.passes == prod.passes: pass
                else: n = max(n, 10 if prod.passes == 8 else 6)
            if (pv & cons.dst) and not (cons.srcC == pv and cons.dst == pv):
                n = max(n, big)
        elif cons.kind in ("valu", "ds", "vmem", "vmem_lds"):
            if pv & (cons.src | cons.dst): n = max(n, big)
        if cons.kind == "valu" and (prod.srcC & cons.dst): n = max(n, 7 if prod.passes == 8 else 3)
    if prod.kind == "salu" and ("s", "m0") in prod.sdst and cons.kind == "vmem_lds": n = max(n, 1)
    if prod.kind == "salu" and ("s", "exec") in prod.sdst and cons.kind == "mfma": n = max(n, 4)
    if prod.store_data and cons.kind in ("valu", "mfma") and (prod.store_data & cons.dst): n = max(n, 2)
    if prod.store_data and cons.kind in ("ds", "vmem") and (prod.store_data & cons.dst): n = max(n, 1)
    return n

class Asm:
    def __init__(self):
        self.lines = []
        self.loops = []
    def __call__(self, s, *a):
        for ln in s.split("\n"):
            ln = ln.strip()
            if ln: self.lines.append(ln)
    def label(self, n): self.lines.append(n + ":")
    def comment(self, s): self.lines.append("; " + s)
    def pad(self):
        ins = [Ins(l) if not l.startswith(";") else None for l in self.lines]
        out_lines = []; window = []
        W = 24
        inserted = 0
        def required(cons, win):
            dist = 0; req = 0
            for p in reversed(win):
                if p.kind == "label": continue
                r = need(p, cons) - dist
                if r > req: req = r
                dist += p.states
                if dist > 20: break
            return req
        for l, i in zip(self.lines, ins):
            if i is None:
                out_lines.append(l); continue
            if i.kind != "label":
                r = required(i, window)
                while r > 0:
                    k = min(r, 16)
                    nop = "s_nop %d" % (k - 1)
                    out_lines.append(nop); window.append(Ins(nop)); r -= k; inserted += 1
            out_lines.append(l); window.append(i)
            if len(window) > 64: window = window[-48:]
        self.lines = out_lines
        pos = {}
        for idx, l in enumerate(self.lines):
            if l.endswith(":") and not l.startswith(";"): pos[l[:-1]] = idx
        problems = []
        for idx, l in enumerate(self.lines):
            if l.startswith(";"): continue
            t = l.split()
            if t and t[0].startswith(("s_cbranch", "s_branch")):
                tgt = t[1]
                if tgt in pos:
                    tail = [Ins(x) for x in self.lines[max(0, idx - 40):idx + 1] if not x.startswith(";")]
                    head = [Ins(x) for x in self.lines[pos[tgt]:pos[tgt] + 40] if not x.startswith(";")]
                    win = list(tail)
                    dist0 = 0
                    for h in head:
                        if h.kind == "label": continue
                        if h.op.startswith(("s_branch", "s_endpgm")): break
                        d = dist0
                        for p in reversed(tail):
                            if p.kind == "label": continue
                            if need(p, h) > d:
                                problems.append("hazard across branch '%s': %s -> %s (dist %d need %d)" % (l, p.text, h.text, d, need(p, h)))
                            d += p.states
                            if d > 20: break
                        dist0 += h.states
                        if dist0 > 20: break
        return inserted, problems
    def text(self):
        out = []
        for l in self.lines:
            if l.endswith(":") and not l.startswith(";"): out.append(l)
            else: out.append("  " + l)
        return "\n".join(out) + "\n"

def descriptor(name, vgprs, accum, sgprs=96):
    return """.p2align 6
.amdhsa_kernel %s
  .amdhsa_next_free_vgpr %d
  .amdhsa_next_free_sgpr %d
  .amdhsa_accum_offset %d
  .amdhsa_group_segment_fixed_size 0
  .amdhsa_kernarg_size 64
  .amdhsa_user_sgpr_count 2
  .amdhsa_user_sgpr_kernarg_segment_ptr 1
  .amdhsa_system_sgpr_workgroup_id_x 1
  .amdhsa_float_denorm_mode_32 3
  .amdhsa_float_denorm_mode_16_64 3
.end_amdhsa_kernel
""" % (name, vgprs, sgprs, accum)

HEADER_COMMENT = """; Kernarg layout for this problem (64 bytes, ptrs only, base s[0:1]):
;   offset  16: d_in[2] v_cache  shape=(8, 8, 2048, 128) dtype=bfloat16
"""

def build_file(kernels, path):
    s = HEADER_COMMENT
    if len(kernels) == 1:
        n, a, g, b, lds, v, acc, sg = kernels[0]
        s += "; @launch grid=(%d,1,1) block=(%d,1,1) lds=%d\n" % (g, b, lds)
    else:
        for n, a, g, b, lds, v, acc, sg in kernels:
            s += "; @launch kernel=%s grid=(%d,1,1) block=(%d,1,1) lds=%d\n" % (n, g, b, lds)
    s += '.amdgcn_target "amdgcn-amd-amdhsa--gfx950"\n.text\n'
    seen = set()
    for n, a, g, b, lds, v, acc, sg in kernels:
        if n in seen: continue
        seen.add(n)
        k, probs = a.pad()
        for p in probs: print("WARNING[%s]: %s" % (n, p))
        s += ".globl %s\n.p2align 8\n.type %s,@function\n%s:\n" % (n, n, n)
        s += a.text()
    s += '.section .rodata,"a"\n'
    seen = set()
    for n, a, g, b, lds, v, acc, sg in kernels:
        if n in seen: continue
        seen.add(n)
        s += descriptor(n, v, acc, sg)
    open(path, "w").write(s)
```

```python
import sys
from asmlib import *

MAIN = "standalone__gqa_block_cached__near_ridge_kernel"
WS_Q = 0x0
WS_OP = 0x400000
WS_ML = 0x1000000
WS_PO = 0x2000000
CSCALE = 0x3e0293ee
import struct, math
def f32bits(x): return struct.unpack("<I", struct.pack("<f", x))[0]
CSCALE = f32bits((128 ** -0.5) * math.log2(math.e))

def srd(a, dst, lo, hi, nbytes):
    a("s_mov_b32 s%d, s%d" % (dst, lo)); a("s_mov_b32 s%d, s%d" % (dst + 1, hi))
    a("s_mov_b32 s%d, 0x%x" % (dst + 2, nbytes)); a("s_mov_b32 s%d, 0x20000" % (dst + 3))

def k1_qproj():
    a = Asm()
    a("s_cmp_ge_u32 s2, 256"); a("s_cbranch_scc1 K1_end")
    a("s_load_dwordx2 s[4:5], s[0:1], 0")
    a("s_load_dwordx2 s[6:7], s[0:1], 24")
    a("s_load_dwordx2 s[8:9], s[0:1], 56")
    a("v_lshrrev_b32 v1, 6, v0")
    a("v_and_b32 v0, 63, v0")
    a("v_readfirstlane_b32 s20, v1")
    a("s_and_b32 s21, s2, 7"); a("s_lshr_b32 s22, s2, 3"); a("s_and_b32 s22, s22, 3"); a("s_lshl_b32 s22, s22, 3")
    a("s_add_u32 s21, s21, s22")
    a("s_lshr_b32 s23, s2, 5")
    a("v_lshrrev_b32 v2, 4, v0")
    a("v_lshlrev_b32 v3, 2, v2")
    a("v_and_b32 v4, 15, v0")
    a("v_xor_b32 v3, v3, v4")
    a("v_lshlrev_b32 v3, 4, v3")
    a("v_lshlrev_b32 v2, 13, v2")
    a("v_add_u32 v2, v2, v3")
    a("v_and_b32 v3, 31, v0"); a("v_lshlrev_b32 v3, 10, v3")
    a("v_lshrrev_b32 v4, 5, v0"); a("v_lshlrev_b32 v4, 4, v4")
    a("v_add_u32 v3, v3, v4")
    a("s_waitcnt lgkmcnt(0)")
    srd(a, 12, 4, 5, 8 * 32 * 512 * 2)
    srd(a, 16, 6, 7, 512 * 4096 * 2)
    srd(a, 24, 8, 9, 0x10000000)
    a("s_lshl_b32 s30, s20, 15"); a("s_lshl_b32 s31, s21, 8"); a("s_add_u32 s30, s30, s31")
    a("s_lshl_b32 s32, s20, 10")
    for t in range(32):
        a("s_mov_b32 m0, s32")
        a("s_add_u32 s32, s32, 4096")
        a("buffer_load_dwordx4 v2, s[16:19], s30 offen lds")
        a("s_add_u32 s30, s30, %d" % (4 * 32768))
    a("s_lshl_b32 s33, s23, 15")
    for c in range(32):
        a("buffer_load_dwordx4 v[%d:%d], v3, s[12:15], s33 offen offset:%d" % (32 + 4 * c, 35 + 4 * c, c * 32))
    a("v_and_b32 v4, 15, v0"); a("v_lshrrev_b32 v4, 2, v4")
    a("v_lshrrev_b32 v5, 5, v0")
    a("v_lshlrev_b32 v6, 3, v5"); a("v_add_u32 v6, v6, v4"); a("v_lshlrev_b32 v6, 8, v6")
    a("v_xor_b32 v7, s20, v4"); a("v_lshlrev_b32 v7, 6, v7")
    a("v_add_u32 v6, v6, v7")
    a("v_lshrrev_b32 v7, 4, v0"); a("v_and_b32 v7, 1, v7"); a("v_lshlrev_b32 v7, 5, v7")
    a("v_add_u32 v6, v6, v7")
    a("v_and_b32 v7, 3, v0"); a("v_lshlrev_b32 v7, 3, v7")
    a("v_add_u32 v6, v6, v7")
    a("v_add_u32 v7, 0x10000, v6")
    a("s_waitcnt vmcnt(0)")
    a("s_barrier")
    for c in range(32):
        base = 6 if c < 16 else 7
        off = (c % 16) * 4096
        fr = 24 + 4 * (c & 1)
        a("ds_read_b64_tr_b16 v[%d:%d], v%d offset:%d" % (fr, fr + 1, base, off))
        a("ds_read_b64_tr_b16 v[%d:%d], v%d offset:%d" % (fr + 2, fr + 3, base, off + 1024))
        a("s_waitcnt lgkmcnt(0)")
        a("v_mfma_f32_32x32x16_bf16 v[8:23], v[%d:%d], v[%d:%d], %s" % (fr, fr + 3, 32 + 4 * c, 35 + 4 * c, "0" if c == 0 else "v[8:23]"))
    for i in range(8):
        a("v_cvt_pk_bf16_f32 v%d, v%d, v%d" % (24 + i, 8 + 2 * i, 9 + 2 * i))
    for u in range(2):
        a("v_permlane32_swap_b32 v%d, v%d" % (24 + 4 * u, 26 + 4 * u))
        a("v_permlane32_swap_b32 v%d, v%d" % (25 + 4 * u, 27 + 4 * u))
    a("s_lshl_b32 s34, s23, 5"); a("s_add_u32 s34, s34, s21"); a("s_lshl_b32 s34, s34, 13")
    a("s_lshl_b32 s35, s20, 11"); a("s_add_u32 s34, s34, s35")
    if WS_Q: a("s_add_u32 s34, s34, 0x%x" % WS_Q)
    a("v_lshlrev_b32 v2, 4, v0")
    a("buffer_store_dwordx4 v[24:27], v2, s[24:27], s34 offen")
    a("buffer_store_dwordx4 v[28:31], v2, s[24:27], s34 offen offset:1024")
    a.label("K1_end")
    a("s_endpgm")
    return a

def k2_attn(pol="nt", NS=8):
    a = Asm()
    a("s_cmp_ge_u32 s2, 256"); a("s_cbranch_scc1 K2_end")
    a("s_load_dwordx4 s[4:7], s[0:1], 8")
    a("s_load_dwordx2 s[8:9], s[0:1], 56")
    a("v_lshrrev_b32 v1, 6, v0")
    a("v_and_b32 v0, 63, v0")
    a("v_readfirstlane_b32 s20, v1")
    a("s_and_b32 s21, s2, 7")
    a("s_lshr_b32 s22, s2, 3"); a("s_and_b32 s23, s22, 3")
    a("s_lshr_b32 s22, s22, 2")
    a("s_lshl_b32 s28, s22, 3"); a("s_add_u32 s28, s28, s21")
    a("s_lshl_b32 s29, s28, 19"); a("s_lshl_b32 s30, s23, 17"); a("s_add_u32 s29, s29, s30")
    a("v_lshrrev_b32 v2, 4, v0")
    a("v_and_b32 v3, 15, v0")
    a("s_lshl_b32 s31, s20, 2")
    a("v_add_u32 v4, s31, v2")
    a("v_xor_b32 v4, v4, v3"); a("v_lshlrev_b32 v4, 4, v4")
    a("v_lshlrev_b32 v5, 8, v2")
    a("v_add_u32 v4, v4, v5")
    a("v_lshlrev_b32 v6, 2, v2"); a("v_xor_b32 v6, v6, v3"); a("v_lshlrev_b32 v6, 4, v6")
    a("v_add_u32 v5, v5, v6")
    a("s_waitcnt lgkmcnt(0)")
    srd(a, 12, 4, 5, 0x2000000)
    srd(a, 16, 6, 7, 0x2000000)
    srd(a, 24, 8, 9, 0x10000000)
    a("s_lshl_b32 s33, s28, 2"); a("s_add_u32 s33, s33, s20"); a("s_lshl_b32 s33, s33, 13")
    if WS_Q: a("s_add_u32 s33, s33, 0x%x" % WS_Q)
    a("v_lshlrev_b32 v7, 4, v0")
    for j in range(8):
        if j == 4: a("s_add_u32 s33, s33, 4096")
        a("buffer_load_dwordx4 v[%d:%d], v7, s[24:27], s33 offen offset:%d" % (32 + 4 * j, 35 + 4 * j, (j % 4) * 1024))
    a("s_lshl_b32 s36, s20, 10")
    a("s_add_u32 s34, s29, s36")
    a("s_mov_b32 s35, s36")
    a("s_mov_b32 s37, 0")
    def issue_tile():
        a("s_cmp_ge_u32 s37, 16")
        a("s_cselect_b32 s38, 0x4000000, s34")
        a("s_mov_b32 m0, s35")
        a("s_add_u32 s39, s38, 4096")
        a("buffer_load_dwordx4 v4, s[12:15], s38 offen %s lds" % pol)
        a("s_add_u32 s40, s35, 4096")
        a("s_mov_b32 m0, s40")
        a("s_add_u32 s40, s35, 8192")
        a("buffer_load_dwordx4 v4, s[12:15], s39 offen %s lds" % pol)
        a("s_mov_b32 m0, s40")
        a("s_add_u32 s40, s35, 12288")
        a("buffer_load_dwordx4 v5, s[16:19], s38 offen %s lds" % pol)
        a("s_mov_b32 m0, s40")
        a("s_add_u32 s34, s34, 8192")
        a("buffer_load_dwordx4 v5, s[16:19], s39 offen %s lds" % pol)
        a("s_add_u32 s35, s35, 16384")
        a("s_and_b32 s35, s35, 0x%x" % (NS * 16384 - 1))
        a("s_add_u32 s37, s37, 1")
    for t in range(NS - 1):
        issue_tile()
    a("v_and_b32 v1, 31, v0")
    a("v_lshrrev_b32 v2, 5, v0")
    a("v_xor_b32 v3, v1, v2"); a("v_and_b32 v3, 15, v3"); a("v_lshlrev_b32 v3, 4, v3")
    a("v_lshlrev_b32 v6, 8, v1")
    for j in range(8):
        a("v_xor_b32 v%d, %d, v3" % (8 + j, j * 32))
        a("v_add_u32 v%d, v%d, v6" % (8 + j, 8 + j))
    a("v_and_b32 v3, 15, v0"); a("v_lshrrev_b32 v3, 2, v3")
    a("v_lshlrev_b32 v6, 2, v2"); a("v_add_u32 v6, v6, v3"); a("v_lshlrev_b32 v6, 8, v6")
    a("v_lshrrev_b32 v7, 4, v0"); a("v_and_b32 v7, 1, v7"); a("v_lshlrev_b32 v7, 5, v7")
    a("v_add_u32 v6, v6, v7")
    a("v_and_b32 v7, 3, v0"); a("v_lshlrev_b32 v7, 3, v7"); a("v_add_u32 v6, v6, v7")
    a("v_add_u32 v6, 8192, v6")
    for db in range(4):
        a("v_xor_b32 v7, %d, v3" % db); a("v_lshlrev_b32 v7, 6, v7")
        a("v_add_u32 v%d, v6, v7" % (16 + db))
    for i in range(64): a("v_mov_b32 v%d, 0" % (64 + i))
    a("v_mov_b32 v20, 0xff800000")
    a("v_mov_b32 v21, 0")
    a("s_mov_b32 s41, 0x%x" % CSCALE)
    a("s_mov_b32 s42, 0")
    a("s_mov_b32 s43, 0")
    a("s_mov_b32 s44, 0x41000000")
    a.label("K2_loop")
    a("s_waitcnt vmcnt(%d)" % (4 * (NS - 2)))
    a("s_barrier")
    issue_tile()
    for j in range(8): a("v_add_u32 v%d, s43, v%d" % (216 + j, 8 + j))
    for db in range(4): a("v_add_u32 v%d, s43, v%d" % (224 + db, 16 + db))
    for j in range(8): a("ds_read_b128 v[%d:%d], v%d" % (144 + 4 * j, 147 + 4 * j, 216 + j))
    for u in range(2):
        for db in range(4):
            r = 176 + (u * 4 + db) * 4
            a("ds_read_b64_tr_b16 v[%d:%d], v%d offset:%d" % (r, r + 1, 224 + db, u * 4096))
            a("ds_read_b64_tr_b16 v[%d:%d], v%d offset:%d" % (r + 2, r + 3, 224 + db, u * 4096 + 2048))
    for j in range(8):
        a("s_waitcnt lgkmcnt(%d)" % min(15, 16 + 7 - j))
        a("v_mfma_f32_32x32x16_bf16 v[128:143], v[%d:%d], v[%d:%d], %s" % (144 + 4 * j, 147 + 4 * j, 32 + 4 * j, 35 + 4 * j, "0" if j == 0 else "v[128:143]"))
    a("v_max3_f32 v22, v128, v129, v130")
    for i in range(3, 15, 2): a("v_max3_f32 v22, v22, v%d, v%d" % (128 + i, 129 + i))
    a("v_max_f32 v22, v22, v143")
    a("v_mov_b32 v23, v22")
    a("v_permlane32_swap_b32 v22, v23")
    a("v_max_f32 v22, v22, v23")
    a("v_mul_f32 v22, s41, v22")
    a("v_sub_f32 v23, v22, v20")
    a("v_cmp_lt_f32 vcc, s44, v23")
    a("s_cbranch_vccz K2_norescale")
    a("v_max_f32 v22, v22, v20")
    a("v_sub_f32 v23, v20, v22")
    a("v_exp_f32 v23, v23")
    a("v_mov_b32 v20, v22")
    a("v_mul_f32 v21, v21, v23")
    for i in range(64): a("v_mul_f32 v%d, v%d, v23" % (64 + i, 64 + i))
    a.label("K2_norescale")
    for i in range(16):
        a("v_fma_f32 v%d, v%d, s41, -v20" % (128 + i, 128 + i))
    for i in range(16):
        a("v_exp_f32 v%d, v%d" % (128 + i, 128 + i))
    for i in range(16):
        a("v_add_f32 v21, v21, v%d" % (128 + i))
    for i in range(8):
        a("v_cvt_pk_bf16_f32 v%d, v%d, v%d" % (208 + i, 128 + 2 * i, 129 + 2 * i))
    a("s_waitcnt lgkmcnt(0)")
    for u in range(2):
        for db in range(4):
            r = 176 + (u * 4 + db) * 4
            a("v_mfma_f32_32x32x16_bf16 v[%d:%d], v[%d:%d], v[%d:%d], v[%d:%d]" % (64 + 16 * db, 79 + 16 * db, r, r + 3, 208 + 4 * u, 211 + 4 * u, 64 + 16 * db, 79 + 16 * db))
    a("s_add_u32 s43, s43, 16384"); a("s_and_b32 s43, s43, 0x%x" % (NS * 16384 - 1))
    a("s_add_u32 s42, s42, 1"); a("s_cmp_lt_u32 s42, 16")
    a("s_cbranch_scc1 K2_loop")
    a("v_mov_b32 v22, v21")
    a("s_nop 1")
    a("v_permlane32_swap_b32 v21, v22")
    a("v_add_f32 v21, v21, v22")
    a("v_rcp_f32 v22, v21")
    a("s_nop 7")
    for i in range(64): a("v_mul_f32 v%d, v%d, v22" % (64 + i, 64 + i))
    for i in range(32): a("v_cvt_pk_bf16_f32 v%d, v%d, v%d" % (128 + i, 64 + 2 * i, 65 + 2 * i))
    a("s_lshl_b32 s45, s28, 2"); a("s_add_u32 s45, s45, s23"); a("s_lshl_b32 s45, s45, 2"); a("s_add_u32 s45, s45, s20")
    a("s_lshl_b32 s46, s45, 13"); a("s_add_u32 s46, s46, 0x%x" % WS_OP)
    a("v_lshlrev_b32 v7, 4, v0")
    for i in range(8):
        if i == 4: a("s_add_u32 s46, s46, 4096")
        a("buffer_store_dwordx4 v[%d:%d], v7, s[24:27], s46 offen offset:%d" % (128 + 4 * i, 131 + 4 * i, (i % 4) * 1024))
    a("s_lshl_b32 s47, s45, 8"); a("s_add_u32 s47, s47, 0x%x" % WS_ML)
    a("v_lshlrev_b32 v7, 3, v0")
    a("v_cmp_gt_u32 vcc, 32, v0")
    a("s_and_saveexec_b64 s[50:51], vcc")
    a("buffer_store_dwordx2 v[20:21], v7, s[24:27], s47 offen")
    a("s_waitcnt vmcnt(0)")
    a.label("K2_end")
    a("s_endpgm")
    return a

def k3_comb():
    a = Asm()
    a("s_cmp_ge_u32 s2, 256"); a("s_cbranch_scc1 K3_end")
    a("s_load_dwordx2 s[6:7], s[0:1], 32")
    a("s_load_dwordx2 s[8:9], s[0:1], 56")
    a("v_lshrrev_b32 v1, 6, v0")
    a("v_and_b32 v0, 63, v0")
    a("v_readfirstlane_b32 s20, v1")
    a("s_and_b32 s21, s2, 7"); a("s_lshl_b32 s21, s21, 2"); a("s_lshr_b32 s22, s2, 3"); a("s_and_b32 s22, s22, 3")
    a("s_add_u32 s21, s21, s22")
    a("s_lshr_b32 s23, s2, 5")
    a("v_lshlrev_b32 v2, 4, v0")
    a("s_waitcnt lgkmcnt(0)")
    srd(a, 16, 6, 7, 4096 * 512 * 2)
    srd(a, 24, 8, 9, 0x10000000)
    a("s_lshl_b32 s30, s21, 7"); a("s_add_u32 s30, s30, s20"); a("s_lshl_b32 s30, s30, 10")
    a("s_mul_i32 s32, s20, 1088")
    for t in range(32):
        a("s_mov_b32 m0, s32")
        a("s_add_u32 s32, s32, %d" % (4 * 1088))
        a("buffer_load_dwordx4 v2, s[16:19], s30 offen lds")
        a("s_add_u32 s30, s30, 4096")
    a("s_lshr_b32 s33, s21, 2"); a("s_and_b32 s34, s21, 3")
    a("s_lshl_b32 s35, s23, 3"); a("s_add_u32 s35, s35, s33")
    a("s_lshl_b32 s35, s35, 4"); a("s_add_u32 s35, s35, s34")
    a("v_and_b32 v3, 31, v0"); a("v_lshlrev_b32 v3, 3, v3")
    for s in range(4):
        a("s_add_u32 s36, s35, %d" % (4 * s))
        a("s_lshl_b32 s37, s36, 8"); a("s_add_u32 s37, s37, 0x%x" % WS_ML)
        a("buffer_load_dwordx2 v[%d:%d], v3, s[24:27], s37 offen" % (8 + 2 * s, 9 + 2 * s))
        a("s_lshl_b32 s37, s36, 13"); a("s_add_u32 s37, s37, 0x%x" % WS_OP)
        for i in range(8):
            if i == 4: a("s_add_u32 s37, s37, 4096")
            r = 64 + 32 * s + 4 * i
            a("buffer_load_dwordx4 v[%d:%d], v2, s[24:27], s37 offen offset:%d" % (r, r + 3, (i % 4) * 1024))
    a("s_waitcnt vmcnt(0)")
    a("v_max3_f32 v16, v8, v10, v12"); a("v_max_f32 v16, v16, v14")
    for s in range(4):
        a("v_sub_f32 v%d, v%d, v16" % (8 + 2 * s, 8 + 2 * s))
    for s in range(4):
        a("v_exp_f32 v%d, v%d" % (8 + 2 * s, 8 + 2 * s))
    a("s_nop 0")
    for s in range(4):
        a("v_mul_f32 v%d, v%d, v%d" % (8 + 2 * s, 8 + 2 * s, 9 + 2 * s))
    a("v_add_f32 v16, v8, v10"); a("v_add_f32 v17, v12, v14"); a("v_add_f32 v16, v16, v17")
    a("v_rcp_f32 v16, v16")
    a("s_nop 0")
    for s in range(4):
        a("v_mul_f32 v%d, v%d, v16" % (8 + 2 * s, 8 + 2 * s))
    a("s_mov_b32 s40, 0xffff0000")
    for i in range(32):
        for s in range(4):
            r = 64 + 32 * s + i
            a("v_lshlrev_b32 v18, 16, v%d" % r)
            a("v_and_b32 v19, s40, v%d" % r)
            if s == 0:
                a("v_mul_f32 v20, v18, v8"); a("v_mul_f32 v21, v19, v8")
            else:
                a("v_fmac_f32 v20, v18, v%d" % (8 + 2 * s)); a("v_fmac_f32 v21, v19, v%d" % (8 + 2 * s))
        a("v_cvt_pk_bf16_f32 v%d, v20, v21" % (32 + i))
    a("v_and_b32 v3, 15, v0"); a("v_lshrrev_b32 v3, 2, v3")
    a("v_lshrrev_b32 v4, 5, v0"); a("v_lshlrev_b32 v4, 2, v4"); a("v_add_u32 v3, v3, v4")
    a("v_mul_u32_u24 v3, 1088, v3")
    a("v_lshrrev_b32 v4, 4, v0"); a("v_and_b32 v4, 1, v4"); a("v_lshlrev_b32 v4, 5, v4"); a("v_add_u32 v3, v3, v4")
    a("v_and_b32 v4, 3, v0"); a("v_lshlrev_b32 v4, 3, v4"); a("v_add_u32 v3, v3, v4")
    a("s_lshl_b32 s38, s20, 8"); a("v_add_u32 v3, s38, v3")
    a("v_add_u32 v4, %d, v3" % (64 * 1088))
    a("s_barrier")
    n = 0
    for nt in range(4):
        for db in range(4):
            for u in range(2):
                fr = 24 + 4 * (n & 1); n += 1
                base = 3 if db < 2 else 4
                off = ((db % 2) * 32 + 16 * u) * 1088 + nt * 64
                a("ds_read_b64_tr_b16 v[%d:%d], v%d offset:%d" % (fr, fr + 1, base, off))
                a("ds_read_b64_tr_b16 v[%d:%d], v%d offset:%d" % (fr + 2, fr + 3, base, off + 8 * 1088))
                a("s_waitcnt lgkmcnt(0)")
                bq = 32 + (db * 2 + u) * 4
                first = (db == 0 and u == 0)
                a("v_mfma_f32_32x32x16_bf16 v[%d:%d], v[%d:%d], v[%d:%d], %s" % (64 + 16 * nt, 79 + 16 * nt, fr, fr + 3, bq, bq + 3, "0" if first else "v[%d:%d]" % (64 + 16 * nt, 79 + 16 * nt)))
    a("s_lshl_b32 s34, s23, 5"); a("s_add_u32 s34, s34, s21"); a("s_lshl_b32 s34, s34, 16")
    a("s_lshl_b32 s35, s20, 14"); a("s_add_u32 s34, s34, s35"); a("s_add_u32 s34, s34, 0x%x" % WS_PO)
    for nt in range(4):
        for rg in range(4):
            r = 64 + 16 * nt + 4 * rg
            a("buffer_store_dwordx4 v[%d:%d], v2, s[24:27], s34 offen offset:%d" % (r, r + 3, rg * 1024))
        a("s_add_u32 s34, s34, 4096")
    a.label("K3_end")
    a("s_endpgm")
    return a

def k4_red():
    a = Asm()
    a("s_cmp_ge_u32 s2, 128"); a("s_cbranch_scc1 K4_end")
    a("s_load_dwordx2 s[6:7], s[0:1], 40")
    a("s_load_dwordx2 s[8:9], s[0:1], 56")
    a("s_lshr_b32 s20, s2, 4")
    a("s_and_b32 s21, s2, 15")
    a("v_lshlrev_b32 v2, 4, v0")
    a("s_waitcnt lgkmcnt(0)")
    srd(a, 16, 6, 7, 8 * 32 * 512 * 2)
    srd(a, 24, 8, 9, 0x10000000)
    a("s_lshl_b32 s30, s20, 21"); a("s_lshl_b32 s31, s21, 12"); a("s_add_u32 s30, s30, s31"); a("s_add_u32 s30, s30, 0x%x" % WS_PO)
    for h in range(32):
        a("buffer_load_dwordx4 v[%d:%d], v2, s[24:27], s30 offen" % (16 + 4 * h, 19 + 4 * h))
        a("s_add_u32 s30, s30, 0x10000")
    a("s_waitcnt vmcnt(0)")
    for h in range(1, 32):
        for i in range(4): a("v_add_f32 v%d, v%d, v%d" % (16 + i, 16 + i, 16 + 4 * h + i))
    a("v_cvt_pk_bf16_f32 v8, v16, v17"); a("v_cvt_pk_bf16_f32 v9, v18, v19")
    a("v_and_b32 v3, 31, v0"); a("v_lshlrev_b32 v3, 10, v3")
    a("v_lshrrev_b32 v4, 6, v0"); a("v_lshlrev_b32 v4, 4, v4"); a("v_add_u32 v3, v3, v4")
    a("v_lshrrev_b32 v4, 5, v0"); a("v_and_b32 v4, 1, v4"); a("v_lshlrev_b32 v4, 3, v4"); a("v_add_u32 v3, v3, v4")
    a("s_lshl_b32 s32, s20, 15"); a("s_lshl_b32 s33, s21, 6"); a("s_add_u32 s32, s32, s33")
    a("buffer_store_dwordx2 v[8:9], v3, s[16:19], s32 offen")
    a.label("K4_end")
    a("s_endpgm")
    return a

if __name__ == "__main__":
    out = sys.argv[1] if len(sys.argv) > 1 else "base.s"
    pol = sys.argv[2] if len(sys.argv) > 2 else "nt"
    ks = [(MAIN, k1_qproj(), 256, 256, 131072, 160, 160, 96),
          ("attn_kernel", k2_attn(pol), 256, 256, 131072, 232, 232, 96),
          ("comb_kernel", k3_comb(), 256, 256, 128 * 1088, 192, 192, 96),
          ("red_kernel", k4_red(), 128, 256, 0, 144, 144, 96)]
    build_file(ks, out)
```

```python
import sys
from gen_base import *
def empty():
    a = Asm(); a("s_endpgm"); return a
def mk(front, back, path, pol="nt"):
    e = empty()
    ks = [("nop_kernel", e, 256, 256, 0, 32, 32, 96)] * front
    ks += [(MAIN, k1_qproj(), 256, 256, 131072, 160, 160, 96),
          ("attn_kernel", k2_attn(pol), 256, 256, 131072, 232, 232, 96),
          ("comb_kernel", k3_comb(), 256, 256, 128 * 1088, 192, 192, 96),
          ("red_kernel", k4_red(), 128, 256, 0, 144, 144, 96)]
    ks += [("nop_kernel", e, 256, 256, 0, 32, 32, 96)] * back
    build_file(ks, path)
mk(4, 0, "../cdna_kernels/v_front4.s")
mk(0, 4, "../cdna_kernels/v_back4.s")
mk(0, 0, "../cdna_kernels/v_plain.s", pol="")
mk(0, 0, "../cdna_kernels/v_nt.s", pol="nt")
```

```python
import sys
from gen_base import *
def stamped(a, i, endlabel):
    pre = ["s_memrealtime s[90:91]", "s_load_dwordx2 s[92:93], s[0:1], 48"]
    lines = pre + a.lines
    idx = lines.index(endlabel + ":")
    post = ["s_waitcnt vmcnt(0) lgkmcnt(0)", "s_memrealtime s[94:95]", "s_cmp_lg_u32 s2, 0", "s_cbranch_scc1 %s_x" % endlabel,
            "s_waitcnt lgkmcnt(0)",
            "s_sub_u32 s92, s92, %d" % (512 * i), "s_subb_u32 s93, s93, 0",
            "s_mov_b64 exec, 1",
            "v_mov_b32 v1, 0", "v_mov_b32 v2, s90", "v_mov_b32 v3, s94",
            "global_store_dwordx2 v1, v[2:3], s[92:93] offset:%d" % (8 * i),
            endlabel + "_x:"]
    a.lines = lines[:idx + 1] + post + lines[idx + 1:]
    return a
ks = [(MAIN, stamped(k1_qproj(), 0, "K1_end"), 256, 256, 131072, 160, 160, 100),
      ("attn_kernel", stamped(k2_attn("nt"), 1, "K2_end"), 256, 256, 131072, 232, 232, 100),
      ("comb_kernel", stamped(k3_comb(), 2, "K3_end"), 256, 256, 128 * 1088, 192, 192, 100),
      ("red_kernel", stamped(k4_red(), 3, "K4_end"), 128, 256, 0, 144, 144, 100)]
build_file(ks, "../cdna_kernels/v_stamp.s")
build_file(ks, "v_stamp.s")
```

```python
import re

TRANS = ("v_exp_f32", "v_log_f32", "v_rcp_f32", "v_rsq_f32", "v_sqrt_f32", "v_sin_f32", "v_cos_f32", "v_rcp_iflag_f32")

def _regs(tok):
    tok = tok.strip()
    neg = tok.lstrip("-")
    if neg.startswith("abs(") and neg.endswith(")"):
        neg = neg[4:-1]
    if neg.startswith("|") and neg.endswith("|"):
        neg = neg[1:-1]
    tok = neg
    m = re.fullmatch(r"([vas])(\d+)", tok)
    if m:
        return {(m.group(1), int(m.group(2)))}
    m = re.fullmatch(r"([vas])\[(\d+):(\d+)\]", tok)
    if m:
        return {(m.group(1), i) for i in range(int(m.group(2)), int(m.group(3)) + 1)}
    if tok == "vcc":
        return {("s", "vcc")}
    if tok == "exec":
        return {("s", "exec")}
    if tok == "m0":
        return {("s", "m0")}
    return set()

class Ins:
    __slots__ = ("text", "op", "kind", "dst", "src", "srcC", "passes", "states", "islabel", "store_data", "sdst")
    def __init__(self, text):
        self.text = text
        t = text.split(";")[0].strip()
        self.islabel = t.endswith(":")
        self.op = t.split()[0] if t else ""
        self.dst = set(); self.src = set(); self.srcC = set(); self.passes = 0
        self.states = 1; self.store_data = set(); self.sdst = set()
        self.kind = "other"
        if self.islabel or not t or t.startswith("."):
            self.kind = "label"; self.states = 0
            return
        rest = t[len(self.op):].strip()
        ops = [o.strip() for o in re.split(r",(?![^\[]*\])", rest)] if rest else []
        clean = []
        for o in ops:
            clean.append(o.split()[0] if o else o)
        op = self.op
        if op == "s_nop":
            self.kind = "salu"; self.states = int(clean[0], 0) + 1
        elif op.startswith("v_mfma"):
            self.kind = "mfma"
            self.dst = _regs(clean[0]); self.src = _regs(clean[1]) | _regs(clean[2]); self.srcC = _regs(clean[3])
            self.passes = 8 if "32x32" in op else 4
        elif op.startswith("v_readfirstlane") or op.startswith("v_readlane"):
            self.kind = "valu"; self.sdst = _regs(clean[0]); self.src = _regs(clean[1])
            self.op = "v_readlane"
        elif op.startswith("v_cmp"):
            self.kind = "valu"; self.sdst = _regs(clean[0])
            for c in clean[1:]: self.src |= _regs(c)
            if op.startswith("v_cmpx"): self.sdst |= {("s", "exec")}
        elif op.startswith("v_permlane32_swap") or op.startswith("v_permlane16_swap"):
            self.kind = "valu"; self.op = "v_permlane"
            self.dst = _regs(clean[0]) | _regs(clean[1]); self.src = set(self.dst)
        elif op.startswith("v_"):
            self.kind = "valu"
            self.dst = _regs(clean[0])
            k = 1
            if op.startswith(("v_add_co", "v_sub_co", "v_addc_co", "v_subb_co", "v_subrev_co", "v_div_scale")):
                self.sdst = _regs(clean[1]); k = 2
            for c in clean[k:]: self.src |= _regs(c)
            if op.startswith(("v_fmac", "v_mac", "v_dot2c", "v_pk_fmac")): self.src |= self.dst
            if op.startswith("v_cndmask") and len(clean) == 3: self.src |= {("s", "vcc")}
            if "dpp" in t or "row_" in t or "quad_perm" in t: self.op = op + "_dpp"
        elif op.startswith("ds_read") or op.startswith("ds_bpermute") or op.startswith("ds_swizzle") or op.startswith("ds_permute"):
            self.kind = "ds"; self.dst = _regs(clean[0])
            for c in clean[1:]: self.src |= _regs(c)
        elif op.startswith("ds_"):
            self.kind = "ds"
            for c in clean: self.src |= _regs(c)
        elif op.startswith("buffer_") or op.startswith("global_"):
            self.kind = "vmem"
            islds = re.search(r"\blds\b", t) is not None or "_lds_" in op
            if op in ("buffer_inv", "buffer_wbl2"):
                pass
            elif "load" in op and not islds:
                self.dst = _regs(clean[0])
                for c in clean[1:]: self.src |= _regs(c)
            elif "store" in op:
                for c in clean: self.src |= _regs(c)
                dtok = clean[0] if op.startswith("buffer_") else clean[1]
                if op.endswith("x4") or op.endswith("x3"): self.store_data = _regs(dtok)
            elif "atomic" in op:
                for c in clean: self.src |= _regs(c)
                if re.search(r"\bsc0\b", t): self.dst = _regs(clean[0])
            else:
                for c in clean: self.src |= _regs(c)
            if islds: self.src |= {("s", "m0")}; self.kind = "vmem_lds"
        elif op.startswith("s_"):
            self.kind = "salu"
            if op.startswith(("s_cmp", "s_cbranch", "s_branch", "s_waitcnt", "s_barrier", "s_endpgm", "s_sleep", "s_setprio", "s_bitcmp")):
                for c in clean: self.src |= _regs(c)
            elif clean:
                self.sdst = _regs(clean[0])
                for c in clean[1:]: self.src |= _regs(c)
                if "saveexec" in op: self.sdst |= {("s", "exec")}

def need(prod, cons):
    n = 0
    pv = prod.dst
    if prod.kind == "valu":
        if cons.kind == "mfma" and (pv & (cons.src | cons.srcC)): n = max(n, 2)
        if cons.op == "v_permlane" and (pv & cons.src): n = max(n, 2)
        if cons.op == "v_readlane" and (pv & cons.src): n = max(n, 1)
        if cons.op.endswith("_dpp") and (pv & cons.src): n = max(n, 2)
        if prod.op in TRANS and cons.kind in ("valu", "mfma") and (pv & (cons.src | cons.dst)) : n = max(n, 1)
        if prod.sdst:
            if cons.kind in ("vmem", "vmem_lds") and (prod.sdst & cons.src): n = max(n, 5)
            if cons.kind == "valu" and (prod.sdst & cons.src): n = max(n, 2)
            if cons.op == "v_readlane" and (prod.sdst & cons.src): n = max(n, 4)
            if ("s", "exec") in prod.sdst:
                if cons.kind == "mfma": n = max(n, 4)
                if cons.op in ("v_readlane", "v_permlane"): n = max(n, 4)
    if prod.kind == "mfma":
        big = 12 if prod.passes == 8 else 8
        if cons.kind == "mfma":
            if pv & cons.src: n = max(n, big)
            if pv & cons.srcC:
                if cons.srcC == pv and cons.passes == prod.passes: pass
                else: n = max(n, 10 if prod.passes == 8 else 6)
            if (pv & cons.dst) and not (cons.srcC == pv and cons.dst == pv):
                n = max(n, big)
        elif cons.kind in ("valu", "ds", "vmem", "vmem_lds"):
            if pv & (cons.src | cons.dst): n = max(n, big)
        if cons.kind == "valu" and (prod.srcC & cons.dst): n = max(n, 7 if prod.passes == 8 else 3)
    if prod.kind == "salu" and ("s", "m0") in prod.sdst and cons.kind == "vmem_lds": n = max(n, 1)
    if prod.kind == "salu" and ("s", "exec") in prod.sdst and cons.kind == "mfma": n = max(n, 4)
    if prod.store_data and cons.kind in ("valu", "mfma") and (prod.store_data & cons.dst): n = max(n, 2)
    if prod.store_data and cons.kind in ("ds", "vmem") and (prod.store_data & cons.dst): n = max(n, 1)
    return n

class Asm:
    def __init__(self):
        self.lines = []
        self.loops = []
    def __call__(self, s, *a):
        for ln in s.split("\n"):
            ln = ln.strip()
            if ln: self.lines.append(ln)
    def label(self, n): self.lines.append(n + ":")
    def comment(self, s): self.lines.append("; " + s)
    def pad(self):
        ins = [Ins(l) if not l.startswith(";") else None for l in self.lines]
        out_lines = []; window = []
        W = 24
        inserted = 0
        def required(cons, win):
            dist = 0; req = 0
            for p in reversed(win):
                if p.kind == "label": continue
                r = need(p, cons) - dist
                if r > req: req = r
                dist += p.states
                if dist > 20: break
            return req
        for l, i in zip(self.lines, ins):
            if i is None:
                out_lines.append(l); continue
            if i.kind != "label":
                r = required(i, window)
                while r > 0:
                    k = min(r, 16)
                    nop = "s_nop %d" % (k - 1)
                    out_lines.append(nop); window.append(Ins(nop)); r -= k; inserted += 1
            out_lines.append(l); window.append(i)
            if len(window) > 64: window = window[-48:]
        self.lines = out_lines
        pos = {}
        for idx, l in enumerate(self.lines):
            if l.endswith(":") and not l.startswith(";"): pos[l[:-1]] = idx
        problems = []
        for idx, l in enumerate(self.lines):
            if l.startswith(";"): continue
            t = l.split()
            if t and t[0].startswith(("s_cbranch", "s_branch")):
                tgt = t[1]
                if tgt in pos:
                    tail = [Ins(x) for x in self.lines[max(0, idx - 40):idx + 1] if not x.startswith(";")]
                    head = [Ins(x) for x in self.lines[pos[tgt]:pos[tgt] + 40] if not x.startswith(";")]
                    win = list(tail)
                    dist0 = 0
                    for h in head:
                        if h.kind == "label": continue
                        if h.op.startswith(("s_branch", "s_endpgm")): break
                        d = dist0
                        for p in reversed(tail):
                            if p.kind == "label": continue
                            if need(p, h) > d:
                                problems.append("hazard across branch '%s': %s -> %s (dist %d need %d)" % (l, p.text, h.text, d, need(p, h)))
                            d += p.states
                            if d > 20: break
                        dist0 += h.states
                        if dist0 > 20: break
        return inserted, problems
    def text(self):
        out = []
        for l in self.lines:
            if l.endswith(":") and not l.startswith(";"): out.append(l)
            else: out.append("  " + l)
        return "\n".join(out) + "\n"

def descriptor(name, vgprs, accum, sgprs=96):
    return """.p2align 6
.amdhsa_kernel %s
  .amdhsa_next_free_vgpr %d
  .amdhsa_next_free_sgpr %d
  .amdhsa_accum_offset %d
  .amdhsa_group_segment_fixed_size 0
  .amdhsa_kernarg_size 64
  .amdhsa_user_sgpr_count 2
  .amdhsa_user_sgpr_kernarg_segment_ptr 1
  .amdhsa_system_sgpr_workgroup_id_x 1
  .amdhsa_float_denorm_mode_32 3
  .amdhsa_float_denorm_mode_16_64 3
.end_amdhsa_kernel
""" % (name, vgprs, sgprs, accum)

HEADER_COMMENT = """; Kernarg layout for this problem (64 bytes, ptrs only, base s[0:1]):
;   offset  16: d_in[2] v_cache  shape=(8, 8, 2048, 128) dtype=bfloat16
"""

def build_file(kernels, path):
    s = HEADER_COMMENT
    if len(kernels) == 1:
        n, a, g, b, lds, v, acc, sg = kernels[0]
        s += "; @launch grid=(%d,1,1) block=(%d,1,1) lds=%d\n" % (g, b, lds)
    else:
        for n, a, g, b, lds, v, acc, sg in kernels:
            s += "; @launch kernel=%s grid=(%d,1,1) block=(%d,1,1) lds=%d\n" % (n, g, b, lds)
    s += '.amdgcn_target "amdgcn-amd-amdhsa--gfx950"\n.text\n'
    seen = set()
    for n, a, g, b, lds, v, acc, sg in kernels:
        if n in seen: continue
        seen.add(n)
        k, probs = a.pad()
        for p in probs: print("WARNING[%s]: %s" % (n, p))
        s += ".globl %s\n.p2align 8\n.type %s,@function\n%s:\n" % (n, n, n)
        s += a.text()
    s += '.section .rodata,"a"\n'
    seen = set()
    for n, a, g, b, lds, v, acc, sg in kernels:
        if n in seen: continue
        seen.add(n)
        s += descriptor(n, v, acc, sg)
    open(path, "w").write(s)

STAMP_OFF = 0x0F000000
def add_stamps(a, kidx, endlabel, nst=8, nwg=256):
    pre = ["s_memrealtime s[90:91]", "s_load_dwordx2 s[92:93], s[0:1], 56", "s_mov_b32 s89, s2"]
    lines = pre + a.lines
    idx = lines.index(endlabel + ":")
    post = ["s_waitcnt vmcnt(0) lgkmcnt(0)", "s_memrealtime s[94:95]",
            "s_cmp_ge_u32 s89, %d" % nwg, "s_cbranch_scc1 %s_x" % endlabel,
            "s_mov_b64 exec, -1",
            "v_cmp_eq_u32 vcc, 0, v0", "s_mov_b64 exec, vcc", "s_cbranch_execz %s_x" % endlabel,
            "s_waitcnt lgkmcnt(0)",
            "s_mul_i32 s96, s89, %d" % (nst * 8), "s_add_u32 s96, s96, 0x%x" % (STAMP_OFF + kidx * 16),
            "s_add_u32 s92, s92, s96", "s_addc_u32 s93, s93, 0",
            "v_mov_b32 v1, 0", "v_mov_b32 v2, s90", "v_mov_b32 v3, s91", "v_mov_b32 v4, s94", "v_mov_b32 v5, s95",
            "global_store_dwordx4 v1, v[2:5], s[92:93]",
            endlabel + "_x:"]
    a.lines = lines[:idx + 1] + post + lines[idx + 1:]
    return a


class Stamper:
    def __init__(self, a, enabled, base_idx=0, nst=16, sbase=64):
        self.a = a; self.on = enabled; self.n = 0; self.base = base_idx; self.nst = nst; self.sb = sbase
    def __call__(self):
        if self.on:
            r = self.sb + 2 * self.n
            self.a("s_memrealtime s[%d:%d]" % (r, r + 1)); self.n += 1
    def flush(self, wgreg, wavereg, wsreg, label):
        if not self.on: return
        a = self.a
        a("s_waitcnt vmcnt(0) lgkmcnt(0)")
        self()
        a("s_waitcnt lgkmcnt(0)")
        a("s_cmp_lg_u32 s%d, 0" % wavereg); a("s_cbranch_scc1 %s" % label)
        a("s_mul_i32 s62, s%d, %d" % (wgreg, self.nst * 8)); a("s_add_u32 s62, s62, 0x%x" % (STAMP_OFF + self.base * 8))
        a("s_add_u32 s62, s%d, s62" % wsreg); a("s_addc_u32 s63, s%d, 0" % (wsreg + 1))
        a("s_mov_b64 exec, 1")
        a("v_mov_b32 v1, 0")
        for i in range(self.n):
            a("v_mov_b32 v2, s%d" % (self.sb + 2 * i)); a("v_mov_b32 v3, s%d" % (self.sb + 2 * i + 1))
            a("global_store_dwordx2 v1, v[2:3], s[62:63] offset:%d" % (8 * i))
            a("s_nop 1")
        a.label(label)
```

```python
import sys, struct, math
from asmlib import *

MAIN = "standalone__gqa_block_cached__near_ridge_kernel"
WS_Q = 0x0
WS_G = 0x400000
GS = 0x28000
WS_B = 0x1400000
BS = 0x110000
def f32bits(x): return struct.unpack("<I", struct.pack("<f", x))[0]
CSCALE = f32bits((128 ** -0.5) * math.log2(math.e))
THRESH = f32bits(2.0 ** 20)

def srd(a, dst, lo, hi, nbytes):
    a("s_mov_b32 s%d, s%d" % (dst, lo)); a("s_mov_b32 s%d, s%d" % (dst + 1, hi))
    a("s_mov_b32 s%d, 0x%x" % (dst + 2, nbytes)); a("s_mov_b32 s%d, 0x20000" % (dst + 3))
def vr(b, n=1): return "v%d" % b if n == 1 else "v[%d:%d]" % (b, b + n - 1)
def ar(b, n=1): return "a%d" % b if n == 1 else "a[%d:%d]" % (b, b + n - 1)

def kv_base(a, idreg, dst, tmp):
    a("s_and_b32 s21, s%d, 7" % idreg); a("s_lshr_b32 s22, s%d, 3" % idreg); a("s_lshr_b32 s23, s22, 2"); a("s_and_b32 s24, s22, 3")
    a("s_lshl_b32 s%d, s23, 3" % dst); a("s_add_u32 s%d, s%d, s21" % (dst, dst)); a("s_lshl_b32 s%d, s%d, 19" % (dst, dst))
    a("s_lshl_b32 s%d, s24, 17" % tmp); a("s_add_u32 s%d, s%d, s%d" % (dst, dst, tmp))

PF_DELAY = 2
PF_DEPTH = None
PF_TILES = [1, 3, 5, 7]
PF_WO = True
def k_q(stamps=False):
    a = Asm(); st = Stamper(a, stamps, 0, 16)
    st()
    a("s_cmp_ge_u32 s2, 256"); a("s_cbranch_scc1 K1_end")
    a("s_load_dwordx2 s[4:5], s[0:1], 0")
    a("s_load_dwordx2 s[6:7], s[0:1], 24")
    a("s_load_dwordx2 s[8:9], s[0:1], 56")
    a("s_load_dwordx4 s[52:55], s[0:1], 8")
    a("s_load_dwordx2 s[46:47], s[0:1], 32")
    a("v_lshrrev_b32 v1, 6, v0")
    a("v_and_b32 v0, 63, v0")
    a("v_readfirstlane_b32 s20, v1")
    a("s_bitcmp1_b32 s2, 3"); a("s_cbranch_scc1 K1_pf")
    a("s_and_b32 s21, s2, 7"); a("s_lshl_b32 s21, s21, 2"); a("s_lshr_b32 s22, s2, 4"); a("s_and_b32 s23, s22, 3")
    a("s_add_u32 s21, s21, s23")
    a("s_lshr_b32 s22, s22, 2")
    a("s_add_u32 s43, s22, s23"); a("s_and_b32 s43, s43, 3")
    a("v_lshrrev_b32 v2, 4, v0"); a("v_and_b32 v4, 15, v0"); a("v_lshlrev_b32 v3, 2, v2"); a("v_xor_b32 v3, v3, v4")
    a("v_lshlrev_b32 v3, 4, v3"); a("v_lshlrev_b32 v5, 13, v2"); a("v_add_u32 v20, v5, v3")
    a("s_lshl_b32 s37, s20, 3"); a("s_and_b32 s37, s37, 15")
    a("v_add_u32 v3, s37, v2"); a("v_xor_b32 v5, v3, v4"); a("v_lshlrev_b32 v5, 4, v5"); a("v_lshlrev_b32 v6, 10, v2"); a("v_add_u32 v21, v5, v6")
    a("v_add_u32 v3, 4, v3"); a("v_xor_b32 v5, v3, v4"); a("v_lshlrev_b32 v5, 4, v5"); a("v_add_u32 v22, v5, v6")
    a("s_waitcnt lgkmcnt(0)")
    srd(a, 12, 4, 5, 8 * 32 * 512 * 2)
    srd(a, 16, 6, 7, 512 * 4096 * 2)
    srd(a, 24, 8, 9, 0x10000000)
    st()
    a("s_lshl_b32 s33, s22, 16"); a("s_lshl_b32 s34, s20, 13"); a("s_add_u32 s33, s33, s34")
    a("s_lshl_b32 s34, s20, 11")
    a("s_lshl_b32 s30, s20, 17"); a("s_lshl_b32 s31, s21, 8"); a("s_add_u32 s30, s30, s31")
    a("s_lshl_b32 s32, s20, 12"); a("s_add_u32 s32, s32, 65536")
    def x_stage(i):
        a("s_add_u32 s39, s43, %d" % i); a("s_and_b32 s39, s39, 3"); a("s_lshl_b32 s39, s39, 8"); a("s_add_u32 s39, s39, s33")
        a("s_add_u32 m0, s34, %d" % (i * 16384))
        a("s_add_u32 s36, s39, 4096")
        a("buffer_load_dwordx4 v21, s[12:15], s39 offen lds")
        a("s_add_u32 m0, s34, %d" % (i * 16384 + 1024))
        a("s_nop 0")
        a("buffer_load_dwordx4 v22, s[12:15], s36 offen lds")
    def wq_stage(i):
        a("s_add_u32 s39, s43, %d" % i); a("s_and_b32 s39, s39, 3"); a("s_lshl_b32 s39, s39, 20"); a("s_add_u32 s39, s39, s30")
        for e in range(4):
            a("s_add_u32 m0, s32, %d" % ((i % 3) * 32768 + e * 1024))
            a("s_add_u32 s36, s39, %d" % (e * 32768))
            a("buffer_load_dwordx4 v20, s[16:19], s36 offen lds")
    for i in range(3):
        x_stage(i); wq_stage(i)
    x_stage(3)
    a("s_and_b32 s40, s20, 3"); a("s_lshr_b32 s41, s20, 2")
    a("v_and_b32 v4, 15, v0"); a("v_lshrrev_b32 v4, 2, v4")
    a("v_lshrrev_b32 v5, 5, v0")
    a("v_lshlrev_b32 v6, 3, v5"); a("v_add_u32 v6, v6, v4"); a("v_lshlrev_b32 v6, 8, v6")
    a("v_xor_b32 v7, s40, v4"); a("v_lshlrev_b32 v7, 6, v7"); a("v_add_u32 v6, v6, v7")
    a("v_lshrrev_b32 v7, 4, v0"); a("v_and_b32 v7, 1, v7"); a("v_lshlrev_b32 v7, 5, v7"); a("v_add_u32 v6, v6, v7")
    a("v_and_b32 v7, 3, v0"); a("v_lshlrev_b32 v7, 3, v7"); a("v_add_u32 v6, v6, v7")
    a("v_add_u32 v6, 0x10000, v6")
    a("v_add_u32 v7, 0x10000, v6")
    a("v_and_b32 v8, 31, v0")
    a("v_and_b32 v9, 15, v8"); a("v_xor_b32 v9, v9, v5"); a("v_lshlrev_b32 v9, 4, v9")
    a("v_lshlrev_b32 v8, 8, v8"); a("s_lshl_b32 s42, s41, 13"); a("v_add_u32 v8, s42, v8")
    for e in range(8):
        a("v_xor_b32 v%d, %d, v9" % (10 + e, e * 32)); a("v_add_u32 v%d, v%d, v8" % (10 + e, 10 + e))
    ACC = 32; AF = 48; BF = 80
    def reads(i, e):
        slot = i % 3
        base, off = (6, slot * 32768) if slot < 2 else (7, 0)
        off += e * 4096
        fr = AF + 4 * e; br = BF + 4 * e
        return ["ds_read_b64_tr_b16 v[%d:%d], v%d offset:%d" % (fr, fr + 1, base, off),
                "ds_read_b64_tr_b16 v[%d:%d], v%d offset:%d" % (fr + 2, fr + 3, base, off + 1024),
                "ds_read_b128 v[%d:%d], v%d offset:%d" % (br, br + 3, 10 + e, i * 16384)]
    waits = [14, 8 + 4, 4, 0]
    waits = [14, 12, 4, 0]
    for i in range(4):
        a("s_waitcnt vmcnt(%d)" % waits[i])
        a("s_barrier")
        if i == 0: st()
        for e in range(8):
            for o in reads(i, e): a(o)
        for e in range(8):
            a("s_waitcnt lgkmcnt(%d)" % min(15, 3 * (7 - e)))
            fr = AF + 4 * e; br = BF + 4 * e
            a("v_mfma_f32_32x32x16_bf16 v[%d:%d], v[%d:%d], v[%d:%d], %s" % (ACC, ACC + 15, fr, fr + 3, br, br + 3, "0" if (i == 0 and e == 0) else "v[%d:%d]" % (ACC, ACC + 15)))
        if i == 0:
            a("s_barrier")
            wq_stage(3)
    st()
    a("s_mov_b32 s50, 0x%x" % CSCALE)
    a("s_lshl_b32 s34, s22, 1"); a("s_add_u32 s34, s34, s41"); a("s_lshl_b32 s34, s34, 5"); a("s_add_u32 s34, s34, s21"); a("s_lshl_b32 s34, s34, 13")
    a("s_lshl_b32 s35, s40, 11"); a("s_add_u32 s34, s34, s35")
    if WS_Q: a("s_add_u32 s34, s34, 0x%x" % WS_Q)
    a("v_lshlrev_b32 v2, 4, v0")
    for i in range(16): a("v_mul_f32 v%d, s50, v%d" % (ACC + i, ACC + i))
    for i in range(8): a("v_cvt_pk_bf16_f32 v%d, v%d, v%d" % (24 + i, ACC + 2 * i, ACC + 1 + 2 * i))
    for u in range(2):
        a("v_permlane32_swap_b32 v%d, v%d" % (24 + 4 * u, 26 + 4 * u))
        a("v_permlane32_swap_b32 v%d, v%d" % (25 + 4 * u, 27 + 4 * u))
    a("buffer_store_dwordx4 v[24:27], v2, s[24:27], s34 offen")
    a("buffer_store_dwordx4 v[28:31], v2, s[24:27], s34 offen offset:1024")
    st()
    st.flush(2, 20, 8, "K1_end2")
    a("s_branch K1_end")
    a.label("K1_pf")
    a("s_waitcnt lgkmcnt(0)")
    srd(a, 24, 8, 9, 0x10000000)
    srd(a, 56, 52, 53, 0x2000000); srd(a, 60, 54, 55, 0x2000000)
    a("s_cmp_lg_u32 s20, 0"); a("s_cbranch_scc1 K1_pf2")
    a("v_mov_b32 v4, 0"); a("v_mov_b32 v5, 0")
    a("s_mov_b64 s[44:45], exec"); a("s_mov_b64 exec, 1")
    for d in (8, 0):
        a("s_sub_u32 s30, s2, %d" % d)
        a("s_lshr_b32 s31, s30, 2"); a("s_mul_i32 s31, s31, 0x%x" % GS); a("s_and_b32 s32, s30, 3"); a("s_lshl_b32 s32, s32, 7")
        a("s_add_u32 s31, s31, s32"); a("s_add_u32 s31, s31, 0x%x" % (WS_G + 0x22000))
        a("buffer_store_dword v5, v4, s[24:27], s31 offen")
        a("s_lshr_b32 s31, s30, 5"); a("s_mul_i32 s31, s31, 0x%x" % BS); a("s_and_b32 s32, s30, 31"); a("s_lshl_b32 s32, s32, 7")
        a("s_add_u32 s31, s31, s32"); a("s_add_u32 s31, s31, 0x%x" % (WS_B + 0x100000))
        a("buffer_store_dword v5, v4, s[24:27], s31 offen")
    a("s_mov_b64 exec, s[44:45]")
    a.label("K1_pf2")
    if PF_TILES:
        a("s_lshr_b32 s30, s20, 2"); a("s_lshl_b32 s30, s30, 3"); a("s_sub_u32 s30, s2, s30")
        kv_base(a, 30, 40, 41)
        a("s_bitcmp1_b32 s20, 1")
        a("s_cselect_b32 s56, s60, s56"); a("s_cselect_b32 s57, s61, s57")
        a("v_lshlrev_b32 v30, 7, v0")
        for d in range(PF_DELAY):
            a("v_mov_b32 v31, %d" % (d * 128))
            a("buffer_load_dword v31, v31, s[56:59], s40 offen")
            a("s_waitcnt vmcnt(0)")
        ta = PF_TILES[0::2]; tb = PF_TILES[1::2]
        n = max(len(ta), len(tb))
        for i in range(n):
            x0 = ta[i] * 8192 if i < len(ta) else 0x4000000
            x1 = tb[i] * 8192 if i < len(tb) else 0x4000000
            a("s_bitcmp1_b32 s20, 0")
            a("s_cselect_b32 s41, 0x%x, 0x%x" % (x1, x0) if False else "s_mov_b32 s42, 0x%x" % x0)
            a("s_cselect_b32 s41, 0x%x, s42" % x1)
            a("s_add_u32 s41, s41, s40")
            a("buffer_load_dword v%d, v30, s[56:59], s41 offen" % (32 + i))
        if PF_WO:
            srd(a, 48, 46, 47, 4096 * 512 * 2)
            a("s_and_b32 s30, s2, 7"); a("s_lshl_b32 s30, s30, 19"); a("s_lshr_b32 s31, s2, 4"); a("s_lshl_b32 s31, s31, 15"); a("s_add_u32 s30, s30, s31")
            a("s_lshl_b32 s31, s20, 12"); a("s_add_u32 s30, s30, s31")
            a("s_mov_b64 exec, 0xffffffff") if False else None
            a("v_cmp_gt_u32 vcc, 32, v0"); a("s_and_saveexec_b64 s[44:45], vcc")
            a("buffer_load_dword v40, v30, s[48:51], s30 offen")
            a("s_mov_b64 exec, s[44:45]")
        a("s_waitcnt vmcnt(0)")
    if stamps:
        a("s_memrealtime s[66:67]"); a("s_memrealtime s[68:69]"); a("s_memrealtime s[70:71]"); a("s_memrealtime s[72:73]")
        st.n = 5
        st.flush(2, 20, 8, "K1_end3")
    a.label("K1_end")
    a("s_endpgm")
    return a

VK0, VK1, VV = 8, 9, 10
LANE16 = 11
KRA = 12
VRA = 20
MREF, LSUM, TS, TS2 = 24, 25, 26, 27
T0, T1 = 28, 29
NEGM = 32
SB = [48, 64]
E = 80
P = 96
KF = 104
VF = 136
O = 168
NV = 232
WOROW = 1088
BIMG = 128 * WOROW
KRING = 81920
VRING = KRING + 32768
LDS_MAIN = VRING + 32768

class Main:
    def __init__(self, pol="nt", stamps=False, trickle=True, pretouch=True):
        self.a = Asm(); self.pol = pol
        self.st = Stamper(self.a, stamps, 0, 16)
        self.rare_id = 0; self.rare = []
        self.trickle = trickle; self.pretouch = pretouch

    def issue(self, k_slot, v_slot, kmode, vmode):
        pol = self.pol; out = []
        if kmode:
            out.append("s_add_u32 m0, s36, %d" % (KRING + k_slot * 8192))
            src = "s34"
            if kmode == 'dyn':
                out.append("s_cmp_ge_u32 s42, %d" % self.dyn_limit)
                out.append("s_cselect_b32 s38, 0x4000000, s34"); src = "s38"
            else:
                out.append("s_nop 0")
            out.append("buffer_load_dwordx4 v%d, s[12:15], %s offen %s lds" % (VK0, src, pol))
            out.append("buffer_load_dwordx4 v%d, s[12:15], %s offen offset:1024 %s lds" % (VK1, src, pol))
            out.append("s_add_u32 s34, s34, 8192")
        if vmode:
            out.append("s_add_u32 m0, s36, %d" % (VRING + v_slot * 8192))
            out.append("s_add_u32 s39, s35, 0")
            out.append("buffer_load_dwordx4 v%d, s[16:19], s39 offen %s lds" % (VV, pol))
            out.append("buffer_load_dwordx4 v%d, s[16:19], s39 offen offset:1024 %s lds" % (VV, pol))
            out.append("s_add_u32 s35, s35, 8192")
        return out
    def wo_rows(self, n):
        out = []
        for _ in range(n):
            out.append("s_mov_b32 m0, s49")
            out.append("s_add_u32 s49, s49, %d" % (4 * WOROW))
            out.append("buffer_load_dwordx4 v%d, s[56:59], s48 offen lds" % LANE16)
            out.append("s_add_u32 s48, s48, 4096")
        return out

    def kreads(self, slot):
        return ["ds_read_b128 %s, v%d offset:%d" % (vr(KF + 4 * j, 4), KRA + j, slot * 8192) for j in range(8)]
    def vread(self, slot, u, db):
        r = VF + (u * 4 + db) * 4
        return ["ds_read_b64_tr_b16 %s, v%d offset:%d" % (vr(r, 2), VRA + db, slot * 8192 + u * 4096),
                "ds_read_b64_tr_b16 %s, v%d offset:%d" % (vr(r + 2, 2), VRA + db, slot * 8192 + u * 4096 + 2048)]
    def qk(self, j, snxt):
        return "v_mfma_f32_32x32x16_bf16 %s, %s, %s, %s" % (vr(snxt, 16), vr(KF + 4 * j, 4), ar(4 * j, 4), vr(NEGM, 16) if j == 0 else vr(snxt, 16))
    def pv(self, u, db):
        return "v_mfma_f32_32x32x16_bf16 %s, %s, %s, %s" % (vr(O + 16 * db, 16), vr(VF + (u * 4 + db) * 4, 4), vr(P + 4 * u, 4), vr(O + 16 * db, 16))
    def softmax_ops(self, scur):
        g = []
        for j in range(9):
            ops = []
            if j < 8:
                ops.append("v_exp_f32 v%d, v%d" % (E + 2 * j, scur + 2 * j))
                ops.append("v_exp_f32 v%d, v%d" % (E + 2 * j + 1, scur + 2 * j + 1))
            if j >= 1:
                i = j - 1
                if i == 1:
                    ops.append("v_add_f32 v%d, v%d, v%d" % (TS, E + 0, E + 2)); ops.append("v_add_f32 v%d, v%d, v%d" % (TS2, E + 1, E + 3))
                elif i > 1:
                    ops.append("v_add_f32 v%d, v%d, v%d" % (TS, TS, E + 2 * i)); ops.append("v_add_f32 v%d, v%d, v%d" % (TS2, TS2, E + 2 * i + 1))
                ops.append("v_cvt_pk_bf16_f32 v%d, v%d, v%d" % (P + i, E + 2 * i, E + 2 * i + 1))
            g.append(ops)
        return g
    def phaseA(self, scur, snxt, do_qk):
        a = self.a
        g = self.softmax_ops(scur)
        for j in range(8):
            if do_qk:
                if j == 0: a("s_waitcnt lgkmcnt(10)")
                a(self.qk(j, snxt))
            for o in g[j]: a(o)
        for o in g[8]: a(o)
        a("v_add_f32 v%d, v%d, v%d" % (TS, TS, TS2))
        a("v_cmp_lt_f32 vcc, s44, v%d" % TS)
        rid = self.rare_id; self.rare_id += 1
        a("s_cbranch_vccnz RARE%d" % rid)
        a.label("RET%d" % rid)
        a("v_add_f32 v%d, v%d, v%d" % (LSUM, LSUM, TS))
        self.rare.append((rid, scur, snxt if do_qk else None))
    def phaseB(self, wait_vm, issue_ops, kslot, vslot, barrier=True):
        a = self.a
        if barrier:
            a("s_waitcnt vmcnt(%d) lgkmcnt(0)" % wait_vm)
            a("s_barrier")
        else:
            a("s_waitcnt lgkmcnt(0)")
        kr = self.kreads(kslot) if kslot is not None else []
        iss = list(issue_ops)
        per = (len(iss) + 7) // 8
        for u in range(2):
            for db in range(4):
                a(self.pv(u, db))
                for _ in range(2):
                    if kr: a(kr.pop(0))
                if vslot is not None:
                    for o in self.vread(vslot, u, db): a(o)
                for _ in range(per):
                    if iss: a(iss.pop(0))
        for o in iss: a(o)
    def emit_rare(self):
        a = self.a
        for rid, scur, snxt in self.rare:
            a.label("RARE%d" % rid)
            a("s_nop 15")
            a("v_max3_f32 v%d, v%d, v%d, v%d" % (T0, scur, scur + 1, scur + 2))
            for i in range(3, 15, 2): a("v_max3_f32 v%d, v%d, v%d, v%d" % (T0, T0, scur + i, scur + i + 1))
            a("v_max_f32 v%d, v%d, v%d" % (T0, T0, scur + 15))
            a("v_mov_b32 v%d, v%d" % (T1, T0))
            a("s_nop 1")
            a("v_permlane32_swap_b32 v%d, v%d" % (T0, T1))
            a("v_max_f32 v%d, v%d, v%d" % (T0, T0, T1))
            a("v_max_f32 v%d, 0, v%d" % (T0, T0))
            a("v_add_f32 v%d, v%d, v%d" % (MREF, MREF, T0))
            a("v_sub_f32 v%d, 0, v%d" % (T1, T0))
            a("v_exp_f32 v%d, v%d" % (T1, T1))
            for i in range(16): a("v_sub_f32 v%d, v%d, v%d" % (NEGM + i, NEGM + i, T0))
            for i in range(16): a("v_sub_f32 v%d, v%d, v%d" % (scur + i, scur + i, T0))
            if snxt is not None:
                for i in range(16): a("v_sub_f32 v%d, v%d, v%d" % (snxt + i, snxt + i, T0))
            a("v_mul_f32 v%d, v%d, v%d" % (LSUM, LSUM, T1))
            for i in range(64): a("v_mul_f32 v%d, v%d, v%d" % (O + i, O + i, T1))
            for grp in self.softmax_ops(scur):
                for o in grp: a(o)
                a("s_nop 0")
            a("v_add_f32 v%d, v%d, v%d" % (TS, TS, TS2))
            a("s_nop 1")
            a("s_branch RET%d" % rid)

    def build(self):
        a = self.a; st = self.st
        st()
        a("s_cmp_ge_u32 s2, 256"); a("s_cbranch_scc1 K2_end")
        a("s_load_dwordx4 s[4:7], s[0:1], 8")
        a("s_load_dwordx2 s[8:9], s[0:1], 56")
        a("s_load_dwordx2 s[10:11], s[0:1], 32")
        a("s_load_dwordx2 s[52:53], s[0:1], 40")
        a("v_lshrrev_b32 v1, 6, v0")
        a("v_and_b32 v0, 63, v0")
        a("v_readfirstlane_b32 s20, v1")
        a("s_and_b32 s21, s2, 7")
        a("s_lshr_b32 s22, s2, 3"); a("s_and_b32 s23, s22, 3")
        a("s_lshr_b32 s22, s22, 2")
        a("s_lshl_b32 s28, s22, 3"); a("s_add_u32 s28, s28, s21")
        a("s_lshl_b32 s29, s28, 19"); a("s_lshl_b32 s30, s23, 17"); a("s_add_u32 s29, s29, s30")
        a("v_lshrrev_b32 v2, 4, v0"); a("v_and_b32 v3, 15, v0")
        a("s_lshl_b32 s31, s20, 3"); a("s_and_b32 s31, s31, 15")
        a("v_add_u32 v4, s31, v2")
        a("v_xor_b32 v5, v4, v3"); a("v_lshlrev_b32 v5, 4, v5")
        a("v_lshlrev_b32 v6, 8, v2")
        a("v_add_u32 v%d, v5, v6" % VK0)
        a("v_add_u32 v4, 4, v4")
        a("v_xor_b32 v5, v4, v3"); a("v_lshlrev_b32 v5, 4, v5")
        a("v_add_u32 v%d, v5, v6" % VK1)
        a("v_lshlrev_b32 v5, 2, v2"); a("v_xor_b32 v5, v5, v3"); a("v_lshlrev_b32 v5, 4, v5")
        a("v_add_u32 v%d, v5, v6" % VV)
        a("v_lshlrev_b32 v%d, 4, v0" % LANE16)
        a("s_lshl_b32 s36, s20, 11")
        a("s_waitcnt lgkmcnt(0)")
        srd(a, 12, 4, 5, 0x2000000)
        srd(a, 16, 6, 7, 0x2000000)
        srd(a, 24, 8, 9, 0x10000000)
        srd(a, 56, 10, 11, 4096 * 512 * 2)
        srd(a, 60, 52, 53, 8 * 32 * 512 * 2)
        a("s_mul_i32 s54, s28, 0x%x" % GS); a("s_add_u32 s54, s54, 0x%x" % WS_G)
        a("s_mul_i32 s55, s22, 0x%x" % BS); a("s_add_u32 s55, s55, 0x%x" % WS_B)
        a("s_add_u32 s34, s29, s36"); a("s_mov_b32 s35, s34")
        st()
        a("s_lshl_b32 s33, s28, 2"); a("s_add_u32 s33, s33, s20"); a("s_lshl_b32 s33, s33, 13")
        if WS_Q: a("s_add_u32 s33, s33, 0x%x" % WS_Q)
        for j in range(8):
            if j == 4: a("s_add_u32 s33, s33, 4096")
            a("buffer_load_dwordx4 %s, v%d, s[24:27], s33 offen offset:%d" % (ar(4 * j, 4), LANE16, (j % 4) * 1024))
        a("s_lshl_b32 s47, s21, 2"); a("s_add_u32 s47, s47, s23")
        a("s_lshl_b32 s48, s47, 7"); a("s_add_u32 s48, s48, s20"); a("s_lshl_b32 s48, s48, 10")
        a("s_mul_i32 s49, s20, %d" % WOROW)
        tr = [2, 1, 1, 1] if self.trickle else [0, 0, 0, 0]
        for o in self.issue(0, None, 'real', None): a(o)
        for t in range(3):
            for o in self.issue(t + 1, t, 'real', 'real'): a(o)
            if t >= 1:
                for o in self.wo_rows(tr[t]): a(o)
        a("v_and_b32 v1, 31, v0"); a("v_lshrrev_b32 v2, 5, v0")
        a("v_xor_b32 v3, v1, v2"); a("v_and_b32 v3, 15, v3"); a("v_lshlrev_b32 v3, 4, v3")
        a("v_lshlrev_b32 v6, 8, v1"); a("v_add_u32 v6, 0x%x, v6" % KRING)
        for j in range(8):
            a("v_xor_b32 v%d, %d, v3" % (KRA + j, j * 32))
            a("v_add_u32 v%d, v%d, v6" % (KRA + j, KRA + j))
        a("v_and_b32 v3, 15, v0"); a("v_lshrrev_b32 v3, 2, v3")
        a("v_lshlrev_b32 v6, 2, v2"); a("v_add_u32 v6, v6, v3"); a("v_lshlrev_b32 v6, 8, v6")
        a("v_lshrrev_b32 v4, 4, v0"); a("v_and_b32 v4, 1, v4"); a("v_lshlrev_b32 v4, 5, v4"); a("v_add_u32 v6, v6, v4")
        a("v_and_b32 v4, 3, v0"); a("v_lshlrev_b32 v4, 3, v4"); a("v_add_u32 v6, v6, v4")
        a("v_add_u32 v6, 0x%x, v6" % VRING)
        for db in range(4):
            a("v_xor_b32 v4, %d, v3" % db); a("v_lshlrev_b32 v4, 6, v4")
            a("v_add_u32 v%d, v6, v4" % (VRA + db))
        for i in range(64): a("v_mov_b32 v%d, 0" % (O + i))
        for i in range(16): a("v_mov_b32 v%d, 0" % (NEGM + i))
        a("v_mov_b32 v%d, 0" % LSUM)
        a("s_mov_b32 s44, 0x%x" % THRESH)
        a("s_mov_b32 s42, 0")
        a("s_waitcnt vmcnt(%d)" % (12 + tr[1] + tr[2]))
        a("s_barrier")
        st()
        for o in self.kreads(0): a(o)
        a("s_waitcnt lgkmcnt(0)")
        for j in range(8): a(self.qk(j, SB[0]))
        a("s_waitcnt vmcnt(%d)" % (8 + tr[1] + tr[2]))
        a("s_barrier")
        for o in self.issue(0, 3, 'real', 'real') + self.wo_rows(tr[3]): a(o)
        for o in self.kreads(1): a(o)
        for u in range(2):
            for db in range(4):
                for o in self.vread(0, u, db): a(o)
        if self.pretouch:
            a("v_mul_u32_u24 v1, 0x%x, v0" % 0x8000)
            a("s_mov_b64 s[50:51], exec"); a("s_mov_b64 exec, 0x1f")
            a("buffer_load_dword v2, v1, s[24:27], s54 offen")
            a("v_lshlrev_b32 v1, 18, v0")
            a("buffer_load_dword v3, v1, s[24:27], s55 offen")
            a("s_mov_b64 exec, 1")
            a("s_lshl_b32 s38, s22, 15")
            a("v_mov_b32 v1, 0")
            a("buffer_load_dword v4, v1, s[60:63], s38 offen")
            a("s_mov_b64 exec, s[50:51]")
        s0 = SB[0]
        a("v_max3_f32 v%d, v%d, v%d, v%d" % (T0, s0, s0 + 1, s0 + 2))
        for i in range(3, 15, 2): a("v_max3_f32 v%d, v%d, v%d, v%d" % (T0, T0, s0 + i, s0 + i + 1))
        a("v_max_f32 v%d, v%d, v%d" % (T0, T0, s0 + 15))
        a("v_mov_b32 v%d, v%d" % (T1, T0))
        a("v_permlane32_swap_b32 v%d, v%d" % (T0, T1))
        a("v_max_f32 v%d, v%d, v%d" % (MREF, T0, T1))
        for i in range(16): a("v_sub_f32 v%d, 0, v%d" % (NEGM + i, MREF))
        for i in range(16): a("v_sub_f32 v%d, v%d, v%d" % (s0 + i, s0 + i, MREF))
        self.dyn_limit = 2
        st()
        a.label("K2_loop")
        for k in range(4):
            self.phaseA(SB[k % 2], SB[(k + 1) % 2], True)
            iss = self.issue((k + 1) % 4, k, 'dyn' if k == 3 else 'real', 'real') + self.wo_rows(tr[k])
            self.phaseB(8 + sum(tr) - tr[k], iss, (k + 2) % 4, (k + 1) % 4)
        a("s_add_u32 s42, s42, 1"); a("s_cmp_lt_u32 s42, 3")
        a("s_cbranch_scc1 K2_loop")
        st()
        self.phaseA(SB[0], SB[1], True)
        self.phaseB(8 + tr[1] + tr[2] + tr[3], [], 2, 1)
        self.phaseA(SB[1], SB[0], True)
        self.phaseB(4 + tr[2] + tr[3], [], 3, 2)
        self.phaseA(SB[0], SB[1], True)
        self.phaseB(0, [], None, None, barrier=False)
        self.phaseA(SB[1], None, False)
        a("s_waitcnt vmcnt(0)")
        a("s_barrier")
        st()
        for u in range(2):
            for db in range(4):
                for o in self.vread(3, u, db): a(o)
        nrow_done = 18 if self.trickle else 0
        a("v_mov_b32 v%d, v%d" % (T0, LSUM))
        a("s_lshl_b32 s46, s20, 15"); a("s_lshl_b32 s37, s23, 13"); a("s_add_u32 s46, s46, s37"); a("s_add_u32 s46, s46, s54")
        a("v_permlane32_swap_b32 v%d, v%d" % (LSUM, T0))
        a("s_lshl_b32 s37, s20, 11"); a("s_lshl_b32 s38, s23, 9"); a("s_add_u32 s37, s37, s38"); a("s_add_u32 s37, s37, s54"); a("s_add_u32 s37, s37, 0x20000")
        a("v_add_f32 v%d, v%d, v%d" % (LSUM, LSUM, T0))
        a("v_mov_b32 v%d, 0" % TS); a("v_mov_b32 v%d, 0" % TS2)
        n = 16
        for u in range(2):
            for db in range(4):
                n -= 2
                a("s_waitcnt lgkmcnt(%d)" % n)
                a(self.pv(u, db))
        st()
        a("v_cmp_gt_u32 vcc, 32, v0")
        a("s_and_saveexec_b64 s[50:51], vcc")
        a("buffer_store_dwordx4 v[%d:%d], v%d, s[24:27], s37 offen sc1" % (MREF, TS2, LANE16))
        a("s_mov_b64 exec, s[50:51]")
        for i in range(8):
            for q in range(4):
                a("v_cvt_pk_bf16_f32 v%d, v%d, v%d" % (KF + 4 * i + q, O + 8 * i + 2 * q, O + 8 * i + 2 * q + 1))
            if i == 4: a("s_add_u32 s46, s46, 4096")
            a("buffer_store_dwordx4 %s, v%d, s[24:27], s46 offen offset:%d sc1" % (vr(KF + 4 * i, 4), LANE16, (i % 4) * 1024))
        a("s_barrier")
        a("s_lshl_b32 s40, s20, 7"); a("s_add_u32 s40, s40, s54"); a("s_add_u32 s40, s40, 0x22000")
        a("v_mov_b32 v1, 1"); a("v_mov_b32 v2, 0")
        a("s_waitcnt vmcnt(0)")
        st()
        a("s_mov_b64 exec, 1")
        a("buffer_atomic_add v1, v2, s[24:27], s40 offen sc1")
        a("s_mov_b64 exec, s[50:51]")
        for o in self.wo_rows(32 - nrow_done): a(o)
        a("s_cmp_lg_u32 s20, 0"); a("s_cbranch_scc1 K2_polled")
        a("s_lshl_b32 s40, s23, 7"); a("s_add_u32 s40, s40, s54"); a("s_add_u32 s40, s40, 0x22000")
        a("s_mov_b32 s41, 0")
        a("s_mov_b64 exec, 1")
        a.label("K2_poll")
        a("buffer_load_dword v3, v2, s[24:27], s40 offen sc1")
        a("s_add_u32 s41, s41, 1")
        a("s_waitcnt vmcnt(0)")
        a("v_readfirstlane_b32 s43, v3")
        a("s_cmp_gt_u32 s41, 0x8000"); a("s_cbranch_scc1 K2_pdone")
        a("s_cmp_lt_u32 s43, 4"); a("s_cbranch_scc1 K2_poll")
        a.label("K2_pdone")
        a("s_mov_b64 exec, s[50:51]")
        a.label("K2_polled")
        a("s_barrier")
        st()
        a("v_and_b32 v3, 31, v0"); a("v_lshlrev_b32 v3, 4, v3")
        a("s_lshl_b32 s37, s23, 11"); a("s_add_u32 s37, s37, s54"); a("s_add_u32 s37, s37, 0x20000")
        a("s_lshl_b32 s46, s23, 15"); a("s_add_u32 s46, s46, s54"); a("s_add_u32 s46, s46, s36")
        for s in range(4):
            a("buffer_load_dwordx4 v[%d:%d], v3, s[24:27], s37 offen offset:%d sc1" % (32 + 4 * s, 35 + 4 * s, s * 512))
        for s in range(4):
            for i in range(2):
                r = 64 + 8 * s + 4 * i
                a("buffer_load_dwordx4 v[%d:%d], v%d, s[24:27], s46 offen offset:%d sc1" % (r, r + 3, LANE16, i * 1024))
            a("s_add_u32 s46, s46, 8192")
        a("v_and_b32 v4, 15, v0"); a("v_lshrrev_b32 v4, 2, v4")
        a("v_lshrrev_b32 v5, 5, v0"); a("v_lshlrev_b32 v5, 2, v5"); a("v_add_u32 v4, v4, v5")
        a("v_mul_u32_u24 v4, %d, v4" % WOROW)
        a("v_lshrrev_b32 v5, 4, v0"); a("v_and_b32 v5, 1, v5"); a("v_lshlrev_b32 v5, 5, v5"); a("v_add_u32 v4, v4, v5")
        a("v_and_b32 v5, 3, v0"); a("v_lshlrev_b32 v5, 3, v5"); a("v_add_u32 v4, v4, v5")
        a("s_lshl_b32 s38, s20, 8"); a("v_add_u32 v4, s38, v4")
        a("v_add_u32 v5, %d, v4" % (64 * WOROW))
        a("s_waitcnt vmcnt(8)")
        a("v_max3_f32 v16, v32, v36, v40"); a("v_max_f32 v16, v16, v44")
        for s in range(4): a("v_sub_f32 v%d, v%d, v16" % (32 + 4 * s, 32 + 4 * s))
        for s in range(4): a("v_exp_f32 v%d, v%d" % (32 + 4 * s, 32 + 4 * s))
        a("v_mul_f32 v17, v32, v33"); a("v_fmac_f32 v17, v36, v37"); a("v_fmac_f32 v17, v40, v41"); a("v_fmac_f32 v17, v44, v45")
        a("v_rcp_f32 v17, v17")
        for s in range(4): a("v_mul_f32 v%d, v%d, v17" % (32 + 4 * s, 32 + 4 * s))
        a("s_mov_b32 s40, 0xffff0000")
        a("s_waitcnt vmcnt(0)")
        st()
        for i in range(8):
            for s in range(4):
                r = 64 + 8 * s + i
                a("v_lshlrev_b32 v18, 16, v%d" % r); a("v_and_b32 v19, s40, v%d" % r)
                if s == 0:
                    a("v_mul_f32 v20, v18, v32"); a("v_mul_f32 v21, v19, v32")
                else:
                    a("v_fmac_f32 v20, v18, v%d" % (32 + 4 * s)); a("v_fmac_f32 v21, v19, v%d" % (32 + 4 * s))
            a("v_cvt_pk_bf16_f32 v%d, v20, v21" % (24 + i))
        a("s_add_u32 s39, s36, %d" % BIMG)
        a("v_add_u32 v6, s39, v%d" % LANE16)
        a("ds_write_b128 v6, v[24:27]"); a("ds_write_b128 v6, v[28:31] offset:1024")
        a("v_add_u32 v6, %d, v%d" % (BIMG, LANE16))
        a("s_waitcnt lgkmcnt(0)")
        a("s_barrier")
        for i in range(8): a("ds_read_b128 v[%d:%d], v6 offset:%d" % (32 + 4 * i, 35 + 4 * i, i * 1024))
        seq = [(nt, db, u) for db in range(4) for u in range(2) for nt in range(4)]
        AFR = 64; ACC = 168
        def reads(n):
            nt, db, u = seq[n]
            fr = AFR + 4 * (n % 8)
            base = 4 if db < 2 else 5
            off = ((db % 2) * 32 + 16 * u) * WOROW + nt * 64
            return ["ds_read_b64_tr_b16 v[%d:%d], v%d offset:%d" % (fr, fr + 1, base, off),
                    "ds_read_b64_tr_b16 v[%d:%d], v%d offset:%d" % (fr + 2, fr + 3, base, off + 8 * WOROW)]
        D = 6
        for n in range(D):
            for o in reads(n): a(o)
        for n in range(32):
            nt, db, u = seq[n]
            fr = AFR + 4 * (n % 8)
            rem = min(D - 1, 31 - n)
            a("s_waitcnt lgkmcnt(%d)" % (2 * rem))
            bq = 32 + (db * 2 + u) * 4
            first = (db == 0 and u == 0)
            acc = "v[%d:%d]" % (ACC + 16 * nt, ACC + 16 * nt + 15)
            a("v_mfma_f32_32x32x16_bf16 %s, v[%d:%d], v[%d:%d], %s" % (acc, fr, fr + 3, bq, bq + 3, "0" if first else acc))
            if n + D < 32:
                for o in reads(n + D): a(o)
        st()
        a("s_lshl_b32 s34, s20, 18"); a("s_lshl_b32 s35, s47, 10"); a("s_add_u32 s34, s34, s35"); a("s_add_u32 s34, s34, s55")
        for nt in range(4):
            for u in range(2):
                r = 96 + 4 * ((2 * nt + u) % 4)
                for q in range(4):
                    a("v_cvt_pk_bf16_f32 v%d, v%d, v%d" % (r + q, ACC + 16 * nt + 8 * u + 2 * q, ACC + 16 * nt + 8 * u + 2 * q + 1))
                a("buffer_store_dwordx4 v[%d:%d], v%d, s[24:27], s34 offen sc1" % (r, r + 3, LANE16))
                a("s_add_u32 s34, s34, 0x8000")
        a("s_lshl_b32 s40, s20, 10"); a("s_add_u32 s40, s40, s55"); a("s_add_u32 s40, s40, 0x100000")
        a("v_mov_b32 v1, 1"); a("v_lshlrev_b32 v2, 7, v0")
        a("s_waitcnt vmcnt(0)")
        st()
        a("s_mov_b64 exec, 0xff")
        a("buffer_atomic_add v1, v2, s[24:27], s40 offen sc1")
        a("s_mov_b64 exec, s[50:51]")
        a("s_cmp_lg_u32 s20, 0"); a("s_cbranch_scc1 K2_polled2")
        a("s_and_b32 s40, s47, 31"); a("s_lshl_b32 s40, s40, 7"); a("s_add_u32 s40, s40, s55"); a("s_add_u32 s40, s40, 0x100000")
        a("s_mov_b32 s41, 0"); a("v_mov_b32 v2, 0")
        a("s_mov_b64 exec, 1")
        a.label("K2_poll2")
        a("buffer_load_dword v3, v2, s[24:27], s40 offen sc1")
        a("s_add_u32 s41, s41, 1")
        a("s_waitcnt vmcnt(0)")
        a("v_readfirstlane_b32 s43, v3")
        a("s_cmp_gt_u32 s41, 0x8000"); a("s_cbranch_scc1 K2_pdone2")
        a("s_cmp_lt_u32 s43, 32"); a("s_cbranch_scc1 K2_poll2")
        a.label("K2_pdone2")
        a("s_mov_b64 exec, s[50:51]")
        a.label("K2_polled2")
        a("s_barrier")
        st()
        a("s_lshl_b32 s30, s47, 15"); a("s_lshl_b32 s31, s20, 13"); a("s_add_u32 s30, s30, s31"); a("s_add_u32 s30, s30, s55")
        for i in range(8):
            if i == 4: a("s_add_u32 s30, s30, 4096")
            a("buffer_load_dwordx4 v[%d:%d], v%d, s[24:27], s30 offen offset:%d sc1" % (32 + 4 * i, 35 + 4 * i, LANE16, (i % 4) * 1024))
        a("s_mov_b32 s40, 0xffff0000")
        a("v_add_u32 v3, s36, v%d" % LANE16)
        AC = 64
        for i in range(8):
            a("s_waitcnt vmcnt(%d)" % (7 - i))
            for q in range(4):
                r = 32 + 4 * i + q
                if i == 0:
                    a("v_lshlrev_b32 v%d, 16, v%d" % (AC + 2 * q, r)); a("v_and_b32 v%d, s40, v%d" % (AC + 1 + 2 * q, r))
                else:
                    a("v_lshlrev_b32 v4, 16, v%d" % r); a("v_and_b32 v5, s40, v%d" % r)
                    a("v_add_f32 v%d, v%d, v4" % (AC + 2 * q, AC + 2 * q)); a("v_add_f32 v%d, v%d, v5" % (AC + 1 + 2 * q, AC + 1 + 2 * q))
        st()
        a("ds_write_b128 v3, v[%d:%d]" % (AC, AC + 3)); a("ds_write_b128 v3, v[%d:%d] offset:1024" % (AC + 4, AC + 7))
        a("s_waitcnt lgkmcnt(0)"); a("s_barrier")
        a("s_cmp_lg_u32 s20, 0"); a("s_cbranch_scc1 K2_fin")
        for w in range(1, 4):
            a("ds_read_b128 v[%d:%d], v%d offset:%d" % (72 + 8 * w, 75 + 8 * w, LANE16, w * 2048))
            a("ds_read_b128 v[%d:%d], v%d offset:%d" % (76 + 8 * w, 79 + 8 * w, LANE16, w * 2048 + 1024))
        a("v_and_b32 v3, 31, v0"); a("v_lshlrev_b32 v3, 10, v3")
        a("v_lshrrev_b32 v4, 5, v0"); a("v_lshlrev_b32 v4, 4, v4"); a("v_add_u32 v3, v3, v4")
        a("s_lshl_b32 s32, s22, 15"); a("s_lshl_b32 s33, s47, 5"); a("s_add_u32 s32, s32, s33")
        a("s_waitcnt lgkmcnt(0)")
        for w in range(1, 4):
            for q in range(8): a("v_add_f32 v%d, v%d, v%d" % (AC + q, AC + q, 72 + 8 * w + q))
        for q in range(4): a("v_cvt_pk_bf16_f32 v%d, v%d, v%d" % (20 + q, AC + 2 * q, AC + 1 + 2 * q))
        a("v_permlane32_swap_b32 v20, v22"); a("v_permlane32_swap_b32 v21, v23")
        a("buffer_store_dwordx4 v[20:23], v3, s[60:63], s32 offen")
        a.label("K2_fin")
        st()
        st.flush(2, 20, 8, "K2_end2")
        a.label("K2_end")
        a("s_endpgm")
        self.emit_rare()
        return a

if __name__ == "__main__":
    out = sys.argv[1] if len(sys.argv) > 1 else "v5.s"
    for x in sys.argv:
        if x.startswith("--pf="): PF_TILES = [int(t) for t in x.split("=")[1].split(",") if t]
        if x.startswith("--delay="): PF_DELAY = int(x.split("=")[1])
    if "--nopfwo" in sys.argv: PF_WO = False
    sq = "--stampq" in sys.argv; sm = "--stampm" in sys.argv
    k1 = k_q(stamps=sq); k2 = Main("nt", stamps=sm, trickle=("--notrickle" not in sys.argv), pretouch=("--nopretouch" not in sys.argv)).build()
    if "--stamps" in sys.argv:
        add_stamps(k1, 0, "K1_end"); add_stamps(k2, 1, "K2_end")
    ks = [(MAIN, k1, 256, 512, 163840, 128, 128, 100),
          ("attn_kernel", k2, 256, 256, LDS_MAIN, NV + 32, NV, 100)]
    build_file(ks, out)
```

```python
import sys, struct, math
from asmlib import *

MAIN = "standalone__gqa_block_cached__near_ridge_kernel"
WS_Q = 0x0
WS_G = 0x400000
GS = 0x28000
WS_B = 0x1400000
BS = 0x110000
def f32bits(x): return struct.unpack("<I", struct.pack("<f", x))[0]
CSCALE = f32bits((128 ** -0.5) * math.log2(math.e))
THRESH = f32bits(2.0 ** 20)

def srd(a, dst, lo, hi, nbytes):
    a("s_mov_b32 s%d, s%d" % (dst, lo)); a("s_mov_b32 s%d, s%d" % (dst + 1, hi))
    a("s_mov_b32 s%d, 0x%x" % (dst + 2, nbytes)); a("s_mov_b32 s%d, 0x20000" % (dst + 3))
def vr(b, n=1): return "v%d" % b if n == 1 else "v[%d:%d]" % (b, b + n - 1)
def ar(b, n=1): return "a%d" % b if n == 1 else "a[%d:%d]" % (b, b + n - 1)

def kv_base(a, idreg, dst, tmp):
    a("s_and_b32 s21, s%d, 7" % idreg); a("s_lshr_b32 s22, s%d, 3" % idreg); a("s_lshr_b32 s23, s22, 2"); a("s_and_b32 s24, s22, 3")
    a("s_lshl_b32 s%d, s23, 3" % dst); a("s_add_u32 s%d, s%d, s21" % (dst, dst)); a("s_lshl_b32 s%d, s%d, 19" % (dst, dst))
    a("s_lshl_b32 s%d, s24, 17" % tmp); a("s_add_u32 s%d, s%d, s%d" % (dst, dst, tmp))

PF_DELAY = 2
PF_DEPTH = None
PF_TILES = [1, 3, 5, 7]
PF_WO = True
PF_SEQ = 0
Q_TOUCH = False
ROT = True
KQ2_PF = [(0, 1)]
def k_q(stamps=False):
    a = Asm(); st = Stamper(a, stamps, 0, 16)
    st()
    a("s_cmp_ge_u32 s2, 256"); a("s_cbranch_scc1 K1_end")
    a("s_load_dwordx2 s[4:5], s[0:1], 0")
    a("s_load_dwordx2 s[6:7], s[0:1], 24")
    a("s_load_dwordx2 s[8:9], s[0:1], 56")
    a("s_load_dwordx4 s[52:55], s[0:1], 8")
    a("s_load_dwordx2 s[46:47], s[0:1], 32")
    a("v_lshrrev_b32 v1, 6, v0")
    a("v_and_b32 v0, 63, v0")
    a("v_readfirstlane_b32 s20, v1")
    a("s_bitcmp1_b32 s2, 3"); a("s_cbranch_scc1 K1_pf")
    a("s_and_b32 s21, s2, 7"); a("s_lshl_b32 s21, s21, 2"); a("s_lshr_b32 s22, s2, 4"); a("s_and_b32 s23, s22, 3")
    a("s_add_u32 s21, s21, s23")
    a("s_lshr_b32 s22, s22, 2")
    a("s_add_u32 s43, s22, s23"); a("s_and_b32 s43, s43, 3")
    a("v_lshrrev_b32 v2, 4, v0"); a("v_and_b32 v4, 15, v0"); a("v_lshlrev_b32 v3, 2, v2"); a("v_xor_b32 v3, v3, v4")
    a("v_lshlrev_b32 v3, 4, v3"); a("v_lshlrev_b32 v5, 13, v2"); a("v_add_u32 v20, v5, v3")
    a("s_lshl_b32 s37, s20, 3"); a("s_and_b32 s37, s37, 15")
    a("v_add_u32 v3, s37, v2"); a("v_xor_b32 v5, v3, v4"); a("v_lshlrev_b32 v5, 4, v5"); a("v_lshlrev_b32 v6, 10, v2"); a("v_add_u32 v21, v5, v6")
    a("v_add_u32 v3, 4, v3"); a("v_xor_b32 v5, v3, v4"); a("v_lshlrev_b32 v5, 4, v5"); a("v_add_u32 v22, v5, v6")
    a("s_waitcnt lgkmcnt(0)")
    srd(a, 12, 4, 5, 8 * 32 * 512 * 2)
    srd(a, 16, 6, 7, 512 * 4096 * 2)
    srd(a, 24, 8, 9, 0x10000000)
    st()
    if Q_TOUCH:
        a("s_cmp_ge_u32 s20, 6"); a("s_cbranch_scc1 K1_td")
        a("s_cmp_ge_u32 s20, 4"); a("s_cbranch_scc1 K1_tx")
        a("v_lshlrev_b32 v30, 13, v0")
        a("s_lshl_b32 s30, s22, 20"); a("s_lshr_b32 s31, s20, 1"); a("s_lshl_b32 s31, s31, 19"); a("s_add_u32 s30, s30, s31")
        a("s_and_b32 s31, s20, 1"); a("s_lshl_b32 s31, s31, 7"); a("s_add_u32 s30, s30, s31"); a("s_lshl_b32 s31, s21, 8"); a("s_add_u32 s30, s30, s31")
        a("buffer_load_dword v31, v30, s[16:19], s30 offen")
        a("s_branch K1_td")
        a.label("K1_tx")
        a("v_lshlrev_b32 v30, 7, v0")
        a("s_lshl_b32 s30, s22, 16"); a("s_lshl_b32 s31, s23, 14"); a("s_add_u32 s30, s30, s31"); a("s_sub_u32 s31, s20, 4"); a("s_lshl_b32 s31, s31, 13"); a("s_add_u32 s30, s30, s31")
        a("buffer_load_dword v31, v30, s[12:15], s30 offen")
        a.label("K1_td")
        a("s_waitcnt vmcnt(0)")
        a("s_barrier")
    a("s_lshl_b32 s33, s22, 16"); a("s_lshl_b32 s34, s20, 13"); a("s_add_u32 s33, s33, s34")
    a("s_lshl_b32 s34, s20, 11")
    a("s_lshl_b32 s30, s20, 17"); a("s_lshl_b32 s31, s21, 8"); a("s_add_u32 s30, s30, s31")
    a("s_lshl_b32 s32, s20, 12"); a("s_add_u32 s32, s32, 65536")
    def x_stage(i):
        a("s_add_u32 s39, s43, %d" % i); a("s_and_b32 s39, s39, 3"); a("s_lshl_b32 s39, s39, 8"); a("s_add_u32 s39, s39, s33")
        a("s_add_u32 m0, s34, %d" % (i * 16384))
        a("s_add_u32 s36, s39, 4096")
        a("buffer_load_dwordx4 v21, s[12:15], s39 offen lds")
        a("s_add_u32 m0, s34, %d" % (i * 16384 + 1024))
        a("s_nop 0")
        a("buffer_load_dwordx4 v22, s[12:15], s36 offen lds")
    def wq_stage(i):
        a("s_add_u32 s39, s43, %d" % i); a("s_and_b32 s39, s39, 3"); a("s_lshl_b32 s39, s39, 20"); a("s_add_u32 s39, s39, s30")
        for e in range(4):
            a("s_add_u32 m0, s32, %d" % ((i % 3) * 32768 + e * 1024))
            a("s_add_u32 s36, s39, %d" % (e * 32768))
            a("buffer_load_dwordx4 v20, s[16:19], s36 offen lds")
    for i in range(3):
        x_stage(i); wq_stage(i)
    x_stage(3)
    a("s_and_b32 s40, s20, 3"); a("s_lshr_b32 s41, s20, 2")
    a("v_and_b32 v4, 15, v0"); a("v_lshrrev_b32 v4, 2, v4")
    a("v_lshrrev_b32 v5, 5, v0")
    a("v_lshlrev_b32 v6, 3, v5"); a("v_add_u32 v6, v6, v4"); a("v_lshlrev_b32 v6, 8, v6")
    a("v_xor_b32 v7, s40, v4"); a("v_lshlrev_b32 v7, 6, v7"); a("v_add_u32 v6, v6, v7")
    a("v_lshrrev_b32 v7, 4, v0"); a("v_and_b32 v7, 1, v7"); a("v_lshlrev_b32 v7, 5, v7"); a("v_add_u32 v6, v6, v7")
    a("v_and_b32 v7, 3, v0"); a("v_lshlrev_b32 v7, 3, v7"); a("v_add_u32 v6, v6, v7")
    a("v_add_u32 v6, 0x10000, v6")
    a("v_add_u32 v7, 0x10000, v6")
    a("v_and_b32 v8, 31, v0")
    a("v_and_b32 v9, 15, v8"); a("v_xor_b32 v9, v9, v5"); a("v_lshlrev_b32 v9, 4, v9")
    a("v_lshlrev_b32 v8, 8, v8"); a("s_lshl_b32 s42, s41, 13"); a("v_add_u32 v8, s42, v8")
    for e in range(8):
        a("v_xor_b32 v%d, %d, v9" % (10 + e, e * 32)); a("v_add_u32 v%d, v%d, v8" % (10 + e, 10 + e))
    ACC = 32; AF = 48; BF = 80
    def reads(i, e):
        slot = i % 3
        base, off = (6, slot * 32768) if slot < 2 else (7, 0)
        off += e * 4096
        fr = AF + 4 * e; br = BF + 4 * e
        return ["ds_read_b64_tr_b16 v[%d:%d], v%d offset:%d" % (fr, fr + 1, base, off),
                "ds_read_b64_tr_b16 v[%d:%d], v%d offset:%d" % (fr + 2, fr + 3, base, off + 1024),
                "ds_read_b128 v[%d:%d], v%d offset:%d" % (br, br + 3, 10 + e, i * 16384)]
    waits = [14, 8 + 4, 4, 0]
    waits = [14, 12, 4, 0]
    for i in range(4):
        a("s_waitcnt vmcnt(%d)" % waits[i])
        a("s_barrier")
        if i == 0: st()
        for e in range(8):
            for o in reads(i, e): a(o)
        for e in range(8):
            a("s_waitcnt lgkmcnt(%d)" % min(15, 3 * (7 - e)))
            fr = AF + 4 * e; br = BF + 4 * e
            a("v_mfma_f32_32x32x16_bf16 v[%d:%d], v[%d:%d], v[%d:%d], %s" % (ACC, ACC + 15, fr, fr + 3, br, br + 3, "0" if (i == 0 and e == 0) else "v[%d:%d]" % (ACC, ACC + 15)))
        if i == 0:
            a("s_barrier")
            wq_stage(3)
    st()
    a("s_mov_b32 s50, 0x%x" % CSCALE)
    a("s_lshl_b32 s34, s22, 1"); a("s_add_u32 s34, s34, s41"); a("s_lshl_b32 s34, s34, 5"); a("s_add_u32 s34, s34, s21"); a("s_lshl_b32 s34, s34, 13")
    a("s_lshl_b32 s35, s40, 11"); a("s_add_u32 s34, s34, s35")
    if WS_Q: a("s_add_u32 s34, s34, 0x%x" % WS_Q)
    a("v_lshlrev_b32 v2, 4, v0")
    for i in range(16): a("v_mul_f32 v%d, s50, v%d" % (ACC + i, ACC + i))
    for i in range(8): a("v_cvt_pk_bf16_f32 v%d, v%d, v%d" % (24 + i, ACC + 2 * i, ACC + 1 + 2 * i))
    for u in range(2):
        a("v_permlane32_swap_b32 v%d, v%d" % (24 + 4 * u, 26 + 4 * u))
        a("v_permlane32_swap_b32 v%d, v%d" % (25 + 4 * u, 27 + 4 * u))
    a("buffer_store_dwordx4 v[24:27], v2, s[24:27], s34 offen")
    a("buffer_store_dwordx4 v[28:31], v2, s[24:27], s34 offen offset:1024")
    st()
    st.flush(2, 20, 8, "K1_end2")
    a("s_branch K1_end")
    a.label("K1_pf")
    a("s_waitcnt lgkmcnt(0)")
    srd(a, 24, 8, 9, 0x10000000)
    srd(a, 56, 52, 53, 0x2000000); srd(a, 60, 54, 55, 0x2000000)
    a("s_cmp_lg_u32 s20, 0"); a("s_cbranch_scc1 K1_pf2")
    a("v_mov_b32 v4, 0"); a("v_mov_b32 v5, 0")
    a("s_mov_b64 s[44:45], exec"); a("s_mov_b64 exec, 1")
    for d in (8, 0):
        a("s_sub_u32 s30, s2, %d" % d)
        a("s_lshr_b32 s31, s30, 2"); a("s_mul_i32 s31, s31, 0x%x" % GS); a("s_and_b32 s32, s30, 3"); a("s_lshl_b32 s32, s32, 7")
        a("s_add_u32 s31, s31, s32"); a("s_add_u32 s31, s31, 0x%x" % (WS_G + 0x22000))
        a("buffer_store_dword v5, v4, s[24:27], s31 offen")
        a("s_lshr_b32 s31, s30, 5"); a("s_mul_i32 s31, s31, 0x%x" % BS); a("s_and_b32 s32, s30, 31"); a("s_lshl_b32 s32, s32, 7")
        a("s_add_u32 s31, s31, s32"); a("s_add_u32 s31, s31, 0x%x" % (WS_B + 0x100000))
        a("buffer_store_dword v5, v4, s[24:27], s31 offen")
    a("s_mov_b64 exec, s[44:45]")
    a.label("K1_pf2")
    if PF_TILES:
        a("s_lshr_b32 s30, s20, 2"); a("s_lshl_b32 s30, s30, 3"); a("s_sub_u32 s30, s2, s30")
        kv_base(a, 30, 40, 41)
        if ROT: a("s_lshr_b32 s43, s30, 3"); a("s_and_b32 s43, s43, 15")
        else: a("s_mov_b32 s43, 0")
        a("s_bitcmp1_b32 s20, 1")
        a("s_cselect_b32 s56, s60, s56"); a("s_cselect_b32 s57, s61, s57")
        a("v_lshlrev_b32 v30, 7, v0")
        for d in range(PF_DELAY):
            a("v_mov_b32 v31, %d" % (d * 128))
            a("buffer_load_dword v31, v31, s[56:59], s40 offen")
            a("s_waitcnt vmcnt(0)")
        if PF_SEQ:
            a("s_bitcmp1_b32 s20, 0"); a("s_cbranch_scc1 K1_pfd")
            for i, t in enumerate(PF_TILES):
                a("s_add_u32 s41, s40, 0x%x" % (t * 8192))
                a("buffer_load_dword v%d, v30, s[56:59], s41 offen" % (32 + i))
                a("s_waitcnt vmcnt(%d)" % (PF_SEQ - 1))
            a.label("K1_pfd")
        else:
            ta = PF_TILES[0::2]; tb = PF_TILES[1::2]
            n = max(len(ta), len(tb))
            for i in range(n):
                x0 = ta[i] if i < len(ta) else None
                x1 = tb[i] if i < len(tb) else None
                a("s_bitcmp1_b32 s20, 0")
                a("s_mov_b32 s42, %d" % (x0 if x0 is not None else 0))
                a("s_cselect_b32 s41, %d, s42" % (x1 if x1 is not None else (x0 if x0 is not None else 0)))
                a("s_add_u32 s41, s41, s43"); a("s_and_b32 s41, s41, 15"); a("s_lshl_b32 s41, s41, 13")
                a("s_add_u32 s41, s41, s40")
                a("buffer_load_dword v%d, v30, s[56:59], s41 offen" % (32 + i))
        if PF_WO:
            srd(a, 48, 46, 47, 4096 * 512 * 2)
            a("s_and_b32 s30, s2, 7"); a("s_lshl_b32 s30, s30, 19"); a("s_lshr_b32 s31, s2, 4"); a("s_lshl_b32 s31, s31, 15"); a("s_add_u32 s30, s30, s31")
            a("s_lshl_b32 s31, s20, 12"); a("s_add_u32 s30, s30, s31")
            a("s_mov_b64 exec, 0xffffffff") if False else None
            a("v_cmp_gt_u32 vcc, 32, v0"); a("s_and_saveexec_b64 s[44:45], vcc")
            a("buffer_load_dword v40, v30, s[48:51], s30 offen")
            a("s_mov_b64 exec, s[44:45]")
        a("s_waitcnt vmcnt(0)")
    if stamps:
        a("s_memrealtime s[66:67]"); a("s_memrealtime s[68:69]"); a("s_memrealtime s[70:71]"); a("s_memrealtime s[72:73]")
        st.n = 5
        st.flush(2, 20, 8, "K1_end3")
    a.label("K1_end")
    a("s_endpgm")
    return a


def k_q2(stamps=False):
    a = Asm(); st = Stamper(a, stamps, 0, 16)
    st()
    a("s_cmp_ge_u32 s2, 256"); a("s_cbranch_scc1 K1_end")
    a("s_load_dwordx2 s[16:17], s[0:1], 24")
    a("s_load_dwordx2 s[12:13], s[0:1], 0")
    a("s_load_dwordx2 s[24:25], s[0:1], 56")
    a("s_load_dwordx4 s[52:55], s[0:1], 8")
    a("v_lshrrev_b32 v1, 6, v0")
    a("v_and_b32 v0, 63, v0")
    a("v_readfirstlane_b32 s20, v1")
    a("s_mov_b32 s18, 0x400000"); a("s_mov_b32 s19, 0x20000"); a("s_mov_b32 s14, 0x40000"); a("s_mov_b32 s15, 0x20000"); a("s_mov_b32 s26, 0x10000000"); a("s_mov_b32 s27, 0x20000")
    a("s_and_b32 s21, s2, 7"); a("s_lshl_b32 s21, s21, 2"); a("s_lshr_b32 s22, s2, 3"); a("s_and_b32 s23, s22, 3"); a("s_add_u32 s21, s21, s23")
    a("s_lshr_b32 s22, s2, 5")
    a("s_add_u32 s43, s22, s23"); a("s_and_b32 s43, s43, 3")
    a("v_lshrrev_b32 v2, 4, v0"); a("v_and_b32 v4, 15, v0"); a("v_lshlrev_b32 v3, 2, v2"); a("v_xor_b32 v3, v3, v4")
    a("v_lshlrev_b32 v3, 4, v3"); a("v_lshlrev_b32 v5, 13, v2"); a("v_add_u32 v20, v5, v3")
    a("s_lshl_b32 s37, s20, 3"); a("s_and_b32 s37, s37, 15")
    a("v_add_u32 v3, s37, v2"); a("v_xor_b32 v5, v3, v4"); a("v_lshlrev_b32 v5, 4, v5"); a("v_lshlrev_b32 v6, 10, v2"); a("v_add_u32 v21, v5, v6")
    a("v_add_u32 v3, 4, v3"); a("v_xor_b32 v5, v3, v4"); a("v_lshlrev_b32 v5, 4, v5"); a("v_add_u32 v22, v5, v6")
    a("s_lshl_b32 s33, s22, 15"); a("s_lshl_b32 s34, s20, 13"); a("s_add_u32 s33, s33, s34")
    a("s_lshl_b32 s34, s20, 11")
    a("s_lshl_b32 s30, s20, 18"); a("s_lshl_b32 s31, s21, 8"); a("s_add_u32 s30, s30, s31")
    a("s_lshl_b32 s32, s20, 13"); a("s_add_u32 s32, s32, 8192")
    a("s_waitcnt lgkmcnt(0)")
    st()
    for i in range(4):
        a("s_add_u32 s38, s43, %d" % i); a("s_and_b32 s38, s38, 3")
        a("s_lshl_b32 s39, s38, 20"); a("s_add_u32 s39, s39, s30")
        for e in range(8):
            a("s_add_u32 m0, s32, %d" % (i * 40960 + e * 1024))
            a("s_add_u32 s36, s39, %d" % (e * 32768))
            a("buffer_load_dwordx4 v20, s[16:19], s36 offen lds")
        a("s_lshl_b32 s39, s38, 8"); a("s_add_u32 s39, s39, s33")
        a("s_add_u32 m0, s34, %d" % (i * 40960))
        a("s_add_u32 s36, s39, 4096")
        a("buffer_load_dwordx4 v21, s[12:15], s39 offen lds")
        a("s_add_u32 m0, s34, %d" % (i * 40960 + 1024))
        a("s_nop 0")
        a("buffer_load_dwordx4 v22, s[12:15], s36 offen lds")
    if KQ2_PF:
        a("s_lshr_b32 s40, s2, 5"); a("s_lshl_b32 s40, s40, 3"); a("s_and_b32 s41, s2, 7"); a("s_add_u32 s40, s40, s41"); a("s_lshl_b32 s40, s40, 19")
        a("s_lshr_b32 s41, s2, 3"); a("s_and_b32 s41, s41, 3"); a("s_lshl_b32 s41, s41, 17"); a("s_add_u32 s40, s40, s41")
        if ROT: a("s_lshr_b32 s42, s2, 3"); a("s_and_b32 s42, s42, 15")
        else: a("s_mov_b32 s42, 0")
        a("v_lshlrev_b32 v30, 7, v0")
        a("s_bitcmp1_b32 s20, 0")
        a("s_cselect_b32 s56, s54, s52"); a("s_cselect_b32 s57, s55, s53"); a("s_mov_b32 s58, 0x2000000"); a("s_mov_b32 s59, 0x20000")
        for rnd, tiles in enumerate(KQ2_PF):
            a("s_lshr_b32 s41, s20, 1")
            a("s_cmp_eq_u32 s41, 0"); a("s_cselect_b32 s41, %d, %d" % (tiles[0], tiles[1]))
            a("s_add_u32 s41, s41, s42"); a("s_and_b32 s41, s41, 15"); a("s_lshl_b32 s41, s41, 13"); a("s_add_u32 s41, s41, s40")
            a("buffer_load_dword v%d, v30, s[56:59], s41 offen" % (28 + rnd))
    a("s_cmp_lg_u32 s20, 0"); a("s_cbranch_scc1 K1_nz")
    a("v_mov_b32 v4, 0"); a("v_mov_b32 v5, 0")
    a("s_mov_b64 s[44:45], exec"); a("s_mov_b64 exec, 1")
    a("s_lshr_b32 s31, s2, 2"); a("s_mul_i32 s31, s31, 0x%x" % GS); a("s_and_b32 s35, s2, 3"); a("s_lshl_b32 s35, s35, 7")
    a("s_add_u32 s31, s31, s35"); a("s_add_u32 s31, s31, 0x%x" % (WS_G + 0x22000))
    a("buffer_store_dword v5, v4, s[24:27], s31 offen")
    a("s_lshr_b32 s31, s2, 5"); a("s_mul_i32 s31, s31, 0x%x" % BS); a("s_and_b32 s35, s2, 31"); a("s_lshl_b32 s35, s35, 7")
    a("s_add_u32 s31, s31, s35"); a("s_add_u32 s31, s31, 0x%x" % (WS_B + 0x100000))
    a("buffer_store_dword v5, v4, s[24:27], s31 offen")
    a("s_mov_b64 exec, s[44:45]")
    a.label("K1_nz")
    a("v_and_b32 v4, 15, v0"); a("v_lshrrev_b32 v4, 2, v4"); a("v_lshrrev_b32 v5, 5, v0")
    a("v_lshlrev_b32 v6, 3, v5"); a("v_add_u32 v6, v6, v4"); a("v_lshlrev_b32 v6, 8, v6")
    a("v_xor_b32 v7, s20, v4"); a("v_lshlrev_b32 v7, 6, v7"); a("v_add_u32 v6, v6, v7")
    a("v_lshrrev_b32 v7, 4, v0"); a("v_and_b32 v7, 1, v7"); a("v_lshlrev_b32 v7, 5, v7"); a("v_add_u32 v6, v6, v7")
    a("v_and_b32 v7, 3, v0"); a("v_lshlrev_b32 v7, 3, v7"); a("v_add_u32 v6, v6, v7")
    a("v_add_u32 v6, 8192, v6")
    a("v_and_b32 v8, 31, v0"); a("v_and_b32 v9, 15, v8"); a("v_xor_b32 v9, v9, v5"); a("v_lshlrev_b32 v9, 4, v9"); a("v_lshlrev_b32 v8, 8, v8")
    for e in range(8):
        a("v_xor_b32 v%d, %d, v9" % (10 + e, e * 32)); a("v_add_u32 v%d, v%d, v8" % (10 + e, 10 + e))
    ACC = 32; AF = [48, 112]; BF = [80, 144]
    def reads(i):
        out = []
        for e in range(8):
            fr = AF[i % 2] + 4 * e; br = BF[i % 2] + 4 * e
            out += ["ds_read_b64_tr_b16 v[%d:%d], v6 offset:%d" % (fr, fr + 1, e * 4096),
                    "ds_read_b64_tr_b16 v[%d:%d], v6 offset:%d" % (fr + 2, fr + 3, e * 4096 + 1024),
                    "ds_read_b128 v[%d:%d], v%d" % (br, br + 3, 10 + e)]
        return out
    def advance():
        a("v_add_u32 v6, 40960, v6")
        for e in range(8): a("v_add_u32 v%d, 40960, v%d" % (10 + e, 10 + e))
    for i in range(4):
        a("s_waitcnt vmcnt(%d)" % (10 * (3 - i)))
        a("s_barrier")
        if i == 0: st()
        for o in reads(i): a(o)
        if i < 3: advance()
        for e in range(8):
            a("s_waitcnt lgkmcnt(%d)" % min(15, 3 * (7 - e)))
            fr = AF[i % 2] + 4 * e; br = BF[i % 2] + 4 * e
            a("v_mfma_f32_32x32x16_bf16 v[%d:%d], v[%d:%d], v[%d:%d], %s" % (ACC, ACC + 15, fr, fr + 3, br, br + 3, "0" if (i == 0 and e == 0) else "v[%d:%d]" % (ACC, ACC + 15)))
    st()
    a("s_mov_b32 s50, 0x%x" % CSCALE)
    a("s_lshl_b32 s34, s22, 5"); a("s_add_u32 s34, s34, s21"); a("s_lshl_b32 s34, s34, 13")
    a("s_lshl_b32 s35, s20, 11"); a("s_add_u32 s34, s34, s35")
    a("v_lshlrev_b32 v2, 4, v0")
    for i in range(16): a("v_mul_f32 v%d, s50, v%d" % (ACC + i, ACC + i))
    for i in range(8): a("v_cvt_pk_bf16_f32 v%d, v%d, v%d" % (24 + i, ACC + 2 * i, ACC + 1 + 2 * i))
    for u in range(2):
        a("v_permlane32_swap_b32 v%d, v%d" % (24 + 4 * u, 26 + 4 * u))
        a("v_permlane32_swap_b32 v%d, v%d" % (25 + 4 * u, 27 + 4 * u))
    a("buffer_store_dwordx4 v[24:27], v2, s[24:27], s34 offen")
    a("buffer_store_dwordx4 v[28:31], v2, s[24:27], s34 offen offset:1024")
    st()
    st.flush(2, 20, 24, "K1_end2")
    a.label("K1_end")
    a("s_endpgm")
    return a

VK0, VK1, VV = 8, 9, 10
LANE16 = 11
KRA = 12
VRA = 20
MREF, LSUM, TS, TS2 = 24, 25, 26, 27
T0, T1 = 28, 29
NEGM = 32
SB = [48, 64]
E = 80
P = 96
KF = 104
VF = 136
O = 168
NV = 232
WOROW = 1088
BIMG = 128 * WOROW
KRING = 81920
VRING = KRING + 32768
LDS_MAIN = VRING + 32768

class Main:
    def __init__(self, pol="nt", stamps=False, trickle=True, pretouch=True):
        self.a = Asm(); self.pol = pol
        self.st = Stamper(self.a, stamps, 0, 16, sbase=68)
        self.rare_id = 0; self.rare = []
        self.trickle = trickle; self.pretouch = pretouch

    def issue(self, k_slot, v_slot, kmode, vmode):
        pol = self.pol; out = []
        if kmode:
            out.append("s_lshl_b32 s34, s64, 13")
            out.append("s_add_u32 m0, s36, %d" % (KRING + k_slot * 8192))
            out.append("s_add_u32 s34, s34, s66")
            if kmode == 'dyn':
                out.append("s_cmp_ge_u32 s42, %d" % self.dyn_limit)
                out.append("s_cselect_b32 s34, 0x4000000, s34")
            out.append("buffer_load_dwordx4 v%d, s[12:15], s34 offen %s lds" % (VK0, pol))
            out.append("buffer_load_dwordx4 v%d, s[12:15], s34 offen offset:1024 %s lds" % (VK1, pol))
            out.append("s_add_u32 s64, s64, 1")
            out.append("s_and_b32 s64, s64, 15")
        if vmode:
            out.append("s_lshl_b32 s35, s65, 13")
            out.append("s_add_u32 m0, s36, %d" % (VRING + v_slot * 8192))
            out.append("s_add_u32 s35, s35, s66")
            out.append("buffer_load_dwordx4 v%d, s[16:19], s35 offen %s lds" % (VV, pol))
            out.append("buffer_load_dwordx4 v%d, s[16:19], s35 offen offset:1024 %s lds" % (VV, pol))
            out.append("s_add_u32 s65, s65, 1")
            out.append("s_and_b32 s65, s65, 15")
        return out
    def wo_rows(self, n):
        out = []
        for _ in range(n):
            out.append("s_mov_b32 m0, s49")
            out.append("s_add_u32 s49, s49, %d" % (4 * WOROW))
            out.append("buffer_load_dwordx4 v%d, s[56:59], s48 offen lds" % LANE16)
            out.append("s_add_u32 s48, s48, 4096")
        return out

    def kreads(self, slot):
        return ["ds_read_b128 %s, v%d offset:%d" % (vr(KF + 4 * j, 4), KRA + j, slot * 8192) for j in range(8)]
    def vread(self, slot, u, db):
        r = VF + (u * 4 + db) * 4
        return ["ds_read_b64_tr_b16 %s, v%d offset:%d" % (vr(r, 2), VRA + db, slot * 8192 + u * 4096),
                "ds_read_b64_tr_b16 %s, v%d offset:%d" % (vr(r + 2, 2), VRA + db, slot * 8192 + u * 4096 + 2048)]
    def qk(self, j, snxt):
        return "v_mfma_f32_32x32x16_bf16 %s, %s, %s, %s" % (vr(snxt, 16), vr(KF + 4 * j, 4), ar(4 * j, 4), vr(NEGM, 16) if j == 0 else vr(snxt, 16))
    def pv(self, u, db):
        return "v_mfma_f32_32x32x16_bf16 %s, %s, %s, %s" % (vr(O + 16 * db, 16), vr(VF + (u * 4 + db) * 4, 4), vr(P + 4 * u, 4), vr(O + 16 * db, 16))
    def softmax_ops(self, scur):
        g = []
        for j in range(9):
            ops = []
            if j < 8:
                ops.append("v_exp_f32 v%d, v%d" % (E + 2 * j, scur + 2 * j))
                ops.append("v_exp_f32 v%d, v%d" % (E + 2 * j + 1, scur + 2 * j + 1))
            if j >= 1:
                i = j - 1
                if i == 1:
                    ops.append("v_add_f32 v%d, v%d, v%d" % (TS, E + 0, E + 2)); ops.append("v_add_f32 v%d, v%d, v%d" % (TS2, E + 1, E + 3))
                elif i > 1:
                    ops.append("v_add_f32 v%d, v%d, v%d" % (TS, TS, E + 2 * i)); ops.append("v_add_f32 v%d, v%d, v%d" % (TS2, TS2, E + 2 * i + 1))
                ops.append("v_cvt_pk_bf16_f32 v%d, v%d, v%d" % (P + i, E + 2 * i, E + 2 * i + 1))
            g.append(ops)
        return g
    def phaseA(self, scur, snxt, do_qk):
        a = self.a
        g = self.softmax_ops(scur)
        for j in range(8):
            if do_qk:
                if j == 0: a("s_waitcnt lgkmcnt(10)")
                a(self.qk(j, snxt))
            for o in g[j]: a(o)
        for o in g[8]: a(o)
        a("v_add_f32 v%d, v%d, v%d" % (TS, TS, TS2))
        a("v_cmp_lt_f32 vcc, s44, v%d" % TS)
        rid = self.rare_id; self.rare_id += 1
        a("s_cbranch_vccnz RARE%d" % rid)
        a.label("RET%d" % rid)
        a("v_add_f32 v%d, v%d, v%d" % (LSUM, LSUM, TS))
        self.rare.append((rid, scur, snxt if do_qk else None))
    def phaseB(self, wait_vm, issue_ops, kslot, vslot, barrier=True):
        a = self.a
        if barrier:
            a("s_waitcnt vmcnt(%d) lgkmcnt(0)" % wait_vm)
            a("s_barrier")
        else:
            a("s_waitcnt lgkmcnt(0)")
        kr = self.kreads(kslot) if kslot is not None else []
        iss = list(issue_ops)
        per = (len(iss) + 7) // 8
        for u in range(2):
            for db in range(4):
                a(self.pv(u, db))
                for _ in range(2):
                    if kr: a(kr.pop(0))
                if vslot is not None:
                    for o in self.vread(vslot, u, db): a(o)
                for _ in range(per):
                    if iss: a(iss.pop(0))
        for o in iss: a(o)
    def emit_rare(self):
        a = self.a
        for rid, scur, snxt in self.rare:
            a.label("RARE%d" % rid)
            a("s_nop 15")
            a("v_max3_f32 v%d, v%d, v%d, v%d" % (T0, scur, scur + 1, scur + 2))
            for i in range(3, 15, 2): a("v_max3_f32 v%d, v%d, v%d, v%d" % (T0, T0, scur + i, scur + i + 1))
            a("v_max_f32 v%d, v%d, v%d" % (T0, T0, scur + 15))
            a("v_mov_b32 v%d, v%d" % (T1, T0))
            a("s_nop 1")
            a("v_permlane32_swap_b32 v%d, v%d" % (T0, T1))
            a("v_max_f32 v%d, v%d, v%d" % (T0, T0, T1))
            a("v_max_f32 v%d, 0, v%d" % (T0, T0))
            a("v_add_f32 v%d, v%d, v%d" % (MREF, MREF, T0))
            a("v_sub_f32 v%d, 0, v%d" % (T1, T0))
            a("v_exp_f32 v%d, v%d" % (T1, T1))
            for i in range(16): a("v_sub_f32 v%d, v%d, v%d" % (NEGM + i, NEGM + i, T0))
            for i in range(16): a("v_sub_f32 v%d, v%d, v%d" % (scur + i, scur + i, T0))
            if snxt is not None:
                for i in range(16): a("v_sub_f32 v%d, v%d, v%d" % (snxt + i, snxt + i, T0))
            a("v_mul_f32 v%d, v%d, v%d" % (LSUM, LSUM, T1))
            for i in range(64): a("v_mul_f32 v%d, v%d, v%d" % (O + i, O + i, T1))
            for grp in self.softmax_ops(scur):
                for o in grp: a(o)
                a("s_nop 0")
            a("v_add_f32 v%d, v%d, v%d" % (TS, TS, TS2))
            a("s_nop 1")
            a("s_branch RET%d" % rid)

    def build(self):
        a = self.a; st = self.st
        st()
        a("s_cmp_ge_u32 s2, 256"); a("s_cbranch_scc1 K2_end")
        a("s_load_dwordx4 s[4:7], s[0:1], 8")
        a("s_load_dwordx2 s[8:9], s[0:1], 56")
        a("s_load_dwordx2 s[10:11], s[0:1], 32")
        a("s_load_dwordx2 s[52:53], s[0:1], 40")
        a("v_lshrrev_b32 v1, 6, v0")
        a("v_and_b32 v0, 63, v0")
        a("v_readfirstlane_b32 s20, v1")
        a("s_and_b32 s21, s2, 7")
        a("s_lshr_b32 s22, s2, 3"); a("s_and_b32 s23, s22, 3")
        a("s_lshr_b32 s22, s22, 2")
        a("s_lshl_b32 s28, s22, 3"); a("s_add_u32 s28, s28, s21")
        a("s_lshl_b32 s29, s28, 19"); a("s_lshl_b32 s30, s23, 17"); a("s_add_u32 s29, s29, s30")
        a("v_lshrrev_b32 v2, 4, v0"); a("v_and_b32 v3, 15, v0")
        a("s_lshl_b32 s31, s20, 3"); a("s_and_b32 s31, s31, 15")
        a("v_add_u32 v4, s31, v2")
        a("v_xor_b32 v5, v4, v3"); a("v_lshlrev_b32 v5, 4, v5")
        a("v_lshlrev_b32 v6, 8, v2")
        a("v_add_u32 v%d, v5, v6" % VK0)
        a("v_add_u32 v4, 4, v4")
        a("v_xor_b32 v5, v4, v3"); a("v_lshlrev_b32 v5, 4, v5")
        a("v_add_u32 v%d, v5, v6" % VK1)
        a("v_lshlrev_b32 v5, 2, v2"); a("v_xor_b32 v5, v5, v3"); a("v_lshlrev_b32 v5, 4, v5")
        a("v_add_u32 v%d, v5, v6" % VV)
        a("v_lshlrev_b32 v%d, 4, v0" % LANE16)
        a("s_lshl_b32 s36, s20, 11")
        a("s_waitcnt lgkmcnt(0)")
        srd(a, 12, 4, 5, 0x2000000)
        srd(a, 16, 6, 7, 0x2000000)
        srd(a, 24, 8, 9, 0x10000000)
        srd(a, 56, 10, 11, 4096 * 512 * 2)
        srd(a, 60, 52, 53, 8 * 32 * 512 * 2)
        a("s_mul_i32 s54, s28, 0x%x" % GS); a("s_add_u32 s54, s54, 0x%x" % WS_G)
        a("s_mul_i32 s55, s22, 0x%x" % BS); a("s_add_u32 s55, s55, 0x%x" % WS_B)
        a("s_add_u32 s66, s29, s36")
        if ROT: a("s_lshr_b32 s64, s2, 3"); a("s_and_b32 s64, s64, 15")
        else: a("s_mov_b32 s64, 0")
        a("s_mov_b32 s65, s64")
        st()
        a("s_lshl_b32 s33, s28, 2"); a("s_add_u32 s33, s33, s20"); a("s_lshl_b32 s33, s33, 13")
        if WS_Q: a("s_add_u32 s33, s33, 0x%x" % WS_Q)
        for j in range(8):
            if j == 4: a("s_add_u32 s33, s33, 4096")
            a("buffer_load_dwordx4 %s, v%d, s[24:27], s33 offen offset:%d" % (ar(4 * j, 4), LANE16, (j % 4) * 1024))
        a("s_lshl_b32 s47, s21, 2"); a("s_add_u32 s47, s47, s23")
        a("s_lshl_b32 s48, s47, 7"); a("s_add_u32 s48, s48, s20"); a("s_lshl_b32 s48, s48, 10")
        a("s_mul_i32 s49, s20, %d" % WOROW)
        tr = [2, 1, 1, 1] if self.trickle else [0, 0, 0, 0]
        for o in self.issue(0, None, 'real', None): a(o)
        for t in range(3):
            for o in self.issue(t + 1, t, 'real', 'real'): a(o)
            if t >= 1:
                for o in self.wo_rows(tr[t]): a(o)
        a("v_and_b32 v1, 31, v0"); a("v_lshrrev_b32 v2, 5, v0")
        a("v_xor_b32 v3, v1, v2"); a("v_and_b32 v3, 15, v3"); a("v_lshlrev_b32 v3, 4, v3")
        a("v_lshlrev_b32 v6, 8, v1"); a("v_add_u32 v6, 0x%x, v6" % KRING)
        for j in range(8):
            a("v_xor_b32 v%d, %d, v3" % (KRA + j, j * 32))
            a("v_add_u32 v%d, v%d, v6" % (KRA + j, KRA + j))
        a("v_and_b32 v3, 15, v0"); a("v_lshrrev_b32 v3, 2, v3")
        a("v_lshlrev_b32 v6, 2, v2"); a("v_add_u32 v6, v6, v3"); a("v_lshlrev_b32 v6, 8, v6")
        a("v_lshrrev_b32 v4, 4, v0"); a("v_and_b32 v4, 1, v4"); a("v_lshlrev_b32 v4, 5, v4"); a("v_add_u32 v6, v6, v4")
        a("v_and_b32 v4, 3, v0"); a("v_lshlrev_b32 v4, 3, v4"); a("v_add_u32 v6, v6, v4")
        a("v_add_u32 v6, 0x%x, v6" % VRING)
        for db in range(4):
            a("v_xor_b32 v4, %d, v3" % db); a("v_lshlrev_b32 v4, 6, v4")
            a("v_add_u32 v%d, v6, v4" % (VRA + db))
        for i in range(64): a("v_mov_b32 v%d, 0" % (O + i))
        for i in range(16): a("v_mov_b32 v%d, 0" % (NEGM + i))
        a("v_mov_b32 v%d, 0" % LSUM)
        a("s_mov_b32 s44, 0x%x" % THRESH)
        a("s_mov_b32 s42, 0")
        a("s_waitcnt vmcnt(%d)" % (12 + tr[1] + tr[2]))
        a("s_barrier")
        st()
        for o in self.kreads(0): a(o)
        a("s_waitcnt lgkmcnt(0)")
        for j in range(8): a(self.qk(j, SB[0]))
        a("s_waitcnt vmcnt(%d)" % (8 + tr[1] + tr[2]))
        a("s_barrier")
        for o in self.issue(0, 3, 'real', 'real') + self.wo_rows(tr[3]): a(o)
        for o in self.kreads(1): a(o)
        for u in range(2):
            for db in range(4):
                for o in self.vread(0, u, db): a(o)
        if self.pretouch:
            a("v_mul_u32_u24 v1, 0x%x, v0" % 0x8000)
            a("s_mov_b64 s[50:51], exec"); a("s_mov_b64 exec, 0x1f")
            a("buffer_load_dword v2, v1, s[24:27], s54 offen")
            a("v_lshlrev_b32 v1, 18, v0")
            a("buffer_load_dword v3, v1, s[24:27], s55 offen")
            a("s_mov_b64 exec, 1")
            a("s_lshl_b32 s38, s22, 15")
            a("v_mov_b32 v1, 0")
            a("buffer_load_dword v4, v1, s[60:63], s38 offen")
            a("s_mov_b64 exec, s[50:51]")
        s0 = SB[0]
        a("v_max3_f32 v%d, v%d, v%d, v%d" % (T0, s0, s0 + 1, s0 + 2))
        for i in range(3, 15, 2): a("v_max3_f32 v%d, v%d, v%d, v%d" % (T0, T0, s0 + i, s0 + i + 1))
        a("v_max_f32 v%d, v%d, v%d" % (T0, T0, s0 + 15))
        a("v_mov_b32 v%d, v%d" % (T1, T0))
        a("v_permlane32_swap_b32 v%d, v%d" % (T0, T1))
        a("v_max_f32 v%d, v%d, v%d" % (MREF, T0, T1))
        for i in range(16): a("v_sub_f32 v%d, 0, v%d" % (NEGM + i, MREF))
        for i in range(16): a("v_sub_f32 v%d, v%d, v%d" % (s0 + i, s0 + i, MREF))
        self.dyn_limit = 2
        st()
        a.label("K2_loop")
        for k in range(4):
            self.phaseA(SB[k % 2], SB[(k + 1) % 2], True)
            iss = self.issue((k + 1) % 4, k, 'dyn' if k == 3 else 'real', 'real') + self.wo_rows(tr[k])
            self.phaseB(8 + sum(tr) - tr[k], iss, (k + 2) % 4, (k + 1) % 4)
        a("s_add_u32 s42, s42, 1"); a("s_cmp_lt_u32 s42, 3")
        a("s_cbranch_scc1 K2_loop")
        st()
        self.phaseA(SB[0], SB[1], True)
        self.phaseB(8 + tr[1] + tr[2] + tr[3], [], 2, 1)
        self.phaseA(SB[1], SB[0], True)
        self.phaseB(4 + tr[2] + tr[3], [], 3, 2)
        self.phaseA(SB[0], SB[1], True)
        self.phaseB(0, [], None, None, barrier=False)
        self.phaseA(SB[1], None, False)
        a("s_waitcnt vmcnt(0)")
        a("s_barrier")
        st()
        for u in range(2):
            for db in range(4):
                for o in self.vread(3, u, db): a(o)
        nrow_done = 18 if self.trickle else 0
        a("v_mov_b32 v%d, v%d" % (T0, LSUM))
        a("s_lshl_b32 s46, s20, 15"); a("s_lshl_b32 s37, s23, 13"); a("s_add_u32 s46, s46, s37"); a("s_add_u32 s46, s46, s54")
        a("v_permlane32_swap_b32 v%d, v%d" % (LSUM, T0))
        a("s_lshl_b32 s37, s20, 11"); a("s_lshl_b32 s38, s23, 9"); a("s_add_u32 s37, s37, s38"); a("s_add_u32 s37, s37, s54"); a("s_add_u32 s37, s37, 0x20000")
        a("v_add_f32 v%d, v%d, v%d" % (LSUM, LSUM, T0))
        a("v_mov_b32 v%d, 0" % TS); a("v_mov_b32 v%d, 0" % TS2)
        n = 16
        for u in range(2):
            for db in range(4):
                n -= 2
                a("s_waitcnt lgkmcnt(%d)" % n)
                a(self.pv(u, db))
        st()
        a("v_cmp_gt_u32 vcc, 32, v0")
        a("s_and_saveexec_b64 s[50:51], vcc")
        a("buffer_store_dwordx4 v[%d:%d], v%d, s[24:27], s37 offen sc1" % (MREF, TS2, LANE16))
        a("s_mov_b64 exec, s[50:51]")
        for i in range(8):
            for q in range(4):
                a("v_cvt_pk_bf16_f32 v%d, v%d, v%d" % (KF + 4 * i + q, O + 8 * i + 2 * q, O + 8 * i + 2 * q + 1))
            if i == 4: a("s_add_u32 s46, s46, 4096")
            a("buffer_store_dwordx4 %s, v%d, s[24:27], s46 offen offset:%d sc1" % (vr(KF + 4 * i, 4), LANE16, (i % 4) * 1024))
        a("s_barrier")
        a("s_lshl_b32 s40, s20, 7"); a("s_add_u32 s40, s40, s54"); a("s_add_u32 s40, s40, 0x22000")
        a("v_mov_b32 v1, 1"); a("v_mov_b32 v2, 0")
        a("s_waitcnt vmcnt(0)")
        st()
        a("s_mov_b64 exec, 1")
        a("buffer_atomic_add v1, v2, s[24:27], s40 offen sc1")
        a("s_mov_b64 exec, s[50:51]")
        for o in self.wo_rows(32 - nrow_done): a(o)
        a("s_cmp_lg_u32 s20, 0"); a("s_cbranch_scc1 K2_polled")
        a("s_lshl_b32 s40, s23, 7"); a("s_add_u32 s40, s40, s54"); a("s_add_u32 s40, s40, 0x22000")
        a("s_mov_b32 s41, 0")
        a("s_mov_b64 exec, 1")
        a.label("K2_poll")
        a("buffer_load_dword v3, v2, s[24:27], s40 offen sc1")
        a("s_add_u32 s41, s41, 1")
        a("s_waitcnt vmcnt(0)")
        a("v_readfirstlane_b32 s43, v3")
        a("s_cmp_gt_u32 s41, 0x8000"); a("s_cbranch_scc1 K2_pdone")
        a("s_cmp_lt_u32 s43, 4"); a("s_cbranch_scc1 K2_poll")
        a.label("K2_pdone")
        a("s_mov_b64 exec, s[50:51]")
        a.label("K2_polled")
        a("s_barrier")
        st()
        a("v_and_b32 v3, 31, v0"); a("v_lshlrev_b32 v3, 4, v3")
        a("s_lshl_b32 s37, s23, 11"); a("s_add_u32 s37, s37, s54"); a("s_add_u32 s37, s37, 0x20000")
        a("s_lshl_b32 s46, s23, 15"); a("s_add_u32 s46, s46, s54"); a("s_add_u32 s46, s46, s36")
        for s in range(4):
            a("buffer_load_dwordx4 v[%d:%d], v3, s[24:27], s37 offen offset:%d sc1" % (32 + 4 * s, 35 + 4 * s, s * 512))
        for s in range(4):
            for i in range(2):
                r = 64 + 8 * s + 4 * i
                a("buffer_load_dwordx4 v[%d:%d], v%d, s[24:27], s46 offen offset:%d sc1" % (r, r + 3, LANE16, i * 1024))
            a("s_add_u32 s46, s46, 8192")
        a("v_and_b32 v4, 15, v0"); a("v_lshrrev_b32 v4, 2, v4")
        a("v_lshrrev_b32 v5, 5, v0"); a("v_lshlrev_b32 v5, 2, v5"); a("v_add_u32 v4, v4, v5")
        a("v_mul_u32_u24 v4, %d, v4" % WOROW)
        a("v_lshrrev_b32 v5, 4, v0"); a("v_and_b32 v5, 1, v5"); a("v_lshlrev_b32 v5, 5, v5"); a("v_add_u32 v4, v4, v5")
        a("v_and_b32 v5, 3, v0"); a("v_lshlrev_b32 v5, 3, v5"); a("v_add_u32 v4, v4, v5")
        a("s_lshl_b32 s38, s20, 8"); a("v_add_u32 v4, s38, v4")
        a("v_add_u32 v5, %d, v4" % (64 * WOROW))
        a("s_waitcnt vmcnt(8)")
        a("v_max3_f32 v16, v32, v36, v40"); a("v_max_f32 v16, v16, v44")
        for s in range(4): a("v_sub_f32 v%d, v%d, v16" % (32 + 4 * s, 32 + 4 * s))
        for s in range(4): a("v_exp_f32 v%d, v%d" % (32 + 4 * s, 32 + 4 * s))
        a("v_mul_f32 v17, v32, v33"); a("v_fmac_f32 v17, v36, v37"); a("v_fmac_f32 v17, v40, v41"); a("v_fmac_f32 v17, v44, v45")
        a("v_rcp_f32 v17, v17")
        for s in range(4): a("v_mul_f32 v%d, v%d, v17" % (32 + 4 * s, 32 + 4 * s))
        a("s_mov_b32 s40, 0xffff0000")
        a("s_waitcnt vmcnt(0)")
        st()
        for i in range(8):
            for s in range(4):
                r = 64 + 8 * s + i
                a("v_lshlrev_b32 v18, 16, v%d" % r); a("v_and_b32 v19, s40, v%d" % r)
                if s == 0:
                    a("v_mul_f32 v20, v18, v32"); a("v_mul_f32 v21, v19, v32")
                else:
                    a("v_fmac_f32 v20, v18, v%d" % (32 + 4 * s)); a("v_fmac_f32 v21, v19, v%d" % (32 + 4 * s))
            a("v_cvt_pk_bf16_f32 v%d, v20, v21" % (24 + i))
        a("s_add_u32 s39, s36, %d" % BIMG)
        a("v_add_u32 v6, s39, v%d" % LANE16)
        a("ds_write_b128 v6, v[24:27]"); a("ds_write_b128 v6, v[28:31] offset:1024")
        a("v_add_u32 v6, %d, v%d" % (BIMG, LANE16))
        a("s_waitcnt lgkmcnt(0)")
        a("s_barrier")
        for i in range(8): a("ds_read_b128 v[%d:%d], v6 offset:%d" % (32 + 4 * i, 35 + 4 * i, i * 1024))
        seq = [(nt, db, u) for db in range(4) for u in range(2) for nt in range(4)]
        AFR = 64; ACC = 168
        def reads(n):
            nt, db, u = seq[n]
            fr = AFR + 4 * (n % 8)
            base = 4 if db < 2 else 5
            off = ((db % 2) * 32 + 16 * u) * WOROW + nt * 64
            return ["ds_read_b64_tr_b16 v[%d:%d], v%d offset:%d" % (fr, fr + 1, base, off),
                    "ds_read_b64_tr_b16 v[%d:%d], v%d offset:%d" % (fr + 2, fr + 3, base, off + 8 * WOROW)]
        D = 6
        for n in range(D):
            for o in reads(n): a(o)
        for n in range(32):
            nt, db, u = seq[n]
            fr = AFR + 4 * (n % 8)
            rem = min(D - 1, 31 - n)
            a("s_waitcnt lgkmcnt(%d)" % (2 * rem))
            bq = 32 + (db * 2 + u) * 4
            first = (db == 0 and u == 0)
            acc = "v[%d:%d]" % (ACC + 16 * nt, ACC + 16 * nt + 15)
            a("v_mfma_f32_32x32x16_bf16 %s, v[%d:%d], v[%d:%d], %s" % (acc, fr, fr + 3, bq, bq + 3, "0" if first else acc))
            if n + D < 32:
                for o in reads(n + D): a(o)
        st()
        a("s_lshl_b32 s34, s20, 18"); a("s_lshl_b32 s35, s47, 10"); a("s_add_u32 s34, s34, s35"); a("s_add_u32 s34, s34, s55")
        for nt in range(4):
            for u in range(2):
                r = 96 + 4 * ((2 * nt + u) % 4)
                for q in range(4):
                    a("v_cvt_pk_bf16_f32 v%d, v%d, v%d" % (r + q, ACC + 16 * nt + 8 * u + 2 * q, ACC + 16 * nt + 8 * u + 2 * q + 1))
                a("buffer_store_dwordx4 v[%d:%d], v%d, s[24:27], s34 offen sc1" % (r, r + 3, LANE16))
                a("s_add_u32 s34, s34, 0x8000")
        a("s_lshl_b32 s40, s20, 10"); a("s_add_u32 s40, s40, s55"); a("s_add_u32 s40, s40, 0x100000")
        a("v_mov_b32 v1, 1"); a("v_lshlrev_b32 v2, 7, v0")
        a("s_waitcnt vmcnt(0)")
        st()
        a("s_mov_b64 exec, 0xff")
        a("buffer_atomic_add v1, v2, s[24:27], s40 offen sc1")
        a("s_mov_b64 exec, s[50:51]")
        a("s_cmp_lg_u32 s20, 0"); a("s_cbranch_scc1 K2_polled2")
        a("s_and_b32 s40, s47, 31"); a("s_lshl_b32 s40, s40, 7"); a("s_add_u32 s40, s40, s55"); a("s_add_u32 s40, s40, 0x100000")
        a("s_mov_b32 s41, 0"); a("v_mov_b32 v2, 0")
        a("s_mov_b64 exec, 1")
        a.label("K2_poll2")
        a("buffer_load_dword v3, v2, s[24:27], s40 offen sc1")
        a("s_add_u32 s41, s41, 1")
        a("s_waitcnt vmcnt(0)")
        a("v_readfirstlane_b32 s43, v3")
        a("s_cmp_gt_u32 s41, 0x8000"); a("s_cbranch_scc1 K2_pdone2")
        a("s_cmp_lt_u32 s43, 32"); a("s_cbranch_scc1 K2_poll2")
        a.label("K2_pdone2")
        a("s_mov_b64 exec, s[50:51]")
        a.label("K2_polled2")
        a("s_barrier")
        st()
        a("s_lshl_b32 s30, s47, 15"); a("s_lshl_b32 s31, s20, 13"); a("s_add_u32 s30, s30, s31"); a("s_add_u32 s30, s30, s55")
        for i in range(8):
            if i == 4: a("s_add_u32 s30, s30, 4096")
            a("buffer_load_dwordx4 v[%d:%d], v%d, s[24:27], s30 offen offset:%d sc1" % (32 + 4 * i, 35 + 4 * i, LANE16, (i % 4) * 1024))
        a("s_mov_b32 s40, 0xffff0000")
        a("v_add_u32 v3, s36, v%d" % LANE16)
        AC = 64
        for i in range(8):
            a("s_waitcnt vmcnt(%d)" % (7 - i))
            for q in range(4):
                r = 32 + 4 * i + q
                if i == 0:
                    a("v_lshlrev_b32 v%d, 16, v%d" % (AC + 2 * q, r)); a("v_and_b32 v%d, s40, v%d" % (AC + 1 + 2 * q, r))
                else:
                    a("v_lshlrev_b32 v4, 16, v%d" % r); a("v_and_b32 v5, s40, v%d" % r)
                    a("v_add_f32 v%d, v%d, v4" % (AC + 2 * q, AC + 2 * q)); a("v_add_f32 v%d, v%d, v5" % (AC + 1 + 2 * q, AC + 1 + 2 * q))
        st()
        a("ds_write_b128 v3, v[%d:%d]" % (AC, AC + 3)); a("ds_write_b128 v3, v[%d:%d] offset:1024" % (AC + 4, AC + 7))
        a("s_waitcnt lgkmcnt(0)"); a("s_barrier")
        a("s_cmp_lg_u32 s20, 0"); a("s_cbranch_scc1 K2_fin")
        for w in range(1, 4):
            a("ds_read_b128 v[%d:%d], v%d offset:%d" % (72 + 8 * w, 75 + 8 * w, LANE16, w * 2048))
            a("ds_read_b128 v[%d:%d], v%d offset:%d" % (76 + 8 * w, 79 + 8 * w, LANE16, w * 2048 + 1024))
        a("v_and_b32 v3, 31, v0"); a("v_lshlrev_b32 v3, 10, v3")
        a("v_lshrrev_b32 v4, 5, v0"); a("v_lshlrev_b32 v4, 4, v4"); a("v_add_u32 v3, v3, v4")
        a("s_lshl_b32 s32, s22, 15"); a("s_lshl_b32 s33, s47, 5"); a("s_add_u32 s32, s32, s33")
        a("s_waitcnt lgkmcnt(0)")
        for w in range(1, 4):
            for q in range(8): a("v_add_f32 v%d, v%d, v%d" % (AC + q, AC + q, 72 + 8 * w + q))
        for q in range(4): a("v_cvt_pk_bf16_f32 v%d, v%d, v%d" % (20 + q, AC + 2 * q, AC + 1 + 2 * q))
        a("v_permlane32_swap_b32 v20, v22"); a("v_permlane32_swap_b32 v21, v23")
        a("buffer_store_dwordx4 v[20:23], v3, s[60:63], s32 offen")
        a.label("K2_fin")
        st()
        st.flush(2, 20, 8, "K2_end2")
        a.label("K2_end")
        a("s_endpgm")
        self.emit_rare()
        return a

if __name__ == "__main__":
    out = sys.argv[1] if len(sys.argv) > 1 else "v10.s"
    for x in sys.argv:
        if x.startswith("--pf="): PF_TILES = [int(t) for t in x.split("=")[1].split(",") if t]
        if x.startswith("--delay="): PF_DELAY = int(x.split("=")[1])
    if "--nopfwo" in sys.argv: PF_WO = False
    if "--norot" in sys.argv: ROT = False
    for x in sys.argv:
        if x.startswith("--kq2pf="):
            t = [int(v) for v in x.split("=")[1].split(",") if v]
            KQ2_PF = [tuple(t[i:i+2]) for i in range(0, len(t), 2)]
    if "--qtouch" in sys.argv: Q_TOUCH = True
    for x in sys.argv:
        if x.startswith("--pfseq="): PF_SEQ = int(x.split("=")[1])
    sq = "--stampq" in sys.argv; sm = "--stampm" in sys.argv
    k1 = k_q(stamps=sq); k2 = Main("nt", stamps=sm, trickle=("--notrickle" not in sys.argv), pretouch=("--nopretouch" not in sys.argv)).build()
    if "--stamps" in sys.argv:
        add_stamps(k1, 0, "K1_end"); add_stamps(k2, 1, "K2_end")
    if "--kq2" in sys.argv:
        k1 = k_q2(stamps=sq)
        if "--stamps" in sys.argv: add_stamps(k1, 0, "K1_end")
    ks = [(MAIN, k1, 256, 256 if "--kq2" in sys.argv else 512, 163840, 176 if "--kq2" in sys.argv else 128, 176 if "--kq2" in sys.argv else 128, 100),
          ("attn_kernel", k2, 256, 256, LDS_MAIN, NV + 32, NV, 100)]
    build_file(ks, out)
```

```python
import sys, struct, math
from asmlib import *

MAIN = "standalone__gqa_block_cached__near_ridge_kernel"
WS_Q = 0x0
WS_G = 0x400000
GS = 0x2C000
G_F1 = 0x22000
G_F0 = 0x22080
G_QX = 0x23000
WS_B = 0x1400000
BS = 0x110000
def f32bits(x): return struct.unpack("<I", struct.pack("<f", x))[0]
CSCALE = f32bits((128 ** -0.5) * math.log2(math.e))
THRESH = f32bits(2.0 ** 20)

def srd(a, dst, lo, hi, nbytes):
    a("s_mov_b32 s%d, s%d" % (dst, lo)); a("s_mov_b32 s%d, s%d" % (dst + 1, hi))
    a("s_mov_b32 s%d, 0x%x" % (dst + 2, nbytes)); a("s_mov_b32 s%d, 0x20000" % (dst + 3))
def vr(b, n=1): return "v%d" % b if n == 1 else "v[%d:%d]" % (b, b + n - 1)
def ar(b, n=1): return "a%d" % b if n == 1 else "a[%d:%d]" % (b, b + n - 1)

def kv_base(a, idreg, dst, tmp):
    a("s_and_b32 s21, s%d, 7" % idreg); a("s_lshr_b32 s22, s%d, 3" % idreg); a("s_lshr_b32 s23, s22, 2"); a("s_and_b32 s24, s22, 3")
    a("s_lshl_b32 s%d, s23, 3" % dst); a("s_add_u32 s%d, s%d, s21" % (dst, dst)); a("s_lshl_b32 s%d, s%d, 19" % (dst, dst))
    a("s_lshl_b32 s%d, s24, 17" % tmp); a("s_add_u32 s%d, s%d, s%d" % (dst, dst, tmp))

PF_DELAY = 2
PF_DEPTH = None
PF_TILES = [1, 3, 5, 7]
PF_WO = True
PF_SEQ = 0
Q_TOUCH = False
ROT = True
TLBWARM = 0
KQ2_PF = [(0, 1)]
def k_q(stamps=False):
    a = Asm(); st = Stamper(a, stamps, 0, 16)
    st()
    a("s_cmp_ge_u32 s2, 256"); a("s_cbranch_scc1 K1_end")
    a("s_load_dwordx2 s[4:5], s[0:1], 0")
    a("s_load_dwordx2 s[6:7], s[0:1], 24")
    a("s_load_dwordx2 s[8:9], s[0:1], 56")
    a("s_load_dwordx4 s[52:55], s[0:1], 8")
    a("s_load_dwordx2 s[46:47], s[0:1], 32")
    a("v_lshrrev_b32 v1, 6, v0")
    a("v_and_b32 v0, 63, v0")
    a("v_readfirstlane_b32 s20, v1")
    a("s_bitcmp1_b32 s2, 3"); a("s_cbranch_scc1 K1_pf")
    a("s_and_b32 s21, s2, 7"); a("s_lshl_b32 s21, s21, 2"); a("s_lshr_b32 s22, s2, 4"); a("s_and_b32 s23, s22, 3")
    a("s_add_u32 s21, s21, s23")
    a("s_lshr_b32 s22, s22, 2")
    a("s_add_u32 s43, s22, s23"); a("s_and_b32 s43, s43, 3")
    a("v_lshrrev_b32 v2, 4, v0"); a("v_and_b32 v4, 15, v0"); a("v_lshlrev_b32 v3, 2, v2"); a("v_xor_b32 v3, v3, v4")
    a("v_lshlrev_b32 v3, 4, v3"); a("v_lshlrev_b32 v5, 13, v2"); a("v_add_u32 v20, v5, v3")
    a("s_lshl_b32 s37, s20, 3"); a("s_and_b32 s37, s37, 15")
    a("v_add_u32 v3, s37, v2"); a("v_xor_b32 v5, v3, v4"); a("v_lshlrev_b32 v5, 4, v5"); a("v_lshlrev_b32 v6, 10, v2"); a("v_add_u32 v21, v5, v6")
    a("v_add_u32 v3, 4, v3"); a("v_xor_b32 v5, v3, v4"); a("v_lshlrev_b32 v5, 4, v5"); a("v_add_u32 v22, v5, v6")
    a("s_waitcnt lgkmcnt(0)")
    srd(a, 12, 4, 5, 8 * 32 * 512 * 2)
    srd(a, 16, 6, 7, 512 * 4096 * 2)
    srd(a, 24, 8, 9, 0x10000000)
    st()
    if Q_TOUCH:
        a("s_cmp_ge_u32 s20, 6"); a("s_cbranch_scc1 K1_td")
        a("s_cmp_ge_u32 s20, 4"); a("s_cbranch_scc1 K1_tx")
        a("v_lshlrev_b32 v30, 13, v0")
        a("s_lshl_b32 s30, s22, 20"); a("s_lshr_b32 s31, s20, 1"); a("s_lshl_b32 s31, s31, 19"); a("s_add_u32 s30, s30, s31")
        a("s_and_b32 s31, s20, 1"); a("s_lshl_b32 s31, s31, 7"); a("s_add_u32 s30, s30, s31"); a("s_lshl_b32 s31, s21, 8"); a("s_add_u32 s30, s30, s31")
        a("buffer_load_dword v31, v30, s[16:19], s30 offen")
        a("s_branch K1_td")
        a.label("K1_tx")
        a("v_lshlrev_b32 v30, 7, v0")
        a("s_lshl_b32 s30, s22, 16"); a("s_lshl_b32 s31, s23, 14"); a("s_add_u32 s30, s30, s31"); a("s_sub_u32 s31, s20, 4"); a("s_lshl_b32 s31, s31, 13"); a("s_add_u32 s30, s30, s31")
        a("buffer_load_dword v31, v30, s[12:15], s30 offen")
        a.label("K1_td")
        a("s_waitcnt vmcnt(0)")
        a("s_barrier")
    a("s_lshl_b32 s33, s22, 16"); a("s_lshl_b32 s34, s20, 13"); a("s_add_u32 s33, s33, s34")
    a("s_lshl_b32 s34, s20, 11")
    a("s_lshl_b32 s30, s20, 17"); a("s_lshl_b32 s31, s21, 8"); a("s_add_u32 s30, s30, s31")
    a("s_lshl_b32 s32, s20, 12"); a("s_add_u32 s32, s32, 65536")
    def x_stage(i):
        a("s_add_u32 s39, s43, %d" % i); a("s_and_b32 s39, s39, 3"); a("s_lshl_b32 s39, s39, 8"); a("s_add_u32 s39, s39, s33")
        a("s_add_u32 m0, s34, %d" % (i * 16384))
        a("s_add_u32 s36, s39, 4096")
        a("buffer_load_dwordx4 v21, s[12:15], s39 offen lds")
        a("s_add_u32 m0, s34, %d" % (i * 16384 + 1024))
        a("s_nop 0")
        a("buffer_load_dwordx4 v22, s[12:15], s36 offen lds")
    def wq_stage(i):
        a("s_add_u32 s39, s43, %d" % i); a("s_and_b32 s39, s39, 3"); a("s_lshl_b32 s39, s39, 20"); a("s_add_u32 s39, s39, s30")
        for e in range(4):
            a("s_add_u32 m0, s32, %d" % ((i % 3) * 32768 + e * 1024))
            a("s_add_u32 s36, s39, %d" % (e * 32768))
            a("buffer_load_dwordx4 v20, s[16:19], s36 offen lds")
    for i in range(3):
        x_stage(i); wq_stage(i)
    x_stage(3)
    a("s_and_b32 s40, s20, 3"); a("s_lshr_b32 s41, s20, 2")
    a("v_and_b32 v4, 15, v0"); a("v_lshrrev_b32 v4, 2, v4")
    a("v_lshrrev_b32 v5, 5, v0")
    a("v_lshlrev_b32 v6, 3, v5"); a("v_add_u32 v6, v6, v4"); a("v_lshlrev_b32 v6, 8, v6")
    a("v_xor_b32 v7, s40, v4"); a("v_lshlrev_b32 v7, 6, v7"); a("v_add_u32 v6, v6, v7")
    a("v_lshrrev_b32 v7, 4, v0"); a("v_and_b32 v7, 1, v7"); a("v_lshlrev_b32 v7, 5, v7"); a("v_add_u32 v6, v6, v7")
    a("v_and_b32 v7, 3, v0"); a("v_lshlrev_b32 v7, 3, v7"); a("v_add_u32 v6, v6, v7")
    a("v_add_u32 v6, 0x10000, v6")
    a("v_add_u32 v7, 0x10000, v6")
    a("v_and_b32 v8, 31, v0")
    a("v_and_b32 v9, 15, v8"); a("v_xor_b32 v9, v9, v5"); a("v_lshlrev_b32 v9, 4, v9")
    a("v_lshlrev_b32 v8, 8, v8"); a("s_lshl_b32 s42, s41, 13"); a("v_add_u32 v8, s42, v8")
    for e in range(8):
        a("v_xor_b32 v%d, %d, v9" % (10 + e, e * 32)); a("v_add_u32 v%d, v%d, v8" % (10 + e, 10 + e))
    ACC = 32; AF = 48; BF = 80
    def reads(i, e):
        slot = i % 3
        base, off = (6, slot * 32768) if slot < 2 else (7, 0)
        off += e * 4096
        fr = AF + 4 * e; br = BF + 4 * e
        return ["ds_read_b64_tr_b16 v[%d:%d], v%d offset:%d" % (fr, fr + 1, base, off),
                "ds_read_b64_tr_b16 v[%d:%d], v%d offset:%d" % (fr + 2, fr + 3, base, off + 1024),
                "ds_read_b128 v[%d:%d], v%d offset:%d" % (br, br + 3, 10 + e, i * 16384)]
    waits = [14, 8 + 4, 4, 0]
    waits = [14, 12, 4, 0]
    for i in range(4):
        a("s_waitcnt vmcnt(%d)" % waits[i])
        a("s_barrier")
        if i == 0: st()
        for e in range(8):
            for o in reads(i, e): a(o)
        for e in range(8):
            a("s_waitcnt lgkmcnt(%d)" % min(15, 3 * (7 - e)))
            fr = AF + 4 * e; br = BF + 4 * e
            a("v_mfma_f32_32x32x16_bf16 v[%d:%d], v[%d:%d], v[%d:%d], %s" % (ACC, ACC + 15, fr, fr + 3, br, br + 3, "0" if (i == 0 and e == 0) else "v[%d:%d]" % (ACC, ACC + 15)))
        if i == 0:
            a("s_barrier")
            wq_stage(3)
    st()
    a("s_mov_b32 s50, 0x%x" % CSCALE)
    a("s_lshl_b32 s34, s22, 1"); a("s_add_u32 s34, s34, s41"); a("s_lshl_b32 s34, s34, 5"); a("s_add_u32 s34, s34, s21"); a("s_lshl_b32 s34, s34, 13")
    a("s_lshl_b32 s35, s40, 11"); a("s_add_u32 s34, s34, s35")
    if WS_Q: a("s_add_u32 s34, s34, 0x%x" % WS_Q)
    a("v_lshlrev_b32 v2, 4, v0")
    for i in range(16): a("v_mul_f32 v%d, s50, v%d" % (ACC + i, ACC + i))
    for i in range(8): a("v_cvt_pk_bf16_f32 v%d, v%d, v%d" % (24 + i, ACC + 2 * i, ACC + 1 + 2 * i))
    for u in range(2):
        a("v_permlane32_swap_b32 v%d, v%d" % (24 + 4 * u, 26 + 4 * u))
        a("v_permlane32_swap_b32 v%d, v%d" % (25 + 4 * u, 27 + 4 * u))
    a("buffer_store_dwordx4 v[24:27], v2, s[24:27], s34 offen")
    a("buffer_store_dwordx4 v[28:31], v2, s[24:27], s34 offen offset:1024")
    st()
    st.flush(2, 20, 8, "K1_end2")
    a("s_branch K1_end")
    a.label("K1_pf")
    a("s_waitcnt lgkmcnt(0)")
    srd(a, 24, 8, 9, 0x10000000)
    srd(a, 56, 52, 53, 0x2000000); srd(a, 60, 54, 55, 0x2000000)
    a("s_cmp_lg_u32 s20, 0"); a("s_cbranch_scc1 K1_pf2")
    a("v_mov_b32 v4, 0"); a("v_mov_b32 v5, 0")
    a("s_mov_b64 s[44:45], exec"); a("s_mov_b64 exec, 1")
    for d in (8, 0):
        a("s_sub_u32 s30, s2, %d" % d)
        a("s_lshr_b32 s31, s30, 2"); a("s_mul_i32 s31, s31, 0x%x" % GS); a("s_and_b32 s32, s30, 3"); a("s_lshl_b32 s32, s32, 7")
        a("s_add_u32 s31, s31, s32"); a("s_add_u32 s31, s31, 0x%x" % (WS_G + 0x22000))
        a("buffer_store_dword v5, v4, s[24:27], s31 offen")
        a("s_lshr_b32 s31, s30, 5"); a("s_mul_i32 s31, s31, 0x%x" % BS); a("s_and_b32 s32, s30, 31"); a("s_lshl_b32 s32, s32, 7")
        a("s_add_u32 s31, s31, s32"); a("s_add_u32 s31, s31, 0x%x" % (WS_B + 0x100000))
        a("buffer_store_dword v5, v4, s[24:27], s31 offen")
    a("s_mov_b64 exec, s[44:45]")
    a.label("K1_pf2")
    if PF_TILES:
        a("s_lshr_b32 s30, s20, 2"); a("s_lshl_b32 s30, s30, 3"); a("s_sub_u32 s30, s2, s30")
        kv_base(a, 30, 40, 41)
        if ROT: a("s_lshr_b32 s43, s30, 3"); a("s_and_b32 s43, s43, 15")
        else: a("s_mov_b32 s43, 0")
        a("s_bitcmp1_b32 s20, 1")
        a("s_cselect_b32 s56, s60, s56"); a("s_cselect_b32 s57, s61, s57")
        a("v_lshlrev_b32 v30, 7, v0")
        for d in range(PF_DELAY):
            a("v_mov_b32 v31, %d" % (d * 128))
            a("buffer_load_dword v31, v31, s[56:59], s40 offen")
            a("s_waitcnt vmcnt(0)")
        if PF_SEQ:
            a("s_bitcmp1_b32 s20, 0"); a("s_cbranch_scc1 K1_pfd")
            for i, t in enumerate(PF_TILES):
                a("s_add_u32 s41, s40, 0x%x" % (t * 8192))
                a("buffer_load_dword v%d, v30, s[56:59], s41 offen" % (32 + i))
                a("s_waitcnt vmcnt(%d)" % (PF_SEQ - 1))
            a.label("K1_pfd")
        else:
            ta = PF_TILES[0::2]; tb = PF_TILES[1::2]
            n = max(len(ta), len(tb))
            for i in range(n):
                x0 = ta[i] if i < len(ta) else None
                x1 = tb[i] if i < len(tb) else None
                a("s_bitcmp1_b32 s20, 0")
                a("s_mov_b32 s42, %d" % (x0 if x0 is not None else 0))
                a("s_cselect_b32 s41, %d, s42" % (x1 if x1 is not None else (x0 if x0 is not None else 0)))
                a("s_add_u32 s41, s41, s43"); a("s_and_b32 s41, s41, 15"); a("s_lshl_b32 s41, s41, 13")
                a("s_add_u32 s41, s41, s40")
                a("buffer_load_dword v%d, v30, s[56:59], s41 offen" % (32 + i))
        if PF_WO:
            srd(a, 48, 46, 47, 4096 * 512 * 2)
            a("s_and_b32 s30, s2, 7"); a("s_lshl_b32 s30, s30, 19"); a("s_lshr_b32 s31, s2, 4"); a("s_lshl_b32 s31, s31, 15"); a("s_add_u32 s30, s30, s31")
            a("s_lshl_b32 s31, s20, 12"); a("s_add_u32 s30, s30, s31")
            a("s_mov_b64 exec, 0xffffffff") if False else None
            a("v_cmp_gt_u32 vcc, 32, v0"); a("s_and_saveexec_b64 s[44:45], vcc")
            a("buffer_load_dword v40, v30, s[48:51], s30 offen")
            a("s_mov_b64 exec, s[44:45]")
        a("s_waitcnt vmcnt(0)")
    if stamps:
        a("s_memrealtime s[66:67]"); a("s_memrealtime s[68:69]"); a("s_memrealtime s[70:71]"); a("s_memrealtime s[72:73]")
        st.n = 5
        st.flush(2, 20, 8, "K1_end3")
    a.label("K1_end")
    a("s_endpgm")
    return a


def k_q2(stamps=False):
    a = Asm(); st = Stamper(a, stamps, 0, 16)
    st()
    a("s_cmp_ge_u32 s2, 256"); a("s_cbranch_scc1 K1_end")
    a("s_load_dwordx2 s[16:17], s[0:1], 24")
    a("s_load_dwordx2 s[12:13], s[0:1], 0")
    a("s_load_dwordx2 s[24:25], s[0:1], 56")
    a("s_load_dwordx4 s[52:55], s[0:1], 8")
    a("v_lshrrev_b32 v1, 6, v0")
    a("v_and_b32 v0, 63, v0")
    a("v_readfirstlane_b32 s20, v1")
    a("s_mov_b32 s18, 0x400000"); a("s_mov_b32 s19, 0x20000"); a("s_mov_b32 s14, 0x40000"); a("s_mov_b32 s15, 0x20000"); a("s_mov_b32 s26, 0x10000000"); a("s_mov_b32 s27, 0x20000")
    a("s_and_b32 s21, s2, 7"); a("s_lshl_b32 s21, s21, 2"); a("s_lshr_b32 s22, s2, 3"); a("s_and_b32 s23, s22, 3"); a("s_add_u32 s21, s21, s23")
    a("s_lshr_b32 s22, s2, 5")
    a("s_add_u32 s43, s22, s23"); a("s_and_b32 s43, s43, 3")
    a("v_lshrrev_b32 v2, 4, v0"); a("v_and_b32 v4, 15, v0"); a("v_lshlrev_b32 v3, 2, v2"); a("v_xor_b32 v3, v3, v4")
    a("v_lshlrev_b32 v3, 4, v3"); a("v_lshlrev_b32 v5, 13, v2"); a("v_add_u32 v20, v5, v3")
    a("s_lshl_b32 s37, s20, 3"); a("s_and_b32 s37, s37, 15")
    a("v_add_u32 v3, s37, v2"); a("v_xor_b32 v5, v3, v4"); a("v_lshlrev_b32 v5, 4, v5"); a("v_lshlrev_b32 v6, 10, v2"); a("v_add_u32 v21, v5, v6")
    a("v_add_u32 v3, 4, v3"); a("v_xor_b32 v5, v3, v4"); a("v_lshlrev_b32 v5, 4, v5"); a("v_add_u32 v22, v5, v6")
    a("s_lshl_b32 s33, s22, 15"); a("s_lshl_b32 s34, s20, 13"); a("s_add_u32 s33, s33, s34")
    a("s_lshl_b32 s34, s20, 11")
    a("s_lshl_b32 s30, s20, 18"); a("s_lshl_b32 s31, s21, 8"); a("s_add_u32 s30, s30, s31")
    a("s_lshl_b32 s32, s20, 13"); a("s_add_u32 s32, s32, 8192")
    a("s_waitcnt lgkmcnt(0)")
    st()
    if TLBWARM:
        a("s_lshr_b32 s40, s2, 5"); a("s_lshl_b32 s40, s40, 3"); a("s_and_b32 s41, s2, 7"); a("s_add_u32 s40, s40, s41")
        a("s_mul_i32 s46, s40, 0x%x" % GS); a("s_add_u32 s46, s46, 0x%x" % WS_G)
        a("s_lshl_b32 s40, s40, 19"); a("s_lshr_b32 s41, s2, 3"); a("s_and_b32 s41, s41, 3"); a("s_lshl_b32 s41, s41, 17"); a("s_add_u32 s40, s40, s41")
        a("s_lshr_b32 s42, s2, 3"); a("s_and_b32 s42, s42, 15"); a("s_lshl_b32 s42, s42, 13"); a("s_add_u32 s40, s40, s42")
        a("v_lshlrev_b32 v30, 7, v0")
        a("s_mov_b32 s58, 0x2000000"); a("s_mov_b32 s59, 0x20000")
        a("s_mov_b64 s[44:45], exec")
        a("s_cmp_ge_u32 s20, 2"); a("s_cbranch_scc1 K1_tw2")
        a("s_bitcmp1_b32 s20, 0")
        a("s_cselect_b32 s56, s54, s52"); a("s_cselect_b32 s57, s55, s53")
        a("s_mov_b64 exec, 0x%x" % TLBWARM)
        a("buffer_load_dword v31, v30, s[56:59], s40 offen")
        a("s_branch K1_tw3")
        a.label("K1_tw2")
        a("s_cmp_eq_u32 s20, 2"); a("s_cbranch_scc0 K1_tw3")
        a("s_mov_b64 exec, 1")
        a("buffer_load_dword v31, v30, s[24:27], s46 offen")
        a.label("K1_tw3")
        a("s_mov_b64 exec, s[44:45]")
    for i in range(4):
        a("s_add_u32 s38, s43, %d" % i); a("s_and_b32 s38, s38, 3")
        a("s_lshl_b32 s39, s38, 20"); a("s_add_u32 s39, s39, s30")
        for e in range(8):
            a("s_add_u32 m0, s32, %d" % (i * 40960 + e * 1024))
            a("s_add_u32 s36, s39, %d" % (e * 32768))
            a("buffer_load_dwordx4 v20, s[16:19], s36 offen lds")
        a("s_lshl_b32 s39, s38, 8"); a("s_add_u32 s39, s39, s33")
        a("s_add_u32 m0, s34, %d" % (i * 40960))
        a("s_add_u32 s36, s39, 4096")
        a("buffer_load_dwordx4 v21, s[12:15], s39 offen lds")
        a("s_add_u32 m0, s34, %d" % (i * 40960 + 1024))
        a("s_nop 0")
        a("buffer_load_dwordx4 v22, s[12:15], s36 offen lds")
    if KQ2_PF:
        a("s_lshr_b32 s40, s2, 5"); a("s_lshl_b32 s40, s40, 3"); a("s_and_b32 s41, s2, 7"); a("s_add_u32 s40, s40, s41"); a("s_lshl_b32 s40, s40, 19")
        a("s_lshr_b32 s41, s2, 3"); a("s_and_b32 s41, s41, 3"); a("s_lshl_b32 s41, s41, 17"); a("s_add_u32 s40, s40, s41")
        if ROT: a("s_lshr_b32 s42, s2, 3"); a("s_and_b32 s42, s42, 15")
        else: a("s_mov_b32 s42, 0")
        a("v_lshlrev_b32 v30, 7, v0")
        a("s_bitcmp1_b32 s20, 0")
        a("s_cselect_b32 s56, s54, s52"); a("s_cselect_b32 s57, s55, s53"); a("s_mov_b32 s58, 0x2000000"); a("s_mov_b32 s59, 0x20000")
        for rnd, tiles in enumerate(KQ2_PF):
            a("s_lshr_b32 s41, s20, 1")
            a("s_cmp_eq_u32 s41, 0"); a("s_cselect_b32 s41, %d, %d" % (tiles[0], tiles[1]))
            a("s_add_u32 s41, s41, s42"); a("s_and_b32 s41, s41, 15"); a("s_lshl_b32 s41, s41, 13"); a("s_add_u32 s41, s41, s40")
            a("buffer_load_dword v%d, v30, s[56:59], s41 offen" % (28 + rnd))
    a("s_cmp_lg_u32 s20, 0"); a("s_cbranch_scc1 K1_nz")
    a("v_mov_b32 v4, 0"); a("v_mov_b32 v5, 0")
    a("s_mov_b64 s[44:45], exec"); a("s_mov_b64 exec, 1")
    a("s_lshr_b32 s31, s2, 2"); a("s_mul_i32 s31, s31, 0x%x" % GS); a("s_and_b32 s35, s2, 3"); a("s_lshl_b32 s35, s35, 7")
    a("s_add_u32 s31, s31, s35"); a("s_add_u32 s31, s31, 0x%x" % (WS_G + 0x22000))
    a("buffer_store_dword v5, v4, s[24:27], s31 offen")
    a("s_lshr_b32 s31, s2, 5"); a("s_mul_i32 s31, s31, 0x%x" % BS); a("s_and_b32 s35, s2, 31"); a("s_lshl_b32 s35, s35, 7")
    a("s_add_u32 s31, s31, s35"); a("s_add_u32 s31, s31, 0x%x" % (WS_B + 0x100000))
    a("buffer_store_dword v5, v4, s[24:27], s31 offen")
    a("s_mov_b64 exec, s[44:45]")
    a.label("K1_nz")
    a("v_and_b32 v4, 15, v0"); a("v_lshrrev_b32 v4, 2, v4"); a("v_lshrrev_b32 v5, 5, v0")
    a("v_lshlrev_b32 v6, 3, v5"); a("v_add_u32 v6, v6, v4"); a("v_lshlrev_b32 v6, 8, v6")
    a("v_xor_b32 v7, s20, v4"); a("v_lshlrev_b32 v7, 6, v7"); a("v_add_u32 v6, v6, v7")
    a("v_lshrrev_b32 v7, 4, v0"); a("v_and_b32 v7, 1, v7"); a("v_lshlrev_b32 v7, 5, v7"); a("v_add_u32 v6, v6, v7")
    a("v_and_b32 v7, 3, v0"); a("v_lshlrev_b32 v7, 3, v7"); a("v_add_u32 v6, v6, v7")
    a("v_add_u32 v6, 8192, v6")
    a("v_and_b32 v8, 31, v0"); a("v_and_b32 v9, 15, v8"); a("v_xor_b32 v9, v9, v5"); a("v_lshlrev_b32 v9, 4, v9"); a("v_lshlrev_b32 v8, 8, v8")
    for e in range(8):
        a("v_xor_b32 v%d, %d, v9" % (10 + e, e * 32)); a("v_add_u32 v%d, v%d, v8" % (10 + e, 10 + e))
    ACC = 32; AF = [48, 112]; BF = [80, 144]
    def reads(i):
        out = []
        for e in range(8):
            fr = AF[i % 2] + 4 * e; br = BF[i % 2] + 4 * e
            out += ["ds_read_b64_tr_b16 v[%d:%d], v6 offset:%d" % (fr, fr + 1, e * 4096),
                    "ds_read_b64_tr_b16 v[%d:%d], v6 offset:%d" % (fr + 2, fr + 3, e * 4096 + 1024),
                    "ds_read_b128 v[%d:%d], v%d" % (br, br + 3, 10 + e)]
        return out
    def advance():
        a("v_add_u32 v6, 40960, v6")
        for e in range(8): a("v_add_u32 v%d, 40960, v%d" % (10 + e, 10 + e))
    for i in range(4):
        a("s_waitcnt vmcnt(%d)" % (10 * (3 - i)))
        a("s_barrier")
        if i == 0: st()
        for o in reads(i): a(o)
        if i < 3: advance()
        for e in range(8):
            a("s_waitcnt lgkmcnt(%d)" % min(15, 3 * (7 - e)))
            fr = AF[i % 2] + 4 * e; br = BF[i % 2] + 4 * e
            a("v_mfma_f32_32x32x16_bf16 v[%d:%d], v[%d:%d], v[%d:%d], %s" % (ACC, ACC + 15, fr, fr + 3, br, br + 3, "0" if (i == 0 and e == 0) else "v[%d:%d]" % (ACC, ACC + 15)))
    st()
    a("s_mov_b32 s50, 0x%x" % CSCALE)
    a("s_lshl_b32 s34, s22, 5"); a("s_add_u32 s34, s34, s21"); a("s_lshl_b32 s34, s34, 13")
    a("s_lshl_b32 s35, s20, 11"); a("s_add_u32 s34, s34, s35")
    a("v_lshlrev_b32 v2, 4, v0")
    for i in range(16): a("v_mul_f32 v%d, s50, v%d" % (ACC + i, ACC + i))
    for i in range(8): a("v_cvt_pk_bf16_f32 v%d, v%d, v%d" % (24 + i, ACC + 2 * i, ACC + 1 + 2 * i))
    for u in range(2):
        a("v_permlane32_swap_b32 v%d, v%d" % (24 + 4 * u, 26 + 4 * u))
        a("v_permlane32_swap_b32 v%d, v%d" % (25 + 4 * u, 27 + 4 * u))
    a("buffer_store_dwordx4 v[24:27], v2, s[24:27], s34 offen")
    a("buffer_store_dwordx4 v[28:31], v2, s[24:27], s34 offen offset:1024")
    st()
    st.flush(2, 20, 24, "K1_end2")
    a.label("K1_end")
    a("s_endpgm")
    return a

VK0, VK1, VV = 8, 9, 10
LANE16 = 11
KRA = 12
VRA = 20
MREF, LSUM, TS, TS2 = 24, 25, 26, 27
T0, T1 = 28, 29
NEGM = 32
SB = [48, 64]
E = 80
P = 96
KF = 104
VF = 136
O = 168
NV = 232
WOROW = 1088
BIMG = 128 * WOROW
KRING = 81920
VRING = KRING + 32768
OWNP = VRING + 32768
NONL = 163808
SCRL = OWNP + 8192 + 512
LDS_MAIN = 163840

PICK = {0, 2, 4, 5, 7, 9, 10, 14}
class PickStamper(Stamper):
    def __init__(self, *a, pick=None, **k):
        super().__init__(*a, **k); self.pick = pick; self.calls = 0; self.force = False
    def __call__(self):
        c = self.calls; self.calls += 1
        if self.force or c in self.pick: super().__call__()
    def flush(self, *a):
        self.force = True
        super().flush(*a)

class Main:
    def __init__(self, pol="nt", stamps=False, trickle=True, pretouch=True):
        self.a = Asm(); self.pol = pol
        self.st = PickStamper(self.a, stamps, 0, 16, sbase=84, pick=PICK)
        self.rare_id = 0; self.rare = []
        self.trickle = trickle; self.pretouch = pretouch

    def issue(self, k_slot, v_slot, kmode, vmode):
        pol = self.pol; out = []
        if kmode:
            out.append("s_lshl_b32 s34, s64, 13")
            out.append("s_add_u32 m0, s36, %d" % (KRING + k_slot * 8192))
            out.append("s_add_u32 s34, s34, s66")
            if kmode == 'dyn':
                out.append("s_cmp_ge_u32 s42, %d" % self.dyn_limit)
                out.append("s_cselect_b32 s34, 0x4000000, s34")
            out.append("buffer_load_dwordx4 v%d, s[12:15], s34 offen %s lds" % (VK0, pol))
            out.append("buffer_load_dwordx4 v%d, s[12:15], s34 offen offset:1024 %s lds" % (VK1, pol))
            out.append("s_add_u32 s64, s64, 1")
            out.append("s_and_b32 s64, s64, 15")
        if vmode:
            out.append("s_lshl_b32 s35, s65, 13")
            out.append("s_add_u32 m0, s36, %d" % (VRING + v_slot * 8192))
            out.append("s_add_u32 s35, s35, s66")
            out.append("buffer_load_dwordx4 v%d, s[16:19], s35 offen %s lds" % (VV, pol))
            out.append("buffer_load_dwordx4 v%d, s[16:19], s35 offen offset:1024 %s lds" % (VV, pol))
            out.append("s_add_u32 s65, s65, 1")
            out.append("s_and_b32 s65, s65, 15")
        return out
    def wo_rows(self, n):
        out = []
        for _ in range(n):
            out.append("s_mov_b32 m0, s49")
            out.append("s_add_u32 s49, s49, %d" % (4 * WOROW))
            out.append("buffer_load_dwordx4 v%d, s[56:59], s48 offen lds" % LANE16)
            out.append("s_add_u32 s48, s48, 4096")
        return out

    def kreads(self, slot):
        return ["ds_read_b128 %s, v%d offset:%d" % (vr(KF + 4 * j, 4), KRA + j, slot * 8192) for j in range(8)]
    def vread(self, slot, u, db):
        r = VF + (u * 4 + db) * 4
        return ["ds_read_b64_tr_b16 %s, v%d offset:%d" % (vr(r, 2), VRA + db, slot * 8192 + u * 4096),
                "ds_read_b64_tr_b16 %s, v%d offset:%d" % (vr(r + 2, 2), VRA + db, slot * 8192 + u * 4096 + 2048)]
    def qk(self, j, snxt):
        return "v_mfma_f32_32x32x16_bf16 %s, %s, %s, %s" % (vr(snxt, 16), vr(KF + 4 * j, 4), ar(4 * j, 4), vr(NEGM, 16) if j == 0 else vr(snxt, 16))
    def pv(self, u, db):
        return "v_mfma_f32_32x32x16_bf16 %s, %s, %s, %s" % (vr(O + 16 * db, 16), vr(VF + (u * 4 + db) * 4, 4), vr(P + 4 * u, 4), vr(O + 16 * db, 16))
    def softmax_ops(self, scur):
        g = []
        for j in range(9):
            ops = []
            if j < 8:
                ops.append("v_exp_f32 v%d, v%d" % (E + 2 * j, scur + 2 * j))
                ops.append("v_exp_f32 v%d, v%d" % (E + 2 * j + 1, scur + 2 * j + 1))
            if j >= 1:
                i = j - 1
                if i == 1:
                    ops.append("v_add_f32 v%d, v%d, v%d" % (TS, E + 0, E + 2)); ops.append("v_add_f32 v%d, v%d, v%d" % (TS2, E + 1, E + 3))
                elif i > 1:
                    ops.append("v_add_f32 v%d, v%d, v%d" % (TS, TS, E + 2 * i)); ops.append("v_add_f32 v%d, v%d, v%d" % (TS2, TS2, E + 2 * i + 1))
                ops.append("v_cvt_pk_bf16_f32 v%d, v%d, v%d" % (P + i, E + 2 * i, E + 2 * i + 1))
            g.append(ops)
        return g
    def phaseA(self, scur, snxt, do_qk):
        a = self.a
        g = self.softmax_ops(scur)
        for j in range(8):
            if do_qk:
                if j == 0: a("s_waitcnt lgkmcnt(10)")
                a(self.qk(j, snxt))
            for o in g[j]: a(o)
        for o in g[8]: a(o)
        a("v_add_f32 v%d, v%d, v%d" % (TS, TS, TS2))
        a("v_cmp_lt_f32 vcc, s44, v%d" % TS)
        rid = self.rare_id; self.rare_id += 1
        a("s_cbranch_vccnz RARE%d" % rid)
        a.label("RET%d" % rid)
        a("v_add_f32 v%d, v%d, v%d" % (LSUM, LSUM, TS))
        self.rare.append((rid, scur, snxt if do_qk else None))
    def phaseB(self, wait_vm, issue_ops, kslot, vslot, barrier=True):
        a = self.a
        if barrier:
            a("s_waitcnt vmcnt(%d) lgkmcnt(0)" % wait_vm)
            a("s_barrier")
        else:
            a("s_waitcnt lgkmcnt(0)")
        kr = self.kreads(kslot) if kslot is not None else []
        iss = list(issue_ops)
        per = (len(iss) + 7) // 8
        for u in range(2):
            for db in range(4):
                a(self.pv(u, db))
                for _ in range(2):
                    if kr: a(kr.pop(0))
                if vslot is not None:
                    for o in self.vread(vslot, u, db): a(o)
                for _ in range(per):
                    if iss: a(iss.pop(0))
        for o in iss: a(o)
    def poll_counter(self, name, soff, target, depth=4):
        a = self.a
        a("s_mov_b64 exec, 1")
        a("s_mov_b32 s41, 0")
        for k in range(depth):
            a("buffer_load_dword v%d, v2, s[24:27], s%d offen sc1" % (12 + k, soff))
            if k < depth - 1: a("s_sleep 2")
        a.label(name)
        for k in range(depth):
            a("s_waitcnt vmcnt(%d)" % (depth - 1))
            a("v_cmp_gt_u32 vcc, %d, v%d" % (target, 12 + k))
            a("s_cbranch_vccz %s_d" % name)
            a("buffer_load_dword v%d, v2, s[24:27], s%d offen sc1" % (12 + k, soff))
        a("s_add_u32 s41, s41, 1")
        a("s_cmp_lt_u32 s41, 0x2000"); a("s_cbranch_scc1 %s" % name)
        a.label("%s_d" % name)
        a("s_mov_b64 exec, -1")

    def emit_rare(self):
        a = self.a
        for rid, scur, snxt in self.rare:
            a.label("RARE%d" % rid)
            a("s_nop 15")
            a("v_max3_f32 v%d, v%d, v%d, v%d" % (T0, scur, scur + 1, scur + 2))
            for i in range(3, 15, 2): a("v_max3_f32 v%d, v%d, v%d, v%d" % (T0, T0, scur + i, scur + i + 1))
            a("v_max_f32 v%d, v%d, v%d" % (T0, T0, scur + 15))
            a("v_mov_b32 v%d, v%d" % (T1, T0))
            a("s_nop 1")
            a("v_permlane32_swap_b32 v%d, v%d" % (T0, T1))
            a("v_max_f32 v%d, v%d, v%d" % (T0, T0, T1))
            a("v_max_f32 v%d, 0, v%d" % (T0, T0))
            a("v_add_f32 v%d, v%d, v%d" % (MREF, MREF, T0))
            a("v_sub_f32 v%d, 0, v%d" % (T1, T0))
            a("v_exp_f32 v%d, v%d" % (T1, T1))
            for i in range(16): a("v_sub_f32 v%d, v%d, v%d" % (NEGM + i, NEGM + i, T0))
            for i in range(16): a("v_sub_f32 v%d, v%d, v%d" % (scur + i, scur + i, T0))
            if snxt is not None:
                for i in range(16): a("v_sub_f32 v%d, v%d, v%d" % (snxt + i, snxt + i, T0))
            a("v_mul_f32 v%d, v%d, v%d" % (LSUM, LSUM, T1))
            for i in range(64): a("v_mul_f32 v%d, v%d, v%d" % (O + i, O + i, T1))
            for grp in self.softmax_ops(scur):
                for o in grp: a(o)
                a("s_nop 0")
            a("v_add_f32 v%d, v%d, v%d" % (TS, TS, TS2))
            a("s_nop 1")
            a("s_branch RET%d" % rid)

    def poll_flags(self, name, voff, soff, reg=12, depth=4):
        a = self.a
        ld = lambda k: "buffer_load_dwordx2 v[%d:%d], v%d, s[24:27], s%d offen sc1" % (reg + 2 * k, reg + 2 * k + 1, voff, soff)
        a("s_mov_b32 s41, 0")
        for k in range(depth):
            a(ld(k))
            if k < depth - 1: a("s_sleep 2")
        a.label(name)
        for k in range(depth):
            a("s_waitcnt vmcnt(%d)" % (depth - 1))
            a("v_cmp_ne_u64 vcc, s[80:81], v[%d:%d]" % (reg + 2 * k, reg + 2 * k + 1))
            a("s_cbranch_vccz %s_d" % name)
            a(ld(k))
        a("s_add_u32 s41, s41, 1")
        a("s_cmp_lt_u32 s41, 0x2000"); a("s_cbranch_scc1 %s" % name)
        a.label("%s_d" % name)

    def build(self):
        a = self.a; st = self.st
        st()
        a("s_cmp_ge_u32 s2, 256"); a("s_cbranch_scc1 K2_end")
        for reg, off in ((72, 24), (68, 0), (12, 8), (16, 16), (24, 56), (56, 32), (60, 40), (76, 48)):
            a("s_load_dwordx2 s[%d:%d], s[0:1], %d" % (reg, reg + 1, off))
        a("v_lshrrev_b32 v1, 6, v0")
        a("v_and_b32 v0, 63, v0")
        a("v_readfirstlane_b32 s20, v1")
        a("s_and_b32 s21, s2, 7")
        a("s_lshr_b32 s22, s2, 3"); a("s_and_b32 s23, s22, 3")
        a("s_lshr_b32 s22, s22, 2")
        a("s_lshl_b32 s47, s21, 2"); a("s_add_u32 s47, s47, s23")
        a("s_mov_b32 s74, 0x400000"); a("s_mov_b32 s75, 0x20000"); a("s_mov_b32 s70, 0x40000"); a("s_mov_b32 s71, 0x20000")
        a("v_lshrrev_b32 v2, 4, v0"); a("v_and_b32 v4, 15, v0"); a("v_lshlrev_b32 v3, 2, v2"); a("v_xor_b32 v3, v3, v4")
        a("v_lshlrev_b32 v3, 4, v3"); a("v_lshlrev_b32 v5, 13, v2"); a("v_add_u32 v20, v5, v3")
        a("s_lshl_b32 s37, s20, 3"); a("s_and_b32 s37, s37, 15")
        a("v_add_u32 v3, s37, v2"); a("v_xor_b32 v5, v3, v4"); a("v_lshlrev_b32 v5, 4, v5"); a("v_lshlrev_b32 v6, 10, v2"); a("v_add_u32 v21, v5, v6")
        a("v_add_u32 v3, 4, v3"); a("v_xor_b32 v5, v3, v4"); a("v_lshlrev_b32 v5, 4, v5"); a("v_add_u32 v22, v5, v6")
        a("s_add_u32 s43, s22, s23"); a("s_and_b32 s43, s43, 3")
        a("s_lshl_b32 s33, s22, 15"); a("s_lshl_b32 s34, s20, 13"); a("s_add_u32 s33, s33, s34")
        a("s_lshl_b32 s34, s20, 11")
        a("s_lshl_b32 s30, s20, 18"); a("s_lshl_b32 s31, s47, 8"); a("s_add_u32 s30, s30, s31")
        a("s_lshl_b32 s32, s20, 13"); a("s_add_u32 s32, s32, 8192")
        a("s_waitcnt lgkmcnt(0)")
        QS = lambda i: (3 - i) * 40960
        for i in range(4):
            a("s_add_u32 s38, s43, %d" % i); a("s_and_b32 s38, s38, 3")
            a("s_lshl_b32 s39, s38, 20"); a("s_add_u32 s39, s39, s30")
            for e in range(8):
                a("s_add_u32 m0, s32, %d" % (QS(i) + e * 1024))
                a("s_add_u32 s40, s39, %d" % (e * 32768))
                a("buffer_load_dwordx4 v20, s[72:75], s40 offen lds")
            a("s_lshl_b32 s39, s38, 8"); a("s_add_u32 s39, s39, s33")
            a("s_add_u32 m0, s34, %d" % QS(i))
            a("s_add_u32 s40, s39, 4096")
            a("buffer_load_dwordx4 v21, s[68:71], s39 offen lds")
            a("s_add_u32 m0, s34, %d" % (QS(i) + 1024))
            a("s_nop 0")
            a("buffer_load_dwordx4 v22, s[68:71], s40 offen lds")
        for reg, nb in ((12, 0x2000000), (16, 0x2000000), (24, 0x10000000), (56, 4096 * 512 * 2), (60, 8 * 32 * 512 * 2), (76, 256)):
            a("s_mov_b32 s%d, 0x%x" % (reg + 2, nb)); a("s_mov_b32 s%d, 0x20000" % (reg + 3))
        a("s_lshl_b32 s28, s22, 3"); a("s_add_u32 s28, s28, s21")
        a("s_lshl_b32 s29, s28, 19"); a("s_lshl_b32 s30, s23, 17"); a("s_add_u32 s29, s29, s30")
        a("s_mul_i32 s54, s28, 0x%x" % GS); a("s_add_u32 s54, s54, 0x%x" % WS_G)
        a("s_mul_i32 s55, s22, 0x%x" % BS); a("s_add_u32 s55, s55, 0x%x" % WS_B)
        a("s_cmp_lg_u32 s20, 0"); a("s_cbranch_scc1 K2_noat")
        a("s_memrealtime s[82:83]")
        a("v_mov_b32 v30, 0"); a("v_mov_b32 v31, 0"); a("v_mov_b32 v7, 0")
        a("s_lshl_b32 s38, s22, 5")
        a("s_waitcnt lgkmcnt(0)")
        a("s_or_b32 s82, s82, 1")
        a("v_mov_b32 v28, s82"); a("v_mov_b32 v29, s83")
        a("s_mov_b64 exec, 1")
        a("buffer_atomic_cmpswap_x2 v[28:31], v7, s[76:79], s38 offen sc0 sc1")
        a("s_mov_b64 exec, -1")
        a.label("K2_noat")
        a("v_lshrrev_b32 v2, 4, v0"); a("v_and_b32 v3, 15, v0")
        a("s_lshl_b32 s31, s20, 3"); a("s_and_b32 s31, s31, 15")
        a("v_add_u32 v4, s31, v2")
        a("v_xor_b32 v5, v4, v3"); a("v_lshlrev_b32 v5, 4, v5")
        a("v_lshlrev_b32 v6, 8, v2")
        a("v_add_u32 v%d, v5, v6" % VK0)
        a("v_add_u32 v4, 4, v4")
        a("v_xor_b32 v5, v4, v3"); a("v_lshlrev_b32 v5, 4, v5")
        a("v_add_u32 v%d, v5, v6" % VK1)
        a("v_lshlrev_b32 v5, 2, v2"); a("v_xor_b32 v5, v5, v3"); a("v_lshlrev_b32 v5, 4, v5")
        a("v_add_u32 v%d, v5, v6" % VV)
        a("v_lshlrev_b32 v%d, 4, v0" % LANE16)
        a("s_lshl_b32 s36, s20, 11")
        a("s_add_u32 s66, s29, s36")
        if ROT: a("s_lshr_b32 s64, s2, 3"); a("s_and_b32 s64, s64, 15")
        else: a("s_mov_b32 s64, 0")
        a("s_mov_b32 s65, s64")
        a("s_lshl_b32 s48, s47, 7"); a("s_add_u32 s48, s48, s20"); a("s_lshl_b32 s48, s48, 10")
        a("s_mul_i32 s49, s20, %d" % WOROW)
        a("v_and_b32 v4, 15, v0"); a("v_lshrrev_b32 v4, 2, v4"); a("v_lshrrev_b32 v5, 5, v0")
        a("v_lshlrev_b32 v6, 3, v5"); a("v_add_u32 v6, v6, v4"); a("v_lshlrev_b32 v6, 8, v6")
        a("v_xor_b32 v7, s20, v4"); a("v_lshlrev_b32 v7, 6, v7"); a("v_add_u32 v6, v6, v7")
        a("v_lshrrev_b32 v7, 4, v0"); a("v_and_b32 v7, 1, v7"); a("v_lshlrev_b32 v7, 5, v7"); a("v_add_u32 v6, v6, v7")
        a("v_and_b32 v7, 3, v0"); a("v_lshlrev_b32 v7, 3, v7"); a("v_add_u32 v6, v6, v7")
        a("v_add_u32 v6, %d, v6" % (8192 + QS(0)))
        a("v_and_b32 v1, 31, v0"); a("v_and_b32 v7, 15, v1"); a("v_xor_b32 v7, v7, v5"); a("v_lshlrev_b32 v7, 4, v7"); a("v_lshlrev_b32 v1, 8, v1"); a("v_add_u32 v1, %d, v1" % QS(0))
        for e in range(8):
            a("v_xor_b32 v%d, %d, v7" % (12 + e, e * 32)); a("v_add_u32 v%d, v%d, v1" % (12 + e, 12 + e))
        ACC = SB[0]; AF = [KF, O]; BF = [VF, O + 32]
        def qreads(i):
            out = []
            for e in range(8):
                fr = AF[i % 2] + 4 * e; br = BF[i % 2] + 4 * e
                out += ["ds_read_b64_tr_b16 v[%d:%d], v6 offset:%d" % (fr, fr + 1, e * 4096),
                        "ds_read_b64_tr_b16 v[%d:%d], v6 offset:%d" % (fr + 2, fr + 3, e * 4096 + 1024),
                        "ds_read_b128 v[%d:%d], v%d" % (br, br + 3, 12 + e)]
            return out
        tr = [2, 1, 1, 1] if self.trickle else [0, 0, 0, 0]
        for i in range(4):
            if i < 3: a("s_waitcnt vmcnt(%d)" % (10 * (3 - i)))
            else:
                a("s_waitcnt vmcnt(6)")
                a("s_cmp_lg_u32 s20, 0"); a("s_cbranch_scc1 K2_nonl")
                a("v_mov_b32 v1, s82"); a("v_mov_b32 v2, s83")
                a("v_cmp_eq_u32 vcc, 0, v28")
                a("v_cndmask_b32 v28, v28, v1, vcc"); a("v_cndmask_b32 v29, v29, v2, vcc")
                a("v_mov_b32 v1, %d" % NONL)
                a("s_mov_b64 exec, 1")
                a("ds_write_b64 v1, v[28:29]")
                a("s_mov_b64 exec, -1")
                a("s_waitcnt lgkmcnt(0)")
                a.label("K2_nonl")
            a("s_barrier")
            if i == 0: st()
            if i == 2:
                for o in self.issue(0, None, 'real', None) + self.issue(1, 0, 'real', 'real'): a(o)
            for o in qreads(i): a(o)
            if i < 3:
                a("v_subrev_u32 v6, 40960, v6")
                for e in range(8): a("v_subrev_u32 v%d, 40960, v%d" % (12 + e, 12 + e))
            if i == 3:
                a("v_mov_b32 v1, %d" % NONL); a("ds_read_b64 v[2:3], v1")
            for e in range(8):
                a("s_waitcnt lgkmcnt(%d)" % min(15, 3 * (7 - e) + (1 if i == 3 else 0)))
                fr = AF[i % 2] + 4 * e; br = BF[i % 2] + 4 * e
                a("v_mfma_f32_32x32x16_bf16 %s, v[%d:%d], v[%d:%d], %s" % (vr(ACC, 16), fr, fr + 3, br, br + 3, "0" if (i == 0 and e == 0) else vr(ACC, 16)))
        st()
        a("s_waitcnt lgkmcnt(0)")
        a("v_readfirstlane_b32 s80, v2"); a("v_readfirstlane_b32 s81, v3")
        a("s_mov_b32 s50, 0x%x" % CSCALE)
        a("s_lshl_b32 s34, s23, 13"); a("s_add_u32 s34, s34, s54"); a("s_add_u32 s34, s34, 0x%x" % G_QX); a("s_add_u32 s34, s34, s36")
        for i in range(16): a("v_mul_f32 v%d, s50, v%d" % (ACC + i, ACC + i))
        for i in range(8): a("v_cvt_pk_bf16_f32 v%d, v%d, v%d" % (E + i, ACC + 2 * i, ACC + 1 + 2 * i))
        for u in range(2):
            a("v_permlane32_swap_b32 v%d, v%d" % (E + 4 * u, E + 2 + 4 * u))
            a("v_permlane32_swap_b32 v%d, v%d" % (E + 1 + 4 * u, E + 3 + 4 * u))
        a("buffer_store_dwordx4 %s, v%d, s[24:27], s34 offen sc1" % (vr(E, 4), LANE16))
        a("buffer_store_dwordx4 %s, v%d, s[24:27], s34 offen offset:1024 sc1" % (vr(E + 4, 4), LANE16))
        a("v_and_b32 v1, 31, v0"); a("v_lshrrev_b32 v2, 5, v0")
        a("v_xor_b32 v3, v1, v2"); a("v_and_b32 v3, 15, v3"); a("v_lshlrev_b32 v3, 4, v3")
        a("v_lshlrev_b32 v6, 8, v1"); a("v_add_u32 v6, 0x%x, v6" % KRING)
        for j in range(8):
            a("v_xor_b32 v%d, %d, v3" % (KRA + j, j * 32))
            a("v_add_u32 v%d, v%d, v6" % (KRA + j, KRA + j))
        a("v_and_b32 v3, 15, v0"); a("v_lshrrev_b32 v3, 2, v3")
        a("v_lshlrev_b32 v6, 2, v2"); a("v_add_u32 v6, v6, v3"); a("v_lshlrev_b32 v6, 8, v6")
        a("v_lshrrev_b32 v4, 4, v0"); a("v_and_b32 v4, 1, v4"); a("v_lshlrev_b32 v4, 5, v4"); a("v_add_u32 v6, v6, v4")
        a("v_and_b32 v4, 3, v0"); a("v_lshlrev_b32 v4, 3, v4"); a("v_add_u32 v6, v6, v4")
        a("v_add_u32 v6, 0x%x, v6" % VRING)
        for db in range(4):
            a("v_xor_b32 v4, %d, v3" % db); a("v_lshlrev_b32 v4, 6, v4")
            a("v_add_u32 v%d, v6, v4" % (VRA + db))
        for i in range(64): a("v_mov_b32 v%d, 0" % (O + i))
        for i in range(16): a("v_mov_b32 v%d, 0" % (NEGM + i))
        a("v_mov_b32 v%d, 0" % LSUM)
        a("s_mov_b32 s44, 0x%x" % THRESH)
        a("s_mov_b32 s42, 0")
        a("v_mov_b32 v%d, s80" % (E + 8)); a("v_mov_b32 v%d, s81" % (E + 9)); a("v_mov_b32 v7, 0")
        a("s_lshl_b32 s37, s23, 5"); a("s_lshl_b32 s38, s20, 3"); a("s_add_u32 s37, s37, s38"); a("s_add_u32 s37, s37, s54"); a("s_add_u32 s37, s37, 0x%x" % G_F0)
        a("s_waitcnt vmcnt(0)")
        st()
        a("s_mov_b64 exec, 1")
        a("buffer_store_dwordx2 v[%d:%d], v7, s[24:27], s37 offen sc1" % (E + 8, E + 9))
        a("s_barrier")
        a("s_mov_b64 exec, 0xf")
        a("v_lshlrev_b32 v7, 3, v0")
        a("s_lshl_b32 s37, s20, 5"); a("s_add_u32 s37, s37, s54"); a("s_add_u32 s37, s37, 0x%x" % G_F0)
        self.poll_flags("POLL0", 7, 37, reg=VF)
        a("s_mov_b64 exec, -1")
        st()
        a("s_lshl_b32 s33, s20, 13"); a("s_add_u32 s33, s33, s54"); a("s_add_u32 s33, s33, 0x%x" % G_QX); a("s_add_u32 s37, s33, 4096")
        for j in range(8):
            a("buffer_load_dwordx4 %s, v%d, s[24:27], s%d offen offset:%d sc1" % (ar(4 * j, 4), LANE16, 33 if j < 4 else 37, (j % 4) * 1024))
        def dummy(n):
            out = []
            for _ in range(n):
                out += ["s_mov_b32 m0, %d" % SCRL, "s_mov_b32 s38, 0x4000000", "buffer_load_dwordx4 v%d, s[56:59], s38 offen lds" % LANE16]
            return out
        for t in (1, 2):
            for o in self.issue(t + 1, t, 'real', 'real') + dummy(tr[t]): a(o)
        for o in self.kreads(0): a(o)
        a("s_waitcnt vmcnt(%d) lgkmcnt(0)" % (8 + tr[1] + tr[2]))
        for j in range(8): a(self.qk(j, SB[0]))
        a("s_barrier")
        for o in self.issue(0, 3, 'real', 'real') + dummy(tr[3]): a(o)
        for o in self.kreads(1): a(o)
        for u in range(2):
            for db in range(4):
                for o in self.vread(0, u, db): a(o)
        if self.pretouch:
            a("v_mul_u32_u24 v1, 0x%x, v0" % 0x8000)
            a("s_mov_b64 s[50:51], exec"); a("s_mov_b64 exec, 0x1f")
            a("buffer_load_dword v2, v1, s[24:27], s54 offen")
            a("v_lshlrev_b32 v1, 18, v0")
            a("buffer_load_dword v3, v1, s[24:27], s55 offen")
            a("s_mov_b64 exec, 1")
            a("s_lshl_b32 s38, s22, 15")
            a("v_mov_b32 v1, 0")
            a("buffer_load_dword v4, v1, s[60:63], s38 offen")
            a("s_mov_b64 exec, s[50:51]")
        s0 = SB[0]
        a("v_max3_f32 v%d, v%d, v%d, v%d" % (T0, s0, s0 + 1, s0 + 2))
        for i in range(3, 15, 2): a("v_max3_f32 v%d, v%d, v%d, v%d" % (T0, T0, s0 + i, s0 + i + 1))
        a("v_max_f32 v%d, v%d, v%d" % (T0, T0, s0 + 15))
        a("v_mov_b32 v%d, v%d" % (T1, T0))
        a("v_permlane32_swap_b32 v%d, v%d" % (T0, T1))
        a("v_max_f32 v%d, v%d, v%d" % (MREF, T0, T1))
        for i in range(16): a("v_sub_f32 v%d, 0, v%d" % (NEGM + i, MREF))
        for i in range(16): a("v_sub_f32 v%d, v%d, v%d" % (s0 + i, s0 + i, MREF))
        self.dyn_limit = 2
        st()
        a.label("K2_loop")
        for k in range(4):
            self.phaseA(SB[k % 2], SB[(k + 1) % 2], True)
            iss = self.issue((k + 1) % 4, k, 'dyn' if k == 3 else 'real', 'real') + self.wo_rows(tr[k])
            self.phaseB(8 + sum(tr) - tr[k], iss, (k + 2) % 4, (k + 1) % 4)
        a("s_add_u32 s42, s42, 1"); a("s_cmp_lt_u32 s42, 3")
        a("s_cbranch_scc1 K2_loop")
        st()
        self.phaseA(SB[0], SB[1], True)
        self.phaseB(8 + tr[1] + tr[2] + tr[3], [], 2, 1)
        self.phaseA(SB[1], SB[0], True)
        self.phaseB(4 + tr[2] + tr[3], [], 3, 2)
        self.phaseA(SB[0], SB[1], True)
        self.phaseB(0, [], None, None, barrier=False)
        self.phaseA(SB[1], None, False)
        a("s_waitcnt vmcnt(0)")
        a("s_barrier")
        st()
        for db in range(4):
            for u in range(2):
                for o in self.vread(3, u, db): a(o)
        nrow_done = 15 if self.trickle else 0
        a("v_mov_b32 v%d, v%d" % (T0, LSUM))
        a("s_lshl_b32 s46, s20, 15"); a("s_lshl_b32 s37, s23, 13"); a("s_add_u32 s46, s46, s37"); a("s_add_u32 s46, s46, s54")
        a("v_permlane32_swap_b32 v%d, v%d" % (LSUM, T0))
        a("s_lshl_b32 s37, s20, 11"); a("s_lshl_b32 s38, s23, 9"); a("s_add_u32 s37, s37, s38"); a("s_add_u32 s37, s37, s54"); a("s_add_u32 s37, s37, 0x20000")
        a("v_add_f32 v%d, v%d, v%d" % (LSUM, LSUM, T0))
        a("v_mov_b32 v%d, 0" % TS); a("v_mov_b32 v%d, 0" % TS2)
        a("s_mov_b32 s12, s24"); a("s_mov_b32 s13, s25"); a("s_mov_b32 s15, 0x20000")
        a("s_cmp_eq_u32 s20, s23"); a("s_cselect_b32 s14, 0, 0x10000000")
        a("v_cmp_gt_u32 vcc, 32, v0")
        a("s_and_saveexec_b64 s[50:51], vcc")
        a("buffer_store_dwordx4 v[%d:%d], v%d, s[12:15], s37 offen sc1" % (MREF, TS2, LANE16))
        a("s_mov_b64 exec, s[50:51]")
        a("s_add_u32 s38, s46, 4096")
        n = 16
        def pub(db):
            for i in (2 * db, 2 * db + 1):
                for q in range(4):
                    a("v_cvt_pk_bf16_f32 v%d, v%d, v%d" % (KF + 4 * i + q, O + 8 * i + 2 * q, O + 8 * i + 2 * q + 1))
                a("buffer_store_dwordx4 %s, v%d, s[12:15], s%d offen offset:%d sc1" % (vr(KF + 4 * i, 4), LANE16, 46 if i < 4 else 38, (i % 4) * 1024))
        for db in range(4):
            a("s_waitcnt lgkmcnt(%d)" % (12 - 4 * db))
            a(self.pv(0, db)); a(self.pv(1, db))
            if db >= 1: pub(db - 1)
        pub(3)
        st()
        a("s_cmp_lg_u32 s20, s23"); a("s_cbranch_scc1 K2_nown")
        a("v_add_u32 v1, %d, v%d" % (OWNP, LANE16))
        for i in range(8): a("ds_write_b128 v1, %s offset:%d" % (vr(KF + 4 * i, 4), i * 1024))
        a("s_mov_b64 exec, 0xffffffff") if False else None
        a("v_cmp_gt_u32 vcc, 32, v0"); a("s_and_saveexec_b64 s[50:51], vcc")
        a("ds_write_b128 v1, v[%d:%d] offset:8192" % (MREF, TS2))
        a("s_mov_b64 exec, s[50:51]")
        a.label("K2_nown")
        a("s_barrier")
        a("s_lshl_b32 s40, s20, 5"); a("s_lshl_b32 s38, s23, 3"); a("s_add_u32 s40, s40, s38"); a("s_add_u32 s40, s40, s54"); a("s_add_u32 s40, s40, 0x%x" % G_F1)
        a("v_mov_b32 v4, s80"); a("v_mov_b32 v5, s81"); a("v_mov_b32 v2, 0")
        a("s_waitcnt vmcnt(0)")
        st()
        a("s_mov_b64 exec, 1")
        a("buffer_store_dwordx2 v[4:5], v2, s[12:15], s40 offen sc1")
        a("s_mov_b64 exec, -1")
        a("s_cmp_lg_u32 s20, 0"); a("s_cbranch_scc1 K2_nopoll")
        a("s_lshl_b32 s40, s23, 5"); a("s_add_u32 s40, s40, s54"); a("s_add_u32 s40, s40, 0x%x" % G_F1)
        a("v_lshlrev_b32 v7, 3, v0")
        a("s_lshl_b32 s38, 1, s23"); a("s_andn2_b32 s38, 0xf, s38"); a("s_mov_b32 s39, 0"); a("s_mov_b64 exec, s[38:39]")
        self.poll_flags("K2_poll", 7, 40, reg=12)
        a("s_mov_b64 exec, -1")
        a.label("K2_nopoll")
        for o in self.wo_rows(32 - nrow_done): a(o)
        a("s_waitcnt lgkmcnt(0)")
        a("s_barrier")
        st()
        a("v_and_b32 v3, 31, v0"); a("v_lshlrev_b32 v3, 4, v3")
        a("s_lshl_b32 s37, s23, 11"); a("s_add_u32 s37, s37, s54"); a("s_add_u32 s37, s37, 0x20000")
        a("s_lshl_b32 s46, s23, 15"); a("s_add_u32 s46, s46, s54"); a("s_add_u32 s46, s46, s36")
        for k in range(1, 4):
            a("s_add_u32 s38, s23, %d" % k); a("s_and_b32 s38, s38, 3"); a("s_lshl_b32 s39, s38, 9"); a("s_add_u32 s39, s39, s37")
            a("buffer_load_dwordx4 v[%d:%d], v3, s[24:27], s39 offen sc1" % (32 + 4 * k, 35 + 4 * k))
        for k in range(1, 4):
            a("s_add_u32 s38, s23, %d" % k); a("s_and_b32 s38, s38, 3"); a("s_lshl_b32 s39, s38, 13"); a("s_add_u32 s39, s39, s46")
            for i in range(2):
                r = 64 + 8 * k + 4 * i
                a("buffer_load_dwordx4 v[%d:%d], v%d, s[24:27], s39 offen offset:%d sc1" % (r, r + 3, LANE16, i * 1024))
        a("v_add_u32 v1, %d, v3" % (OWNP + 8192)); a("ds_read_b128 v[32:35], v1")
        a("s_add_u32 s39, s36, %d" % OWNP); a("v_add_u32 v1, s39, v%d" % LANE16)
        a("ds_read_b128 v[64:67], v1"); a("ds_read_b128 v[68:71], v1 offset:1024")
        a("v_and_b32 v4, 15, v0"); a("v_lshrrev_b32 v4, 2, v4")
        a("v_lshrrev_b32 v5, 5, v0"); a("v_lshlrev_b32 v5, 2, v5"); a("v_add_u32 v4, v4, v5")
        a("v_mul_u32_u24 v4, %d, v4" % WOROW)
        a("v_lshrrev_b32 v5, 4, v0"); a("v_and_b32 v5, 1, v5"); a("v_lshlrev_b32 v5, 5, v5"); a("v_add_u32 v4, v4, v5")
        a("v_and_b32 v5, 3, v0"); a("v_lshlrev_b32 v5, 3, v5"); a("v_add_u32 v4, v4, v5")
        a("s_lshl_b32 s38, s20, 8"); a("v_add_u32 v4, s38, v4")
        a("v_add_u32 v5, %d, v4" % (64 * WOROW))
        a("s_waitcnt vmcnt(6) lgkmcnt(0)")
        a("v_max3_f32 v16, v32, v36, v40"); a("v_max_f32 v16, v16, v44")
        for s in range(4): a("v_sub_f32 v%d, v%d, v16" % (32 + 4 * s, 32 + 4 * s))
        for s in range(4): a("v_exp_f32 v%d, v%d" % (32 + 4 * s, 32 + 4 * s))
        a("v_mul_f32 v17, v32, v33"); a("v_fmac_f32 v17, v36, v37"); a("v_fmac_f32 v17, v40, v41"); a("v_fmac_f32 v17, v44, v45")
        a("v_rcp_f32 v17, v17")
        for s in range(4): a("v_mul_f32 v%d, v%d, v17" % (32 + 4 * s, 32 + 4 * s))
        a("s_mov_b32 s40, 0xffff0000")
        a("s_waitcnt vmcnt(0)")
        st()
        for i in range(8):
            for s in range(4):
                r = 64 + 8 * s + i
                a("v_lshlrev_b32 v18, 16, v%d" % r); a("v_and_b32 v19, s40, v%d" % r)
                if s == 0:
                    a("v_mul_f32 v20, v18, v32"); a("v_mul_f32 v21, v19, v32")
                else:
                    a("v_fmac_f32 v20, v18, v%d" % (32 + 4 * s)); a("v_fmac_f32 v21, v19, v%d" % (32 + 4 * s))
            a("v_cvt_pk_bf16_f32 v%d, v20, v21" % (24 + i))
        a("s_add_u32 s39, s36, %d" % BIMG)
        a("v_add_u32 v6, s39, v%d" % LANE16)
        a("ds_write_b128 v6, v[24:27]"); a("ds_write_b128 v6, v[28:31] offset:1024")
        a("v_add_u32 v6, %d, v%d" % (BIMG, LANE16))
        a("s_waitcnt lgkmcnt(0)")
        a("s_barrier")
        for i in range(8): a("ds_read_b128 v[%d:%d], v6 offset:%d" % (32 + 4 * i, 35 + 4 * i, i * 1024))
        seq = [(nt, db, u) for nt in range(4) for db in range(4) for u in range(2)]
        AFR = 64; ACC = 168
        a("s_lshl_b32 s34, s20, 18"); a("s_lshl_b32 s35, s47, 10"); a("s_add_u32 s34, s34, s35"); a("s_add_u32 s34, s34, s55")
        def reads(n):
            nt, db, u = seq[n]
            fr = AFR + 4 * (n % 8)
            base = 4 if db < 2 else 5
            off = ((db % 2) * 32 + 16 * u) * WOROW + nt * 64
            return ["ds_read_b64_tr_b16 v[%d:%d], v%d offset:%d" % (fr, fr + 1, base, off),
                    "ds_read_b64_tr_b16 v[%d:%d], v%d offset:%d" % (fr + 2, fr + 3, base, off + 8 * WOROW)]
        def pub2(nt):
            for u in range(2):
                r = 96 + 4 * ((2 * nt + u) % 4)
                for q in range(4):
                    a("v_cvt_pk_bf16_f32 v%d, v%d, v%d" % (r + q, ACC + 16 * nt + 8 * u + 2 * q, ACC + 16 * nt + 8 * u + 2 * q + 1))
                a("buffer_store_dwordx4 v[%d:%d], v%d, s[24:27], s34 offen sc1" % (r, r + 3, LANE16))
                a("s_add_u32 s34, s34, 0x8000")
        D = 6
        for n in range(D):
            for o in reads(n): a(o)
        for n in range(32):
            nt, db, u = seq[n]
            fr = AFR + 4 * (n % 8)
            rem = min(D - 1, 31 - n)
            a("s_waitcnt lgkmcnt(%d)" % (2 * rem))
            bq = 32 + (db * 2 + u) * 4
            first = (db == 0 and u == 0)
            acc = "v[%d:%d]" % (ACC + 16 * nt, ACC + 16 * nt + 15)
            a("v_mfma_f32_32x32x16_bf16 %s, v[%d:%d], v[%d:%d], %s" % (acc, fr, fr + 3, bq, bq + 3, "0" if first else acc))
            if n + D < 32:
                for o in reads(n + D): a(o)
            if n % 8 == 2 and nt >= 1: pub2(nt - 1)
        st()
        pub2(3)
        a("s_lshl_b32 s40, s20, 11"); a("s_lshl_b32 s38, s47, 3"); a("s_add_u32 s40, s40, s38"); a("s_add_u32 s40, s40, s55"); a("s_add_u32 s40, s40, 0x100000")
        a("v_mov_b32 v4, s80"); a("v_mov_b32 v5, s81"); a("v_lshlrev_b32 v2, 8, v0")
        a("s_waitcnt vmcnt(0)")
        st()
        a("s_mov_b64 exec, 0xff")
        a("buffer_store_dwordx2 v[4:5], v2, s[24:27], s40 offen sc1")
        a("s_mov_b64 exec, -1")
        a("s_cmp_lg_u32 s20, 0"); a("s_cbranch_scc1 K2_polled2")
        a("s_lshl_b32 s40, s47, 8"); a("s_add_u32 s40, s40, s55"); a("s_add_u32 s40, s40, 0x100000")
        a("v_lshlrev_b32 v7, 3, v0")
        a("s_mov_b32 s38, -1"); a("s_mov_b32 s39, 0"); a("s_mov_b64 exec, s[38:39]")
        self.poll_flags("K2_poll2", 7, 40, reg=12)
        a("s_mov_b64 exec, -1")
        a.label("K2_polled2")
        a("s_barrier")
        st()
        a("s_lshl_b32 s30, s47, 15"); a("s_lshl_b32 s31, s20, 13"); a("s_add_u32 s30, s30, s31"); a("s_add_u32 s30, s30, s55")
        for i in range(8):
            if i == 4: a("s_add_u32 s30, s30, 4096")
            a("buffer_load_dwordx4 v[%d:%d], v%d, s[24:27], s30 offen offset:%d sc1" % (32 + 4 * i, 35 + 4 * i, LANE16, (i % 4) * 1024))
        a("s_mov_b32 s40, 0xffff0000")
        a("v_add_u32 v3, s36, v%d" % LANE16)
        AC = 64
        for i in range(8):
            a("s_waitcnt vmcnt(%d)" % (7 - i))
            for q in range(4):
                r = 32 + 4 * i + q
                if i == 0:
                    a("v_lshlrev_b32 v%d, 16, v%d" % (AC + 2 * q, r)); a("v_and_b32 v%d, s40, v%d" % (AC + 1 + 2 * q, r))
                else:
                    a("v_lshlrev_b32 v4, 16, v%d" % r); a("v_and_b32 v5, s40, v%d" % r)
                    a("v_add_f32 v%d, v%d, v4" % (AC + 2 * q, AC + 2 * q)); a("v_add_f32 v%d, v%d, v5" % (AC + 1 + 2 * q, AC + 1 + 2 * q))
        st()
        a("ds_write_b128 v3, v[%d:%d]" % (AC, AC + 3)); a("ds_write_b128 v3, v[%d:%d] offset:1024" % (AC + 4, AC + 7))
        a("s_waitcnt lgkmcnt(0)"); a("s_barrier")
        a("s_cmp_lg_u32 s20, 0"); a("s_cbranch_scc1 K2_fin")
        for w in range(1, 4):
            a("ds_read_b128 v[%d:%d], v%d offset:%d" % (72 + 8 * w, 75 + 8 * w, LANE16, w * 2048))
            a("ds_read_b128 v[%d:%d], v%d offset:%d" % (76 + 8 * w, 79 + 8 * w, LANE16, w * 2048 + 1024))
        a("v_and_b32 v3, 31, v0"); a("v_lshlrev_b32 v3, 10, v3")
        a("v_lshrrev_b32 v4, 5, v0"); a("v_lshlrev_b32 v4, 4, v4"); a("v_add_u32 v3, v3, v4")
        a("s_lshl_b32 s32, s22, 15"); a("s_lshl_b32 s33, s47, 5"); a("s_add_u32 s32, s32, s33")
        a("s_waitcnt lgkmcnt(0)")
        for w in range(1, 4):
            for q in range(8): a("v_add_f32 v%d, v%d, v%d" % (AC + q, AC + q, 72 + 8 * w + q))
        for q in range(4): a("v_cvt_pk_bf16_f32 v%d, v%d, v%d" % (20 + q, AC + 2 * q, AC + 1 + 2 * q))
        a("v_permlane32_swap_b32 v20, v22"); a("v_permlane32_swap_b32 v21, v23")
        a("buffer_store_dwordx4 v[20:23], v3, s[60:63], s32 offen")
        a.label("K2_fin")
        st()
        st.flush(2, 20, 24, "K2_end2")
        a.label("K2_end")
        a("s_endpgm")
        self.emit_rare()
        return a

if __name__ == "__main__":
    out = sys.argv[1] if len(sys.argv) > 1 else "v12.s"
    if "--norot" in sys.argv: ROT = False
    for x in sys.argv:
        if x.startswith("--pick="): PICK = set(int(v) for v in x.split("=")[1].split(","))
    k2 = Main("nt", stamps=("--stampm" in sys.argv), trickle=("--notrickle" not in sys.argv), pretouch=("--nopretouch" not in sys.argv)).build()
    build_file([(MAIN, k2, 256, 256, LDS_MAIN, NV + 32, NV, 102)], out)
```

```python
import sys, struct, math
from asmlib import *

MAIN = "standalone__gqa_block_cached__near_ridge_kernel"
WS_Q = 0x0
WS_G = 0x400000
GS = 0x2C000
G_F1 = 0x22000
G_F0 = 0x22080
G_QX = 0x23000
WS_B = 0x1400000
BS = 0x110000
def f32bits(x): return struct.unpack("<I", struct.pack("<f", x))[0]
CSCALE = f32bits((128 ** -0.5) * math.log2(math.e))
THRESH = f32bits(2.0 ** 20)

def srd(a, dst, lo, hi, nbytes):
    a("s_mov_b32 s%d, s%d" % (dst, lo)); a("s_mov_b32 s%d, s%d" % (dst + 1, hi))
    a("s_mov_b32 s%d, 0x%x" % (dst + 2, nbytes)); a("s_mov_b32 s%d, 0x20000" % (dst + 3))
def vr(b, n=1): return "v%d" % b if n == 1 else "v[%d:%d]" % (b, b + n - 1)
def ar(b, n=1): return "a%d" % b if n == 1 else "a[%d:%d]" % (b, b + n - 1)

def kv_base(a, idreg, dst, tmp):
    a("s_and_b32 s21, s%d, 7" % idreg); a("s_lshr_b32 s22, s%d, 3" % idreg); a("s_lshr_b32 s23, s22, 2"); a("s_and_b32 s24, s22, 3")
    a("s_lshl_b32 s%d, s23, 3" % dst); a("s_add_u32 s%d, s%d, s21" % (dst, dst)); a("s_lshl_b32 s%d, s%d, 19" % (dst, dst))
    a("s_lshl_b32 s%d, s24, 17" % tmp); a("s_add_u32 s%d, s%d, s%d" % (dst, dst, tmp))

PF_DELAY = 2
PF_DEPTH = None
PF_TILES = [1, 3, 5, 7]
PF_WO = True
PF_SEQ = 0
Q_TOUCH = False
ROT = True
TLBWARM = 0
KQ2_PF = [(0, 1)]
def k_q(stamps=False):
    a = Asm(); st = Stamper(a, stamps, 0, 16)
    st()
    a("s_cmp_ge_u32 s2, 256"); a("s_cbranch_scc1 K1_end")
    a("s_load_dwordx2 s[4:5], s[0:1], 0")
    a("s_load_dwordx2 s[6:7], s[0:1], 24")
    a("s_load_dwordx2 s[8:9], s[0:1], 56")
    a("s_load_dwordx4 s[52:55], s[0:1], 8")
    a("s_load_dwordx2 s[46:47], s[0:1], 32")
    a("v_lshrrev_b32 v1, 6, v0")
    a("v_and_b32 v0, 63, v0")
    a("v_readfirstlane_b32 s20, v1")
    a("s_bitcmp1_b32 s2, 3"); a("s_cbranch_scc1 K1_pf")
    a("s_and_b32 s21, s2, 7"); a("s_lshl_b32 s21, s21, 2"); a("s_lshr_b32 s22, s2, 4"); a("s_and_b32 s23, s22, 3")
    a("s_add_u32 s21, s21, s23")
    a("s_lshr_b32 s22, s22, 2")
    a("s_add_u32 s43, s22, s23"); a("s_and_b32 s43, s43, 3")
    a("v_lshrrev_b32 v2, 4, v0"); a("v_and_b32 v4, 15, v0"); a("v_lshlrev_b32 v3, 2, v2"); a("v_xor_b32 v3, v3, v4")
    a("v_lshlrev_b32 v3, 4, v3"); a("v_lshlrev_b32 v5, 13, v2"); a("v_add_u32 v20, v5, v3")
    a("s_lshl_b32 s37, s20, 3"); a("s_and_b32 s37, s37, 15")
    a("v_add_u32 v3, s37, v2"); a("v_xor_b32 v5, v3, v4"); a("v_lshlrev_b32 v5, 4, v5"); a("v_lshlrev_b32 v6, 10, v2"); a("v_add_u32 v21, v5, v6")
    a("v_add_u32 v3, 4, v3"); a("v_xor_b32 v5, v3, v4"); a("v_lshlrev_b32 v5, 4, v5"); a("v_add_u32 v22, v5, v6")
    a("s_waitcnt lgkmcnt(0)")
    srd(a, 12, 4, 5, 8 * 32 * 512 * 2)
    srd(a, 16, 6, 7, 512 * 4096 * 2)
    srd(a, 24, 8, 9, 0x10000000)
    st()
    if Q_TOUCH:
        a("s_cmp_ge_u32 s20, 6"); a("s_cbranch_scc1 K1_td")
        a("s_cmp_ge_u32 s20, 4"); a("s_cbranch_scc1 K1_tx")
        a("v_lshlrev_b32 v30, 13, v0")
        a("s_lshl_b32 s30, s22, 20"); a("s_lshr_b32 s31, s20, 1"); a("s_lshl_b32 s31, s31, 19"); a("s_add_u32 s30, s30, s31")
        a("s_and_b32 s31, s20, 1"); a("s_lshl_b32 s31, s31, 7"); a("s_add_u32 s30, s30, s31"); a("s_lshl_b32 s31, s21, 8"); a("s_add_u32 s30, s30, s31")
        a("buffer_load_dword v31, v30, s[16:19], s30 offen")
        a("s_branch K1_td")
        a.label("K1_tx")
        a("v_lshlrev_b32 v30, 7, v0")
        a("s_lshl_b32 s30, s22, 16"); a("s_lshl_b32 s31, s23, 14"); a("s_add_u32 s30, s30, s31"); a("s_sub_u32 s31, s20, 4"); a("s_lshl_b32 s31, s31, 13"); a("s_add_u32 s30, s30, s31")
        a("buffer_load_dword v31, v30, s[12:15], s30 offen")
        a.label("K1_td")
        a("s_waitcnt vmcnt(0)")
        a("s_barrier")
    a("s_lshl_b32 s33, s22, 16"); a("s_lshl_b32 s34, s20, 13"); a("s_add_u32 s33, s33, s34")
    a("s_lshl_b32 s34, s20, 11")
    a("s_lshl_b32 s30, s20, 17"); a("s_lshl_b32 s31, s21, 8"); a("s_add_u32 s30, s30, s31")
    a("s_lshl_b32 s32, s20, 12"); a("s_add_u32 s32, s32, 65536")
    def x_stage(i):
        a("s_add_u32 s39, s43, %d" % i); a("s_and_b32 s39, s39, 3"); a("s_lshl_b32 s39, s39, 8"); a("s_add_u32 s39, s39, s33")
        a("s_add_u32 m0, s34, %d" % (i * 16384))
        a("s_add_u32 s36, s39, 4096")
        a("buffer_load_dwordx4 v21, s[12:15], s39 offen lds")
        a("s_add_u32 m0, s34, %d" % (i * 16384 + 1024))
        a("s_nop 0")
        a("buffer_load_dwordx4 v22, s[12:15], s36 offen lds")
    def wq_stage(i):
        a("s_add_u32 s39, s43, %d" % i); a("s_and_b32 s39, s39, 3"); a("s_lshl_b32 s39, s39, 20"); a("s_add_u32 s39, s39, s30")
        for e in range(4):
            a("s_add_u32 m0, s32, %d" % ((i % 3) * 32768 + e * 1024))
            a("s_add_u32 s36, s39, %d" % (e * 32768))
            a("buffer_load_dwordx4 v20, s[16:19], s36 offen lds")
    for i in range(3):
        x_stage(i); wq_stage(i)
    x_stage(3)
    a("s_and_b32 s40, s20, 3"); a("s_lshr_b32 s41, s20, 2")
    a("v_and_b32 v4, 15, v0"); a("v_lshrrev_b32 v4, 2, v4")
    a("v_lshrrev_b32 v5, 5, v0")
    a("v_lshlrev_b32 v6, 3, v5"); a("v_add_u32 v6, v6, v4"); a("v_lshlrev_b32 v6, 8, v6")
    a("v_xor_b32 v7, s40, v4"); a("v_lshlrev_b32 v7, 6, v7"); a("v_add_u32 v6, v6, v7")
    a("v_lshrrev_b32 v7, 4, v0"); a("v_and_b32 v7, 1, v7"); a("v_lshlrev_b32 v7, 5, v7"); a("v_add_u32 v6, v6, v7")
    a("v_and_b32 v7, 3, v0"); a("v_lshlrev_b32 v7, 3, v7"); a("v_add_u32 v6, v6, v7")
    a("v_add_u32 v6, 0x10000, v6")
    a("v_add_u32 v7, 0x10000, v6")
    a("v_and_b32 v8, 31, v0")
    a("v_and_b32 v9, 15, v8"); a("v_xor_b32 v9, v9, v5"); a("v_lshlrev_b32 v9, 4, v9")
    a("v_lshlrev_b32 v8, 8, v8"); a("s_lshl_b32 s42, s41, 13"); a("v_add_u32 v8, s42, v8")
    for e in range(8):
        a("v_xor_b32 v%d, %d, v9" % (10 + e, e * 32)); a("v_add_u32 v%d, v%d, v8" % (10 + e, 10 + e))
    ACC = 32; AF = 48; BF = 80
    def reads(i, e):
        slot = i % 3
        base, off = (6, slot * 32768) if slot < 2 else (7, 0)
        off += e * 4096
        fr = AF + 4 * e; br = BF + 4 * e
        return ["ds_read_b64_tr_b16 v[%d:%d], v%d offset:%d" % (fr, fr + 1, base, off),
                "ds_read_b64_tr_b16 v[%d:%d], v%d offset:%d" % (fr + 2, fr + 3, base, off + 1024),
                "ds_read_b128 v[%d:%d], v%d offset:%d" % (br, br + 3, 10 + e, i * 16384)]
    waits = [14, 8 + 4, 4, 0]
    waits = [14, 12, 4, 0]
    for i in range(4):
        a("s_waitcnt vmcnt(%d)" % waits[i])
        a("s_barrier")
        if i == 0: st()
        for e in range(8):
            for o in reads(i, e): a(o)
        for e in range(8):
            a("s_waitcnt lgkmcnt(%d)" % min(15, 3 * (7 - e)))
            fr = AF + 4 * e; br = BF + 4 * e
            a("v_mfma_f32_32x32x16_bf16 v[%d:%d], v[%d:%d], v[%d:%d], %s" % (ACC, ACC + 15, fr, fr + 3, br, br + 3, "0" if (i == 0 and e == 0) else "v[%d:%d]" % (ACC, ACC + 15)))
        if i == 0:
            a("s_barrier")
            wq_stage(3)
    st()
    a("s_mov_b32 s50, 0x%x" % CSCALE)
    a("s_lshl_b32 s34, s22, 1"); a("s_add_u32 s34, s34, s41"); a("s_lshl_b32 s34, s34, 5"); a("s_add_u32 s34, s34, s21"); a("s_lshl_b32 s34, s34, 13")
    a("s_lshl_b32 s35, s40, 11"); a("s_add_u32 s34, s34, s35")
    if WS_Q: a("s_add_u32 s34, s34, 0x%x" % WS_Q)
    a("v_lshlrev_b32 v2, 4, v0")
    for i in range(16): a("v_mul_f32 v%d, s50, v%d" % (ACC + i, ACC + i))
    for i in range(8): a("v_cvt_pk_bf16_f32 v%d, v%d, v%d" % (24 + i, ACC + 2 * i, ACC + 1 + 2 * i))
    for u in range(2):
        a("v_permlane32_swap_b32 v%d, v%d" % (24 + 4 * u, 26 + 4 * u))
        a("v_permlane32_swap_b32 v%d, v%d" % (25 + 4 * u, 27 + 4 * u))
    a("buffer_store_dwordx4 v[24:27], v2, s[24:27], s34 offen")
    a("buffer_store_dwordx4 v[28:31], v2, s[24:27], s34 offen offset:1024")
    st()
    st.flush(2, 20, 8, "K1_end2")
    a("s_branch K1_end")
    a.label("K1_pf")
    a("s_waitcnt lgkmcnt(0)")
    srd(a, 24, 8, 9, 0x10000000)
    srd(a, 56, 52, 53, 0x2000000); srd(a, 60, 54, 55, 0x2000000)
    a("s_cmp_lg_u32 s20, 0"); a("s_cbranch_scc1 K1_pf2")
    a("v_mov_b32 v4, 0"); a("v_mov_b32 v5, 0")
    a("s_mov_b64 s[44:45], exec"); a("s_mov_b64 exec, 1")
    for d in (8, 0):
        a("s_sub_u32 s30, s2, %d" % d)
        a("s_lshr_b32 s31, s30, 2"); a("s_mul_i32 s31, s31, 0x%x" % GS); a("s_and_b32 s32, s30, 3"); a("s_lshl_b32 s32, s32, 7")
        a("s_add_u32 s31, s31, s32"); a("s_add_u32 s31, s31, 0x%x" % (WS_G + 0x22000))
        a("buffer_store_dword v5, v4, s[24:27], s31 offen")
        a("s_lshr_b32 s31, s30, 5"); a("s_mul_i32 s31, s31, 0x%x" % BS); a("s_and_b32 s32, s30, 31"); a("s_lshl_b32 s32, s32, 7")
        a("s_add_u32 s31, s31, s32"); a("s_add_u32 s31, s31, 0x%x" % (WS_B + 0x100000))
        a("buffer_store_dword v5, v4, s[24:27], s31 offen")
    a("s_mov_b64 exec, s[44:45]")
    a.label("K1_pf2")
    if PF_TILES:
        a("s_lshr_b32 s30, s20, 2"); a("s_lshl_b32 s30, s30, 3"); a("s_sub_u32 s30, s2, s30")
        kv_base(a, 30, 40, 41)
        if ROT: a("s_lshr_b32 s43, s30, 3"); a("s_and_b32 s43, s43, 15")
        else: a("s_mov_b32 s43, 0")
        a("s_bitcmp1_b32 s20, 1")
        a("s_cselect_b32 s56, s60, s56"); a("s_cselect_b32 s57, s61, s57")
        a("v_lshlrev_b32 v30, 7, v0")
        for d in range(PF_DELAY):
            a("v_mov_b32 v31, %d" % (d * 128))
            a("buffer_load_dword v31, v31, s[56:59], s40 offen")
            a("s_waitcnt vmcnt(0)")
        if PF_SEQ:
            a("s_bitcmp1_b32 s20, 0"); a("s_cbranch_scc1 K1_pfd")
            for i, t in enumerate(PF_TILES):
                a("s_add_u32 s41, s40, 0x%x" % (t * 8192))
                a("buffer_load_dword v%d, v30, s[56:59], s41 offen" % (32 + i))
                a("s_waitcnt vmcnt(%d)" % (PF_SEQ - 1))
            a.label("K1_pfd")
        else:
            ta = PF_TILES[0::2]; tb = PF_TILES[1::2]
            n = max(len(ta), len(tb))
            for i in range(n):
                x0 = ta[i] if i < len(ta) else None
                x1 = tb[i] if i < len(tb) else None
                a("s_bitcmp1_b32 s20, 0")
                a("s_mov_b32 s42, %d" % (x0 if x0 is not None else 0))
                a("s_cselect_b32 s41, %d, s42" % (x1 if x1 is not None else (x0 if x0 is not None else 0)))
                a("s_add_u32 s41, s41, s43"); a("s_and_b32 s41, s41, 15"); a("s_lshl_b32 s41, s41, 13")
                a("s_add_u32 s41, s41, s40")
                a("buffer_load_dword v%d, v30, s[56:59], s41 offen" % (32 + i))
        if PF_WO:
            srd(a, 48, 46, 47, 4096 * 512 * 2)
            a("s_and_b32 s30, s2, 7"); a("s_lshl_b32 s30, s30, 19"); a("s_lshr_b32 s31, s2, 4"); a("s_lshl_b32 s31, s31, 15"); a("s_add_u32 s30, s30, s31")
            a("s_lshl_b32 s31, s20, 12"); a("s_add_u32 s30, s30, s31")
            a("s_mov_b64 exec, 0xffffffff") if False else None
            a("v_cmp_gt_u32 vcc, 32, v0"); a("s_and_saveexec_b64 s[44:45], vcc")
            a("buffer_load_dword v40, v30, s[48:51], s30 offen")
            a("s_mov_b64 exec, s[44:45]")
        a("s_waitcnt vmcnt(0)")
    if stamps:
        a("s_memrealtime s[66:67]"); a("s_memrealtime s[68:69]"); a("s_memrealtime s[70:71]"); a("s_memrealtime s[72:73]")
        st.n = 5
        st.flush(2, 20, 8, "K1_end3")
    a.label("K1_end")
    a("s_endpgm")
    return a


def k_q2(stamps=False):
    a = Asm(); st = Stamper(a, stamps, 0, 16)
    st()
    a("s_cmp_ge_u32 s2, 256"); a("s_cbranch_scc1 K1_end")
    a("s_load_dwordx2 s[16:17], s[0:1], 24")
    a("s_load_dwordx2 s[12:13], s[0:1], 0")
    a("s_load_dwordx2 s[24:25], s[0:1], 56")
    a("s_load_dwordx4 s[52:55], s[0:1], 8")
    a("v_lshrrev_b32 v1, 6, v0")
    a("v_and_b32 v0, 63, v0")
    a("v_readfirstlane_b32 s20, v1")
    a("s_mov_b32 s18, 0x400000"); a("s_mov_b32 s19, 0x20000"); a("s_mov_b32 s14, 0x40000"); a("s_mov_b32 s15, 0x20000"); a("s_mov_b32 s26, 0x10000000"); a("s_mov_b32 s27, 0x20000")
    a("s_and_b32 s21, s2, 7"); a("s_lshl_b32 s21, s21, 2"); a("s_lshr_b32 s22, s2, 3"); a("s_and_b32 s23, s22, 3"); a("s_add_u32 s21, s21, s23")
    a("s_lshr_b32 s22, s2, 5")
    a("s_add_u32 s43, s22, s23"); a("s_and_b32 s43, s43, 3")
    a("v_lshrrev_b32 v2, 4, v0"); a("v_and_b32 v4, 15, v0"); a("v_lshlrev_b32 v3, 2, v2"); a("v_xor_b32 v3, v3, v4")
    a("v_lshlrev_b32 v3, 4, v3"); a("v_lshlrev_b32 v5, 13, v2"); a("v_add_u32 v20, v5, v3")
    a("s_lshl_b32 s37, s20, 3"); a("s_and_b32 s37, s37, 15")
    a("v_add_u32 v3, s37, v2"); a("v_xor_b32 v5, v3, v4"); a("v_lshlrev_b32 v5, 4, v5"); a("v_lshlrev_b32 v6, 10, v2"); a("v_add_u32 v21, v5, v6")
    a("v_add_u32 v3, 4, v3"); a("v_xor_b32 v5, v3, v4"); a("v_lshlrev_b32 v5, 4, v5"); a("v_add_u32 v22, v5, v6")
    a("s_lshl_b32 s33, s22, 15"); a("s_lshl_b32 s34, s20, 13"); a("s_add_u32 s33, s33, s34")
    a("s_lshl_b32 s34, s20, 11")
    a("s_lshl_b32 s30, s20, 18"); a("s_lshl_b32 s31, s21, 8"); a("s_add_u32 s30, s30, s31")
    a("s_lshl_b32 s32, s20, 13"); a("s_add_u32 s32, s32, 8192")
    a("s_waitcnt lgkmcnt(0)")
    st()
    if TLBWARM:
        a("s_lshr_b32 s40, s2, 5"); a("s_lshl_b32 s40, s40, 3"); a("s_and_b32 s41, s2, 7"); a("s_add_u32 s40, s40, s41")
        a("s_mul_i32 s46, s40, 0x%x" % GS); a("s_add_u32 s46, s46, 0x%x" % WS_G)
        a("s_lshl_b32 s40, s40, 19"); a("s_lshr_b32 s41, s2, 3"); a("s_and_b32 s41, s41, 3"); a("s_lshl_b32 s41, s41, 17"); a("s_add_u32 s40, s40, s41")
        a("s_lshr_b32 s42, s2, 3"); a("s_and_b32 s42, s42, 15"); a("s_lshl_b32 s42, s42, 13"); a("s_add_u32 s40, s40, s42")
        a("v_lshlrev_b32 v30, 7, v0")
        a("s_mov_b32 s58, 0x2000000"); a("s_mov_b32 s59, 0x20000")
        a("s_mov_b64 s[44:45], exec")
        a("s_cmp_ge_u32 s20, 2"); a("s_cbranch_scc1 K1_tw2")
        a("s_bitcmp1_b32 s20, 0")
        a("s_cselect_b32 s56, s54, s52"); a("s_cselect_b32 s57, s55, s53")
        a("s_mov_b64 exec, 0x%x" % TLBWARM)
        a("buffer_load_dword v31, v30, s[56:59], s40 offen")
        a("s_branch K1_tw3")
        a.label("K1_tw2")
        a("s_cmp_eq_u32 s20, 2"); a("s_cbranch_scc0 K1_tw3")
        a("s_mov_b64 exec, 1")
        a("buffer_load_dword v31, v30, s[24:27], s46 offen")
        a.label("K1_tw3")
        a("s_mov_b64 exec, s[44:45]")
    for i in range(4):
        a("s_add_u32 s38, s43, %d" % i); a("s_and_b32 s38, s38, 3")
        a("s_lshl_b32 s39, s38, 20"); a("s_add_u32 s39, s39, s30")
        for e in range(8):
            a("s_add_u32 m0, s32, %d" % (i * 40960 + e * 1024))
            a("s_add_u32 s36, s39, %d" % (e * 32768))
            a("buffer_load_dwordx4 v20, s[16:19], s36 offen lds")
        a("s_lshl_b32 s39, s38, 8"); a("s_add_u32 s39, s39, s33")
        a("s_add_u32 m0, s34, %d" % (i * 40960))
        a("s_add_u32 s36, s39, 4096")
        a("buffer_load_dwordx4 v21, s[12:15], s39 offen lds")
        a("s_add_u32 m0, s34, %d" % (i * 40960 + 1024))
        a("s_nop 0")
        a("buffer_load_dwordx4 v22, s[12:15], s36 offen lds")
    if KQ2_PF:
        a("s_lshr_b32 s40, s2, 5"); a("s_lshl_b32 s40, s40, 3"); a("s_and_b32 s41, s2, 7"); a("s_add_u32 s40, s40, s41"); a("s_lshl_b32 s40, s40, 19")
        a("s_lshr_b32 s41, s2, 3"); a("s_and_b32 s41, s41, 3"); a("s_lshl_b32 s41, s41, 17"); a("s_add_u32 s40, s40, s41")
        if ROT: a("s_lshr_b32 s42, s2, 3"); a("s_and_b32 s42, s42, 15")
        else: a("s_mov_b32 s42, 0")
        a("v_lshlrev_b32 v30, 7, v0")
        a("s_bitcmp1_b32 s20, 0")
        a("s_cselect_b32 s56, s54, s52"); a("s_cselect_b32 s57, s55, s53"); a("s_mov_b32 s58, 0x2000000"); a("s_mov_b32 s59, 0x20000")
        for rnd, tiles in enumerate(KQ2_PF):
            a("s_lshr_b32 s41, s20, 1")
            a("s_cmp_eq_u32 s41, 0"); a("s_cselect_b32 s41, %d, %d" % (tiles[0], tiles[1]))
            a("s_add_u32 s41, s41, s42"); a("s_and_b32 s41, s41, 15"); a("s_lshl_b32 s41, s41, 13"); a("s_add_u32 s41, s41, s40")
            a("buffer_load_dword v%d, v30, s[56:59], s41 offen" % (28 + rnd))
    a("s_cmp_lg_u32 s20, 0"); a("s_cbranch_scc1 K1_nz")
    a("v_mov_b32 v4, 0"); a("v_mov_b32 v5, 0")
    a("s_mov_b64 s[44:45], exec"); a("s_mov_b64 exec, 1")
    a("s_lshr_b32 s31, s2, 2"); a("s_mul_i32 s31, s31, 0x%x" % GS); a("s_and_b32 s35, s2, 3"); a("s_lshl_b32 s35, s35, 7")
    a("s_add_u32 s31, s31, s35"); a("s_add_u32 s31, s31, 0x%x" % (WS_G + 0x22000))
    a("buffer_store_dword v5, v4, s[24:27], s31 offen")
    a("s_lshr_b32 s31, s2, 5"); a("s_mul_i32 s31, s31, 0x%x" % BS); a("s_and_b32 s35, s2, 31"); a("s_lshl_b32 s35, s35, 7")
    a("s_add_u32 s31, s31, s35"); a("s_add_u32 s31, s31, 0x%x" % (WS_B + 0x100000))
    a("buffer_store_dword v5, v4, s[24:27], s31 offen")
    a("s_mov_b64 exec, s[44:45]")
    a.label("K1_nz")
    a("v_and_b32 v4, 15, v0"); a("v_lshrrev_b32 v4, 2, v4"); a("v_lshrrev_b32 v5, 5, v0")
    a("v_lshlrev_b32 v6, 3, v5"); a("v_add_u32 v6, v6, v4"); a("v_lshlrev_b32 v6, 8, v6")
    a("v_xor_b32 v7, s20, v4"); a("v_lshlrev_b32 v7, 6, v7"); a("v_add_u32 v6, v6, v7")
    a("v_lshrrev_b32 v7, 4, v0"); a("v_and_b32 v7, 1, v7"); a("v_lshlrev_b32 v7, 5, v7"); a("v_add_u32 v6, v6, v7")
    a("v_and_b32 v7, 3, v0"); a("v_lshlrev_b32 v7, 3, v7"); a("v_add_u32 v6, v6, v7")
    a("v_add_u32 v6, 8192, v6")
    a("v_and_b32 v8, 31, v0"); a("v_and_b32 v9, 15, v8"); a("v_xor_b32 v9, v9, v5"); a("v_lshlrev_b32 v9, 4, v9"); a("v_lshlrev_b32 v8, 8, v8")
    for e in range(8):
        a("v_xor_b32 v%d, %d, v9" % (10 + e, e * 32)); a("v_add_u32 v%d, v%d, v8" % (10 + e, 10 + e))
    ACC = 32; AF = [48, 112]; BF = [80, 144]
    def reads(i):
        out = []
        for e in range(8):
            fr = AF[i % 2] + 4 * e; br = BF[i % 2] + 4 * e
            out += ["ds_read_b64_tr_b16 v[%d:%d], v6 offset:%d" % (fr, fr + 1, e * 4096),
                    "ds_read_b64_tr_b16 v[%d:%d], v6 offset:%d" % (fr + 2, fr + 3, e * 4096 + 1024),
                    "ds_read_b128 v[%d:%d], v%d" % (br, br + 3, 10 + e)]
        return out
    def advance():
        a("v_add_u32 v6, 40960, v6")
        for e in range(8): a("v_add_u32 v%d, 40960, v%d" % (10 + e, 10 + e))
    for i in range(4):
        a("s_waitcnt vmcnt(%d)" % (10 * (3 - i)))
        a("s_barrier")
        if i == 0: st()
        for o in reads(i): a(o)
        if i < 3: advance()
        for e in range(8):
            a("s_waitcnt lgkmcnt(%d)" % min(15, 3 * (7 - e)))
            fr = AF[i % 2] + 4 * e; br = BF[i % 2] + 4 * e
            a("v_mfma_f32_32x32x16_bf16 v[%d:%d], v[%d:%d], v[%d:%d], %s" % (ACC, ACC + 15, fr, fr + 3, br, br + 3, "0" if (i == 0 and e == 0) else "v[%d:%d]" % (ACC, ACC + 15)))
    st()
    a("s_mov_b32 s50, 0x%x" % CSCALE)
    a("s_lshl_b32 s34, s22, 5"); a("s_add_u32 s34, s34, s21"); a("s_lshl_b32 s34, s34, 13")
    a("s_lshl_b32 s35, s20, 11"); a("s_add_u32 s34, s34, s35")
    a("v_lshlrev_b32 v2, 4, v0")
    for i in range(16): a("v_mul_f32 v%d, s50, v%d" % (ACC + i, ACC + i))
    for i in range(8): a("v_cvt_pk_bf16_f32 v%d, v%d, v%d" % (24 + i, ACC + 2 * i, ACC + 1 + 2 * i))
    for u in range(2):
        a("v_permlane32_swap_b32 v%d, v%d" % (24 + 4 * u, 26 + 4 * u))
        a("v_permlane32_swap_b32 v%d, v%d" % (25 + 4 * u, 27 + 4 * u))
    a("buffer_store_dwordx4 v[24:27], v2, s[24:27], s34 offen")
    a("buffer_store_dwordx4 v[28:31], v2, s[24:27], s34 offen offset:1024")
    st()
    st.flush(2, 20, 24, "K1_end2")
    a.label("K1_end")
    a("s_endpgm")
    return a

VK0, VK1, VV = 8, 9, 10
LANE16 = 11
KRA = 12
VRA = 20
MREF, LSUM, TS, TS2 = 24, 25, 26, 27
T0, T1 = 28, 29
NEGM = 32
SB = [48, 64]
E = 80
P = 96
KF = 104
VF = 136
O = 168
NV = 232
WOROW = 1088
BIMG = 128 * WOROW
KRING = 81920
VRING = KRING + 32768
OWNP = VRING + 32768
NONL = 163808
SCRL = OWNP + 8192 + 512
LDS_MAIN = 163840

EARLY = 1
PRE2 = 0
LATE0 = 0
XTR = False
CODEWARM = 0
PICK = {0, 2, 4, 5, 7, 9, 10, 14}
class PickStamper(Stamper):
    def __init__(self, *a, pick=None, **k):
        super().__init__(*a, **k); self.pick = pick; self.calls = 0; self.force = False
    def __call__(self):
        c = self.calls; self.calls += 1
        if self.force or c in self.pick: super().__call__()
    def flush(self, *a):
        self.force = True
        super().flush(*a)

class Main:
    def __init__(self, pol="nt", stamps=False, trickle=True, pretouch=True):
        self.a = Asm(); self.pol = pol
        self.st = PickStamper(self.a, stamps, 0, 16, sbase=84, pick=PICK)
        self.rare_id = 0; self.rare = []
        self.trickle = trickle; self.pretouch = pretouch

    def issue(self, k_slot, v_slot, kmode, vmode):
        pol = self.pol; out = []
        if kmode:
            out.append("s_lshl_b32 s34, s64, 13")
            out.append("s_add_u32 m0, s36, %d" % (KRING + k_slot * 8192))
            out.append("s_add_u32 s34, s34, s66")
            if kmode == 'dyn':
                out.append("s_cmp_ge_u32 s42, %d" % self.dyn_limit)
                out.append("s_cselect_b32 s34, 0x4000000, s34")
            out.append("buffer_load_dwordx4 v%d, s[12:15], s34 offen %s lds" % (VK0, pol))
            out.append("buffer_load_dwordx4 v%d, s[12:15], s34 offen offset:1024 %s lds" % (VK1, pol))
            out.append("s_add_u32 s64, s64, 1")
            out.append("s_and_b32 s64, s64, 15")
        if vmode:
            out.append("s_lshl_b32 s35, s65, 13")
            out.append("s_add_u32 m0, s36, %d" % (VRING + v_slot * 8192))
            out.append("s_add_u32 s35, s35, s66")
            out.append("buffer_load_dwordx4 v%d, s[16:19], s35 offen %s lds" % (VV, pol))
            out.append("buffer_load_dwordx4 v%d, s[16:19], s35 offen offset:1024 %s lds" % (VV, pol))
            out.append("s_add_u32 s65, s65, 1")
            out.append("s_and_b32 s65, s65, 15")
        return out
    def wo_rows(self, n):
        out = []
        for _ in range(n):
            out.append("s_mov_b32 m0, s49")
            out.append("s_add_u32 s49, s49, %d" % (4 * WOROW))
            out.append("buffer_load_dwordx4 v%d, s[56:59], s48 offen lds" % LANE16)
            out.append("s_add_u32 s48, s48, 4096")
        return out

    def kreads(self, slot):
        return ["ds_read_b128 %s, v%d offset:%d" % (vr(KF + 4 * j, 4), KRA + j, slot * 8192) for j in range(8)]
    def vread(self, slot, u, db):
        r = VF + (u * 4 + db) * 4
        return ["ds_read_b64_tr_b16 %s, v%d offset:%d" % (vr(r, 2), VRA + db, slot * 8192 + u * 4096),
                "ds_read_b64_tr_b16 %s, v%d offset:%d" % (vr(r + 2, 2), VRA + db, slot * 8192 + u * 4096 + 2048)]
    def qk(self, j, snxt):
        return "v_mfma_f32_32x32x16_bf16 %s, %s, %s, %s" % (vr(snxt, 16), vr(KF + 4 * j, 4), ar(4 * j, 4), vr(NEGM, 16) if j == 0 else vr(snxt, 16))
    def pv(self, u, db):
        return "v_mfma_f32_32x32x16_bf16 %s, %s, %s, %s" % (vr(O + 16 * db, 16), vr(VF + (u * 4 + db) * 4, 4), vr(P + 4 * u, 4), vr(O + 16 * db, 16))
    def softmax_ops(self, scur):
        g = []
        for j in range(9):
            ops = []
            if j < 8:
                ops.append("v_exp_f32 v%d, v%d" % (E + 2 * j, scur + 2 * j))
                ops.append("v_exp_f32 v%d, v%d" % (E + 2 * j + 1, scur + 2 * j + 1))
            if j >= 1:
                i = j - 1
                if i == 1:
                    ops.append("v_add_f32 v%d, v%d, v%d" % (TS, E + 0, E + 2)); ops.append("v_add_f32 v%d, v%d, v%d" % (TS2, E + 1, E + 3))
                elif i > 1:
                    ops.append("v_add_f32 v%d, v%d, v%d" % (TS, TS, E + 2 * i)); ops.append("v_add_f32 v%d, v%d, v%d" % (TS2, TS2, E + 2 * i + 1))
                ops.append("v_cvt_pk_bf16_f32 v%d, v%d, v%d" % (P + i, E + 2 * i, E + 2 * i + 1))
            g.append(ops)
        return g
    def phaseA(self, scur, snxt, do_qk):
        a = self.a
        g = self.softmax_ops(scur)
        for j in range(8):
            if do_qk:
                if j == 0: a("s_waitcnt lgkmcnt(10)")
                a(self.qk(j, snxt))
            for o in g[j]: a(o)
        for o in g[8]: a(o)
        a("v_add_f32 v%d, v%d, v%d" % (TS, TS, TS2))
        a("v_cmp_lt_f32 vcc, s44, v%d" % TS)
        rid = self.rare_id; self.rare_id += 1
        a("s_cbranch_vccnz RARE%d" % rid)
        a.label("RET%d" % rid)
        a("v_add_f32 v%d, v%d, v%d" % (LSUM, LSUM, TS))
        self.rare.append((rid, scur, snxt if do_qk else None))
    def phaseB(self, wait_vm, issue_ops, kslot, vslot, barrier=True):
        a = self.a
        if barrier:
            a("s_waitcnt vmcnt(%d) lgkmcnt(0)" % wait_vm)
            a("s_barrier")
        else:
            a("s_waitcnt lgkmcnt(0)")
        kr = self.kreads(kslot) if kslot is not None else []
        iss = list(issue_ops)
        per = (len(iss) + 7) // 8
        for u in range(2):
            for db in range(4):
                a(self.pv(u, db))
                for _ in range(2):
                    if kr: a(kr.pop(0))
                if vslot is not None:
                    for o in self.vread(vslot, u, db): a(o)
                for _ in range(per):
                    if iss: a(iss.pop(0))
        for o in iss: a(o)
    def poll_counter(self, name, soff, target, depth=4):
        a = self.a
        a("s_mov_b64 exec, 1")
        a("s_mov_b32 s41, 0")
        for k in range(depth):
            a("buffer_load_dword v%d, v2, s[24:27], s%d offen sc1" % (12 + k, soff))
            if k < depth - 1: a("s_sleep 2")
        a.label(name)
        for k in range(depth):
            a("s_waitcnt vmcnt(%d)" % (depth - 1))
            a("v_cmp_gt_u32 vcc, %d, v%d" % (target, 12 + k))
            a("s_cbranch_vccz %s_d" % name)
            a("buffer_load_dword v%d, v2, s[24:27], s%d offen sc1" % (12 + k, soff))
        a("s_add_u32 s41, s41, 1")
        a("s_cmp_lt_u32 s41, 0x2000"); a("s_cbranch_scc1 %s" % name)
        a.label("%s_d" % name)
        a("s_mov_b64 exec, -1")

    def emit_rare(self):
        a = self.a
        for rid, scur, snxt in self.rare:
            a.label("RARE%d" % rid)
            a("s_nop 15")
            a("v_max3_f32 v%d, v%d, v%d, v%d" % (T0, scur, scur + 1, scur + 2))
            for i in range(3, 15, 2): a("v_max3_f32 v%d, v%d, v%d, v%d" % (T0, T0, scur + i, scur + i + 1))
            a("v_max_f32 v%d, v%d, v%d" % (T0, T0, scur + 15))
            a("v_mov_b32 v%d, v%d" % (T1, T0))
            a("s_nop 1")
            a("v_permlane32_swap_b32 v%d, v%d" % (T0, T1))
            a("v_max_f32 v%d, v%d, v%d" % (T0, T0, T1))
            a("v_max_f32 v%d, 0, v%d" % (T0, T0))
            a("v_add_f32 v%d, v%d, v%d" % (MREF, MREF, T0))
            a("v_sub_f32 v%d, 0, v%d" % (T1, T0))
            a("v_exp_f32 v%d, v%d" % (T1, T1))
            for i in range(16): a("v_sub_f32 v%d, v%d, v%d" % (NEGM + i, NEGM + i, T0))
            for i in range(16): a("v_sub_f32 v%d, v%d, v%d" % (scur + i, scur + i, T0))
            if snxt is not None:
                for i in range(16): a("v_sub_f32 v%d, v%d, v%d" % (snxt + i, snxt + i, T0))
            a("v_mul_f32 v%d, v%d, v%d" % (LSUM, LSUM, T1))
            for i in range(64): a("v_mul_f32 v%d, v%d, v%d" % (O + i, O + i, T1))
            for grp in self.softmax_ops(scur):
                for o in grp: a(o)
                a("s_nop 0")
            a("v_add_f32 v%d, v%d, v%d" % (TS, TS, TS2))
            a("s_nop 1")
            a("s_branch RET%d" % rid)

    def poll_flags(self, name, voff, soff, reg=12, depth=4):
        a = self.a
        ld = lambda k: "buffer_load_dwordx2 v[%d:%d], v%d, s[24:27], s%d offen sc1" % (reg + 2 * k, reg + 2 * k + 1, voff, soff)
        a("s_mov_b32 s41, 0")
        for k in range(depth):
            a(ld(k))
            if k < depth - 1: a("s_sleep 2")
        a.label(name)
        for k in range(depth):
            a("s_waitcnt vmcnt(%d)" % (depth - 1))
            a("v_cmp_ne_u64 vcc, s[80:81], v[%d:%d]" % (reg + 2 * k, reg + 2 * k + 1))
            a("s_cbranch_vccz %s_d" % name)
            a(ld(k))
        a("s_add_u32 s41, s41, 1")
        a("s_cmp_lt_u32 s41, 0x2000"); a("s_cbranch_scc1 %s" % name)
        a.label("%s_d" % name)

    def build(self):
        a = self.a; st = self.st
        st()
        a("s_cmp_ge_u32 s2, 256"); a("s_cbranch_scc1 K2_end")
        for reg, off in ((72, 24), (68, 0), (12, 8), (16, 16), (24, 56), (56, 32), (60, 40), (76, 48)):
            a("s_load_dwordx2 s[%d:%d], s[0:1], %d" % (reg, reg + 1, off))
        a("v_lshrrev_b32 v1, 6, v0")
        a("v_and_b32 v0, 63, v0")
        a("v_readfirstlane_b32 s20, v1")
        a("s_and_b32 s21, s2, 7")
        a("s_lshr_b32 s22, s2, 3"); a("s_and_b32 s23, s22, 3")
        a("s_lshr_b32 s22, s22, 2")
        a("s_lshl_b32 s47, s21, 2"); a("s_add_u32 s47, s47, s23")
        a("s_mov_b32 s74, 0x400000"); a("s_mov_b32 s75, 0x20000"); a("s_mov_b32 s70, 0x40000"); a("s_mov_b32 s71, 0x20000")
        a("v_lshrrev_b32 v2, 4, v0"); a("v_and_b32 v4, 15, v0"); a("v_lshlrev_b32 v3, 2, v2"); a("v_xor_b32 v3, v3, v4")
        a("v_lshlrev_b32 v3, 4, v3"); a("v_lshlrev_b32 v5, 13, v2"); a("v_add_u32 v20, v5, v3")
        a("s_lshl_b32 s37, s20, 3"); a("s_and_b32 s37, s37, 15")
        a("v_add_u32 v3, s37, v2"); a("v_xor_b32 v5, v3, v4"); a("v_lshlrev_b32 v5, 4, v5"); a("v_lshlrev_b32 v6, 10, v2"); a("v_add_u32 v21, v5, v6")
        a("v_add_u32 v3, 4, v3"); a("v_xor_b32 v5, v3, v4"); a("v_lshlrev_b32 v5, 4, v5"); a("v_add_u32 v22, v5, v6")
        a("s_add_u32 s43, s22, s23"); a("s_and_b32 s43, s43, 3")
        a("s_lshl_b32 s33, s22, 15"); a("s_lshl_b32 s34, s20, 13"); a("s_add_u32 s33, s33, s34")
        a("s_lshl_b32 s34, s20, 11")
        a("s_lshl_b32 s30, s20, 18"); a("s_lshl_b32 s31, s47, 8"); a("s_add_u32 s30, s30, s31")
        a("s_lshl_b32 s32, s20, 13"); a("s_add_u32 s32, s32, 8192")
        if CODEWARM:
            a("s_lshr_b32 s38, s2, 3"); a("s_cmp_ge_u32 s38, %d" % CODEWARM); a("s_cbranch_scc1 K2_ncw")
            a("s_cmp_lg_u32 s20, 3"); a("s_cbranch_scc1 K2_ncw")
            a("s_getpc_b64 s[40:41]")
            a("s_lshl_b32 s38, s38, 13")
            a("v_lshlrev_b32 v24, 7, v0"); a("v_add_u32 v24, s38, v24")
            a("v_mov_b32 v25, s41")
            a("v_add_co_u32 v24, vcc, s40, v24")
            a("v_addc_co_u32 v25, vcc, 0, v25, vcc")
            a("global_load_dword v26, v[24:25], off")
            a.label("K2_ncw")
        a("s_waitcnt lgkmcnt(0)")
        QS = lambda i: (3 - i) * 40960
        for i in range(4):
            a("s_add_u32 s38, s43, %d" % i); a("s_and_b32 s38, s38, 3")
            a("s_lshl_b32 s39, s38, 20"); a("s_add_u32 s39, s39, s30")
            for e in range(8):
                a("s_add_u32 m0, s32, %d" % (QS(i) + e * 1024))
                a("s_add_u32 s40, s39, %d" % (e * 32768))
                a("buffer_load_dwordx4 v20, s[72:75], s40 offen lds")
            a("s_lshl_b32 s39, s38, 8"); a("s_add_u32 s39, s39, s33")
            a("s_add_u32 m0, s34, %d" % QS(i))
            a("s_add_u32 s40, s39, 4096")
            a("buffer_load_dwordx4 v21, s[68:71], s39 offen lds")
            a("s_add_u32 m0, s34, %d" % (QS(i) + 1024))
            a("s_nop 0")
            a("buffer_load_dwordx4 v22, s[68:71], s40 offen lds")
        for reg, nb in ((12, 0x2000000), (16, 0x2000000), (24, 0x10000000), (56, 4096 * 512 * 2), (60, 8 * 32 * 512 * 2), (76, 256)):
            a("s_mov_b32 s%d, 0x%x" % (reg + 2, nb)); a("s_mov_b32 s%d, 0x20000" % (reg + 3))
        a("s_lshl_b32 s28, s22, 3"); a("s_add_u32 s28, s28, s21")
        a("s_lshl_b32 s29, s28, 19"); a("s_lshl_b32 s30, s23, 17"); a("s_add_u32 s29, s29, s30")
        a("s_mul_i32 s54, s28, 0x%x" % GS); a("s_add_u32 s54, s54, 0x%x" % WS_G)
        a("s_mul_i32 s55, s22, 0x%x" % BS); a("s_add_u32 s55, s55, 0x%x" % WS_B)
        a("s_cmp_lg_u32 s20, 0"); a("s_cbranch_scc1 K2_noat")
        a("s_memrealtime s[82:83]")
        a("v_mov_b32 v30, 0"); a("v_mov_b32 v31, 0"); a("v_mov_b32 v7, 0")
        a("s_lshl_b32 s38, s22, 5")
        a("s_waitcnt lgkmcnt(0)")
        a("s_or_b32 s82, s82, 1")
        a("v_mov_b32 v28, s82"); a("v_mov_b32 v29, s83")
        a("s_mov_b64 exec, 1")
        a("buffer_atomic_cmpswap_x2 v[28:31], v7, s[76:79], s38 offen sc0 sc1")
        a("s_mov_b64 exec, -1")
        a.label("K2_noat")
        a("v_lshrrev_b32 v2, 4, v0"); a("v_and_b32 v3, 15, v0")
        a("s_lshl_b32 s31, s20, 3"); a("s_and_b32 s31, s31, 15")
        a("v_add_u32 v4, s31, v2")
        a("v_xor_b32 v5, v4, v3"); a("v_lshlrev_b32 v5, 4, v5")
        a("v_lshlrev_b32 v6, 8, v2")
        a("v_add_u32 v%d, v5, v6" % VK0)
        a("v_add_u32 v4, 4, v4")
        a("v_xor_b32 v5, v4, v3"); a("v_lshlrev_b32 v5, 4, v5")
        a("v_add_u32 v%d, v5, v6" % VK1)
        a("v_lshlrev_b32 v5, 2, v2"); a("v_xor_b32 v5, v5, v3"); a("v_lshlrev_b32 v5, 4, v5")
        a("v_add_u32 v%d, v5, v6" % VV)
        a("v_lshlrev_b32 v%d, 4, v0" % LANE16)
        a("s_lshl_b32 s36, s20, 11")
        a("s_add_u32 s66, s29, s36")
        if ROT: a("s_lshr_b32 s64, s2, 3"); a("s_and_b32 s64, s64, 15")
        else: a("s_mov_b32 s64, 0")
        a("s_mov_b32 s65, s64")
        a("s_lshl_b32 s48, s47, 7"); a("s_add_u32 s48, s48, s20"); a("s_lshl_b32 s48, s48, 10")
        a("s_mul_i32 s49, s20, %d" % WOROW)
        a("v_and_b32 v4, 15, v0"); a("v_lshrrev_b32 v4, 2, v4"); a("v_lshrrev_b32 v5, 5, v0")
        a("v_lshlrev_b32 v6, 3, v5"); a("v_add_u32 v6, v6, v4"); a("v_lshlrev_b32 v6, 8, v6")
        a("v_xor_b32 v7, s20, v4"); a("v_lshlrev_b32 v7, 6, v7"); a("v_add_u32 v6, v6, v7")
        a("v_lshrrev_b32 v7, 4, v0"); a("v_and_b32 v7, 1, v7"); a("v_lshlrev_b32 v7, 5, v7"); a("v_add_u32 v6, v6, v7")
        a("v_and_b32 v7, 3, v0"); a("v_lshlrev_b32 v7, 3, v7"); a("v_add_u32 v6, v6, v7")
        a("v_add_u32 v6, %d, v6" % (8192 + QS(0)))
        a("v_and_b32 v1, 31, v0"); a("v_and_b32 v7, 15, v1"); a("v_xor_b32 v7, v7, v5"); a("v_lshlrev_b32 v7, 4, v7"); a("v_lshlrev_b32 v1, 8, v1"); a("v_add_u32 v1, %d, v1" % QS(0))
        for e in range(8):
            a("v_xor_b32 v%d, %d, v7" % (12 + e, e * 32)); a("v_add_u32 v%d, v%d, v1" % (12 + e, 12 + e))
        ACC = SB[0]; AF = [KF, O]; BF = [VF, O + 32]
        def qreads(i):
            out = []
            for e in range(8):
                fr = AF[i % 2] + 4 * e; br = BF[i % 2] + 4 * e
                out += ["ds_read_b64_tr_b16 v[%d:%d], v6 offset:%d" % (fr, fr + 1, e * 4096),
                        "ds_read_b64_tr_b16 v[%d:%d], v6 offset:%d" % (fr + 2, fr + 3, e * 4096 + 1024),
                        "ds_read_b128 v[%d:%d], v%d" % (br, br + 3, 12 + e)]
            return out
        tr = [2, 1, 1, 1] if self.trickle else [0, 0, 0, 0]
        def dummy(n):
            out = []
            for _ in range(n):
                out += ["s_mov_b32 m0, %d" % SCRL, "s_mov_b32 s38, 0x4000000", "buffer_load_dwordx4 v%d, s[56:59], s38 offen lds" % LANE16]
            return out
        for i in range(4):
            if i < 3: a("s_waitcnt vmcnt(%d)" % (10 * (3 - i)))
            else:
                a("s_waitcnt vmcnt(%d)" % ((6, 2, 0)[LATE0] + sum(4 + tr[t] for t in (1, 2)[:PRE2])))
                a("s_cmp_lg_u32 s20, 0"); a("s_cbranch_scc1 K2_nonl")
                a("v_mov_b32 v1, s82"); a("v_mov_b32 v2, s83")
                a("v_cmp_eq_u32 vcc, 0, v28")
                a("v_cndmask_b32 v28, v28, v1, vcc"); a("v_cndmask_b32 v29, v29, v2, vcc")
                a("v_mov_b32 v1, %d" % NONL)
                a("s_mov_b64 exec, 1")
                a("ds_write_b64 v1, v[28:29]")
                a("s_mov_b64 exec, -1")
                a("s_waitcnt lgkmcnt(0)")
                a.label("K2_nonl")
            a("s_barrier")
            if i == 0: st()
            if i == 2:
                if LATE0 == 0:
                    for o in self.issue(0, None, 'real', None) + self.issue(1, 0, 'real', 'real'): a(o)
                elif LATE0 == 1:
                    for o in self.issue(0, None, 'real', None): a(o)
                for t in (1, 2)[:PRE2]:
                    for o in self.issue(t + 1, t, 'real', 'real') + dummy(tr[t]): a(o)
            for o in qreads(i): a(o)
            if i < 3:
                a("v_subrev_u32 v6, 40960, v6")
                for e in range(8): a("v_subrev_u32 v%d, 40960, v%d" % (12 + e, 12 + e))
            if i == 3:
                a("v_mov_b32 v1, %d" % NONL); a("ds_read_b64 v[2:3], v1")
            for e in range(8):
                a("s_waitcnt lgkmcnt(%d)" % min(15, 3 * (7 - e) + (1 if i == 3 else 0)))
                fr = AF[i % 2] + 4 * e; br = BF[i % 2] + 4 * e
                a("v_mfma_f32_32x32x16_bf16 %s, v[%d:%d], v[%d:%d], %s" % (vr(ACC, 16), fr, fr + 3, br, br + 3, "0" if (i == 0 and e == 0) else vr(ACC, 16)))
        st()
        a("s_waitcnt lgkmcnt(0)")
        a("v_readfirstlane_b32 s80, v2"); a("v_readfirstlane_b32 s81, v3")
        a("s_mov_b32 s50, 0x%x" % CSCALE)
        a("s_lshl_b32 s34, s23, 13"); a("s_add_u32 s34, s34, s54"); a("s_add_u32 s34, s34, 0x%x" % G_QX); a("s_add_u32 s34, s34, s36")
        for i in range(16): a("v_mul_f32 v%d, s50, v%d" % (ACC + i, ACC + i))
        for i in range(8): a("v_cvt_pk_bf16_f32 v%d, v%d, v%d" % (E + i, ACC + 2 * i, ACC + 1 + 2 * i))
        for u in range(2):
            a("v_permlane32_swap_b32 v%d, v%d" % (E + 4 * u, E + 2 + 4 * u))
            a("v_permlane32_swap_b32 v%d, v%d" % (E + 1 + 4 * u, E + 3 + 4 * u))
        a("buffer_store_dwordx4 %s, v%d, s[24:27], s34 offen sc1" % (vr(E, 4), LANE16))
        a("buffer_store_dwordx4 %s, v%d, s[24:27], s34 offen offset:1024 sc1" % (vr(E + 4, 4), LANE16))
        a("v_and_b32 v1, 31, v0"); a("v_lshrrev_b32 v2, 5, v0")
        a("v_xor_b32 v3, v1, v2"); a("v_and_b32 v3, 15, v3"); a("v_lshlrev_b32 v3, 4, v3")
        a("v_lshlrev_b32 v6, 8, v1"); a("v_add_u32 v6, 0x%x, v6" % KRING)
        for j in range(8):
            a("v_xor_b32 v%d, %d, v3" % (KRA + j, j * 32))
            a("v_add_u32 v%d, v%d, v6" % (KRA + j, KRA + j))
        a("v_and_b32 v3, 15, v0"); a("v_lshrrev_b32 v3, 2, v3")
        a("v_lshlrev_b32 v6, 2, v2"); a("v_add_u32 v6, v6, v3"); a("v_lshlrev_b32 v6, 8, v6")
        a("v_lshrrev_b32 v4, 4, v0"); a("v_and_b32 v4, 1, v4"); a("v_lshlrev_b32 v4, 5, v4"); a("v_add_u32 v6, v6, v4")
        a("v_and_b32 v4, 3, v0"); a("v_lshlrev_b32 v4, 3, v4"); a("v_add_u32 v6, v6, v4")
        a("v_add_u32 v6, 0x%x, v6" % VRING)
        for db in range(4):
            a("v_xor_b32 v4, %d, v3" % db); a("v_lshlrev_b32 v4, 6, v4")
            a("v_add_u32 v%d, v6, v4" % (VRA + db))
        for i in range(64): a("v_mov_b32 v%d, 0" % (O + i))
        for i in range(16): a("v_mov_b32 v%d, 0" % (NEGM + i))
        a("v_mov_b32 v%d, 0" % LSUM)
        a("s_mov_b32 s44, 0x%x" % THRESH)
        a("s_mov_b32 s42, 0")
        a("v_mov_b32 v%d, s80" % (E + 8)); a("v_mov_b32 v%d, s81" % (E + 9)); a("v_mov_b32 v7, 0")
        a("s_lshl_b32 s37, s23, 5"); a("s_lshl_b32 s38, s20, 3"); a("s_add_u32 s37, s37, s38"); a("s_add_u32 s37, s37, s54"); a("s_add_u32 s37, s37, 0x%x" % G_F0)
        a("s_waitcnt vmcnt(0)")
        st()
        a("s_mov_b64 exec, 1")
        a("buffer_store_dwordx2 v[%d:%d], v7, s[24:27], s37 offen sc1" % (E + 8, E + 9))
        if LATE0 == 0: a("s_barrier")
        a("s_mov_b64 exec, -1")
        if LATE0 == 2:
            for o in self.issue(0, None, 'real', None): a(o)
        if LATE0 >= 1:
            for o in self.issue(1, 0, 'real', 'real'): a(o)
        for t in (1, 2)[PRE2:PRE2 + EARLY]:
            for o in self.issue(t + 1, t, 'real', 'real') + dummy(tr[t]): a(o)
        a("s_mov_b64 exec, 0xf")
        a("v_lshlrev_b32 v7, 3, v0")
        a("s_lshl_b32 s37, s20, 5"); a("s_add_u32 s37, s37, s54"); a("s_add_u32 s37, s37, 0x%x" % G_F0)
        self.poll_flags("POLL0", 7, 37, reg=VF)
        a("s_mov_b64 exec, -1")
        st()
        a("s_lshl_b32 s33, s20, 13"); a("s_add_u32 s33, s33, s54"); a("s_add_u32 s33, s33, 0x%x" % G_QX); a("s_add_u32 s37, s33, 4096")
        for j in range(8):
            a("buffer_load_dwordx4 %s, v%d, s[24:27], s%d offen offset:%d sc1" % (ar(4 * j, 4), LANE16, 33 if j < 4 else 37, (j % 4) * 1024))
        for t in (1, 2)[PRE2 + EARLY:]:
            for o in self.issue(t + 1, t, 'real', 'real') + dummy(tr[t]): a(o)
        if LATE0 == 0:
            for o in self.kreads(0): a(o)
            a("s_waitcnt vmcnt(%d) lgkmcnt(0)" % sum(4 + tr[t] for t in (1, 2)[PRE2 + EARLY:]))
        else:
            a("s_waitcnt vmcnt(%d)" % sum(4 + tr[t] for t in (1, 2)[PRE2 + EARLY:]))
            a("s_barrier")
            for o in self.kreads(0): a(o)
            a("s_waitcnt lgkmcnt(0)")
        for j in range(8): a(self.qk(j, SB[0]))
        a("s_barrier")
        for o in self.issue(0, 3, 'real', 'real') + dummy(tr[3]): a(o)
        for o in self.kreads(1): a(o)
        for u in range(2):
            for db in range(4):
                for o in self.vread(0, u, db): a(o)
        if self.pretouch:
            a("v_mul_u32_u24 v1, 0x%x, v0" % 0x8000)
            a("s_mov_b64 s[50:51], exec"); a("s_mov_b64 exec, 0x1f")
            a("buffer_load_dword v2, v1, s[24:27], s54 offen")
            a("v_lshlrev_b32 v1, 18, v0")
            a("buffer_load_dword v3, v1, s[24:27], s55 offen")
            a("s_mov_b64 exec, 1")
            a("s_lshl_b32 s38, s22, 15")
            a("v_mov_b32 v1, 0")
            a("buffer_load_dword v4, v1, s[60:63], s38 offen")
            a("s_mov_b64 exec, s[50:51]")
        s0 = SB[0]
        a("v_max3_f32 v%d, v%d, v%d, v%d" % (T0, s0, s0 + 1, s0 + 2))
        for i in range(3, 15, 2): a("v_max3_f32 v%d, v%d, v%d, v%d" % (T0, T0, s0 + i, s0 + i + 1))
        a("v_max_f32 v%d, v%d, v%d" % (T0, T0, s0 + 15))
        a("v_mov_b32 v%d, v%d" % (T1, T0))
        a("v_permlane32_swap_b32 v%d, v%d" % (T0, T1))
        a("v_max_f32 v%d, v%d, v%d" % (MREF, T0, T1))
        for i in range(16): a("v_sub_f32 v%d, 0, v%d" % (NEGM + i, MREF))
        for i in range(16): a("v_sub_f32 v%d, v%d, v%d" % (s0 + i, s0 + i, MREF))
        self.dyn_limit = 2
        st()
        a.label("K2_loop")
        for k in range(4):
            self.phaseA(SB[k % 2], SB[(k + 1) % 2], True)
            iss = self.issue((k + 1) % 4, k, 'dyn' if k == 3 else 'real', 'real') + self.wo_rows(tr[k])
            self.phaseB(8 + sum(tr) - tr[k], iss, (k + 2) % 4, (k + 1) % 4)
        a("s_add_u32 s42, s42, 1"); a("s_cmp_lt_u32 s42, 3")
        a("s_cbranch_scc1 K2_loop")
        st()
        x12 = 2 if (self.trickle and XTR) else 0; x13 = 1 if (self.trickle and XTR) else 0
        self.phaseA(SB[0], SB[1], True)
        self.phaseB(8 + tr[1] + tr[2] + tr[3], self.wo_rows(x12), 2, 1)
        self.phaseA(SB[1], SB[0], True)
        self.phaseB(4 + tr[2] + tr[3] + x12, self.wo_rows(x13), 3, 2)
        self.phaseA(SB[0], SB[1], True)
        self.phaseB(0, [], None, None, barrier=False)
        self.phaseA(SB[1], None, False)
        a("s_waitcnt vmcnt(0)")
        a("s_barrier")
        st()
        for db in range(4):
            for u in range(2):
                for o in self.vread(3, u, db): a(o)
        nrow_done = (15 + x12 + x13) if self.trickle else 0
        a("v_mov_b32 v%d, v%d" % (T0, LSUM))
        a("s_lshl_b32 s46, s20, 15"); a("s_lshl_b32 s37, s23, 13"); a("s_add_u32 s46, s46, s37"); a("s_add_u32 s46, s46, s54")
        a("v_permlane32_swap_b32 v%d, v%d" % (LSUM, T0))
        a("s_lshl_b32 s37, s20, 11"); a("s_lshl_b32 s38, s23, 9"); a("s_add_u32 s37, s37, s38"); a("s_add_u32 s37, s37, s54"); a("s_add_u32 s37, s37, 0x20000")
        a("v_add_f32 v%d, v%d, v%d" % (LSUM, LSUM, T0))
        a("v_mov_b32 v%d, 0" % TS); a("v_mov_b32 v%d, 0" % TS2)
        a("s_mov_b32 s12, s24"); a("s_mov_b32 s13, s25"); a("s_mov_b32 s15, 0x20000")
        a("s_cmp_eq_u32 s20, s23"); a("s_cselect_b32 s14, 0, 0x10000000")
        a("v_cmp_gt_u32 vcc, 32, v0")
        a("s_and_saveexec_b64 s[50:51], vcc")
        a("buffer_store_dwordx4 v[%d:%d], v%d, s[12:15], s37 offen sc1" % (MREF, TS2, LANE16))
        a("s_mov_b64 exec, s[50:51]")
        a("s_add_u32 s38, s46, 4096")
        n = 16
        def pub(db):
            for i in (2 * db, 2 * db + 1):
                for q in range(4):
                    a("v_cvt_pk_bf16_f32 v%d, v%d, v%d" % (KF + 4 * i + q, O + 8 * i + 2 * q, O + 8 * i + 2 * q + 1))
                a("buffer_store_dwordx4 %s, v%d, s[12:15], s%d offen offset:%d sc1" % (vr(KF + 4 * i, 4), LANE16, 46 if i < 4 else 38, (i % 4) * 1024))
        for db in range(4):
            a("s_waitcnt lgkmcnt(%d)" % (12 - 4 * db))
            a(self.pv(0, db)); a(self.pv(1, db))
            if db >= 1: pub(db - 1)
        pub(3)
        st()
        a("s_cmp_lg_u32 s20, s23"); a("s_cbranch_scc1 K2_nown")
        a("v_add_u32 v1, %d, v%d" % (OWNP, LANE16))
        for i in range(8): a("ds_write_b128 v1, %s offset:%d" % (vr(KF + 4 * i, 4), i * 1024))
        a("s_mov_b64 exec, 0xffffffff") if False else None
        a("v_cmp_gt_u32 vcc, 32, v0"); a("s_and_saveexec_b64 s[50:51], vcc")
        a("ds_write_b128 v1, v[%d:%d] offset:8192" % (MREF, TS2))
        a("s_mov_b64 exec, s[50:51]")
        a.label("K2_nown")
        a("s_barrier")
        a("s_lshl_b32 s40, s20, 5"); a("s_lshl_b32 s38, s23, 3"); a("s_add_u32 s40, s40, s38"); a("s_add_u32 s40, s40, s54"); a("s_add_u32 s40, s40, 0x%x" % G_F1)
        a("v_mov_b32 v4, s80"); a("v_mov_b32 v5, s81"); a("v_mov_b32 v2, 0")
        a("s_waitcnt vmcnt(0)")
        st()
        a("s_mov_b64 exec, 1")
        a("buffer_store_dwordx2 v[4:5], v2, s[12:15], s40 offen sc1")
        a("s_mov_b64 exec, -1")
        for o in self.wo_rows(32 - nrow_done): a(o)
        a("s_cmp_lg_u32 s20, 0"); a("s_cbranch_scc1 K2_nopoll")
        a("s_lshl_b32 s40, s23, 5"); a("s_add_u32 s40, s40, s54"); a("s_add_u32 s40, s40, 0x%x" % G_F1)
        a("v_lshlrev_b32 v7, 3, v0")
        a("s_lshl_b32 s38, 1, s23"); a("s_andn2_b32 s38, 0xf, s38"); a("s_mov_b32 s39, 0"); a("s_mov_b64 exec, s[38:39]")
        self.poll_flags("K2_poll", 7, 40, reg=12)
        a("s_mov_b64 exec, -1")
        a.label("K2_nopoll")
        a("s_waitcnt lgkmcnt(0)")
        a("s_barrier")
        st()
        a("v_and_b32 v3, 31, v0"); a("v_lshlrev_b32 v3, 4, v3")
        a("s_lshl_b32 s37, s23, 11"); a("s_add_u32 s37, s37, s54"); a("s_add_u32 s37, s37, 0x20000")
        a("s_lshl_b32 s46, s23, 15"); a("s_add_u32 s46, s46, s54"); a("s_add_u32 s46, s46, s36")
        for k in range(1, 4):
            a("s_add_u32 s38, s23, %d" % k); a("s_and_b32 s38, s38, 3"); a("s_lshl_b32 s39, s38, 9"); a("s_add_u32 s39, s39, s37")
            a("buffer_load_dwordx4 v[%d:%d], v3, s[24:27], s39 offen sc1" % (32 + 4 * k, 35 + 4 * k))
        for k in range(1, 4):
            a("s_add_u32 s38, s23, %d" % k); a("s_and_b32 s38, s38, 3"); a("s_lshl_b32 s39, s38, 13"); a("s_add_u32 s39, s39, s46")
            for i in range(2):
                r = 64 + 8 * k + 4 * i
                a("buffer_load_dwordx4 v[%d:%d], v%d, s[24:27], s39 offen offset:%d sc1" % (r, r + 3, LANE16, i * 1024))
        a("v_add_u32 v1, %d, v3" % (OWNP + 8192)); a("ds_read_b128 v[32:35], v1")
        a("s_add_u32 s39, s36, %d" % OWNP); a("v_add_u32 v1, s39, v%d" % LANE16)
        a("ds_read_b128 v[64:67], v1"); a("ds_read_b128 v[68:71], v1 offset:1024")
        a("v_and_b32 v4, 15, v0"); a("v_lshrrev_b32 v4, 2, v4")
        a("v_lshrrev_b32 v5, 5, v0"); a("v_lshlrev_b32 v5, 2, v5"); a("v_add_u32 v4, v4, v5")
        a("v_mul_u32_u24 v4, %d, v4" % WOROW)
        a("v_lshrrev_b32 v5, 4, v0"); a("v_and_b32 v5, 1, v5"); a("v_lshlrev_b32 v5, 5, v5"); a("v_add_u32 v4, v4, v5")
        a("v_and_b32 v5, 3, v0"); a("v_lshlrev_b32 v5, 3, v5"); a("v_add_u32 v4, v4, v5")
        a("s_lshl_b32 s38, s20, 8"); a("v_add_u32 v4, s38, v4")
        a("v_add_u32 v5, %d, v4" % (64 * WOROW))
        a("s_waitcnt vmcnt(6) lgkmcnt(0)")
        a("v_max3_f32 v16, v32, v36, v40"); a("v_max_f32 v16, v16, v44")
        for s in range(4): a("v_sub_f32 v%d, v%d, v16" % (32 + 4 * s, 32 + 4 * s))
        for s in range(4): a("v_exp_f32 v%d, v%d" % (32 + 4 * s, 32 + 4 * s))
        a("v_mul_f32 v17, v32, v33"); a("v_fmac_f32 v17, v36, v37"); a("v_fmac_f32 v17, v40, v41"); a("v_fmac_f32 v17, v44, v45")
        a("v_rcp_f32 v17, v17")
        for s in range(4): a("v_mul_f32 v%d, v%d, v17" % (32 + 4 * s, 32 + 4 * s))
        a("s_mov_b32 s40, 0xffff0000")
        a("s_waitcnt vmcnt(0)")
        st()
        for i in range(8):
            for s in range(4):
                r = 64 + 8 * s + i
                a("v_lshlrev_b32 v18, 16, v%d" % r); a("v_and_b32 v19, s40, v%d" % r)
                if s == 0:
                    a("v_mul_f32 v20, v18, v32"); a("v_mul_f32 v21, v19, v32")
                else:
                    a("v_fmac_f32 v20, v18, v%d" % (32 + 4 * s)); a("v_fmac_f32 v21, v19, v%d" % (32 + 4 * s))
            a("v_cvt_pk_bf16_f32 v%d, v20, v21" % (24 + i))
        a("s_add_u32 s39, s36, %d" % BIMG)
        a("v_add_u32 v6, s39, v%d" % LANE16)
        a("ds_write_b128 v6, v[24:27]"); a("ds_write_b128 v6, v[28:31] offset:1024")
        a("v_add_u32 v6, %d, v%d" % (BIMG, LANE16))
        a("s_waitcnt lgkmcnt(0)")
        a("s_barrier")
        for i in range(8): a("ds_read_b128 v[%d:%d], v6 offset:%d" % (32 + 4 * i, 35 + 4 * i, i * 1024))
        seq = [(nt, db, u) for nt in range(4) for db in range(4) for u in range(2)]
        AFR = 64; ACC = 168
        a("s_lshl_b32 s34, s20, 18"); a("s_lshl_b32 s35, s47, 10"); a("s_add_u32 s34, s34, s35"); a("s_add_u32 s34, s34, s55")
        def reads(n):
            nt, db, u = seq[n]
            fr = AFR + 4 * (n % 8)
            base = 4 if db < 2 else 5
            off = ((db % 2) * 32 + 16 * u) * WOROW + nt * 64
            return ["ds_read_b64_tr_b16 v[%d:%d], v%d offset:%d" % (fr, fr + 1, base, off),
                    "ds_read_b64_tr_b16 v[%d:%d], v%d offset:%d" % (fr + 2, fr + 3, base, off + 8 * WOROW)]
        def pub2(nt):
            for u in range(2):
                r = 96 + 4 * ((2 * nt + u) % 4)
                for q in range(4):
                    a("v_cvt_pk_bf16_f32 v%d, v%d, v%d" % (r + q, ACC + 16 * nt + 8 * u + 2 * q, ACC + 16 * nt + 8 * u + 2 * q + 1))
                a("buffer_store_dwordx4 v[%d:%d], v%d, s[24:27], s34 offen sc1" % (r, r + 3, LANE16))
                a("s_add_u32 s34, s34, 0x8000")
        D = 6
        for n in range(D):
            for o in reads(n): a(o)
        for n in range(32):
            nt, db, u = seq[n]
            fr = AFR + 4 * (n % 8)
            rem = min(D - 1, 31 - n)
            a("s_waitcnt lgkmcnt(%d)" % (2 * rem))
            bq = 32 + (db * 2 + u) * 4
            first = (db == 0 and u == 0)
            acc = "v[%d:%d]" % (ACC + 16 * nt, ACC + 16 * nt + 15)
            a("v_mfma_f32_32x32x16_bf16 %s, v[%d:%d], v[%d:%d], %s" % (acc, fr, fr + 3, bq, bq + 3, "0" if first else acc))
            if n + D < 32:
                for o in reads(n + D): a(o)
            if n % 8 == 2 and nt >= 1: pub2(nt - 1)
        st()
        pub2(3)
        a("s_lshl_b32 s40, s20, 11"); a("s_lshl_b32 s38, s47, 3"); a("s_add_u32 s40, s40, s38"); a("s_add_u32 s40, s40, s55"); a("s_add_u32 s40, s40, 0x100000")
        a("v_mov_b32 v4, s80"); a("v_mov_b32 v5, s81"); a("v_lshlrev_b32 v2, 8, v0")
        a("s_waitcnt vmcnt(0)")
        st()
        a("s_mov_b64 exec, 0xff")
        a("buffer_store_dwordx2 v[4:5], v2, s[24:27], s40 offen sc1")
        a("s_mov_b64 exec, -1")
        a("s_cmp_lg_u32 s20, 0"); a("s_cbranch_scc1 K2_polled2")
        a("s_lshl_b32 s40, s47, 8"); a("s_add_u32 s40, s40, s55"); a("s_add_u32 s40, s40, 0x100000")
        a("v_lshlrev_b32 v7, 3, v0")
        a("s_mov_b32 s38, -1"); a("s_mov_b32 s39, 0"); a("s_mov_b64 exec, s[38:39]")
        self.poll_flags("K2_poll2", 7, 40, reg=12)
        a("s_mov_b64 exec, -1")
        a.label("K2_polled2")
        a("s_barrier")
        st()
        a("s_lshl_b32 s30, s47, 15"); a("s_lshl_b32 s31, s20, 13"); a("s_add_u32 s30, s30, s31"); a("s_add_u32 s30, s30, s55")
        for i in range(8):
            if i == 4: a("s_add_u32 s30, s30, 4096")
            a("buffer_load_dwordx4 v[%d:%d], v%d, s[24:27], s30 offen offset:%d sc1" % (32 + 4 * i, 35 + 4 * i, LANE16, (i % 4) * 1024))
        a("s_mov_b32 s40, 0xffff0000")
        a("v_add_u32 v3, s36, v%d" % LANE16)
        AC = 64
        for i in range(8):
            a("s_waitcnt vmcnt(%d)" % (7 - i))
            for q in range(4):
                r = 32 + 4 * i + q
                if i == 0:
                    a("v_lshlrev_b32 v%d, 16, v%d" % (AC + 2 * q, r)); a("v_and_b32 v%d, s40, v%d" % (AC + 1 + 2 * q, r))
                else:
                    a("v_lshlrev_b32 v4, 16, v%d" % r); a("v_and_b32 v5, s40, v%d" % r)
                    a("v_add_f32 v%d, v%d, v4" % (AC + 2 * q, AC + 2 * q)); a("v_add_f32 v%d, v%d, v5" % (AC + 1 + 2 * q, AC + 1 + 2 * q))
        st()
        a("ds_write_b128 v3, v[%d:%d]" % (AC, AC + 3)); a("ds_write_b128 v3, v[%d:%d] offset:1024" % (AC + 4, AC + 7))
        a("s_waitcnt lgkmcnt(0)"); a("s_barrier")
        a("s_cmp_lg_u32 s20, 0"); a("s_cbranch_scc1 K2_fin")
        for w in range(1, 4):
            a("ds_read_b128 v[%d:%d], v%d offset:%d" % (72 + 8 * w, 75 + 8 * w, LANE16, w * 2048))
            a("ds_read_b128 v[%d:%d], v%d offset:%d" % (76 + 8 * w, 79 + 8 * w, LANE16, w * 2048 + 1024))
        a("v_and_b32 v3, 31, v0"); a("v_lshlrev_b32 v3, 10, v3")
        a("v_lshrrev_b32 v4, 5, v0"); a("v_lshlrev_b32 v4, 4, v4"); a("v_add_u32 v3, v3, v4")
        a("s_lshl_b32 s32, s22, 15"); a("s_lshl_b32 s33, s47, 5"); a("s_add_u32 s32, s32, s33")
        a("s_waitcnt lgkmcnt(0)")
        for w in range(1, 4):
            for q in range(8): a("v_add_f32 v%d, v%d, v%d" % (AC + q, AC + q, 72 + 8 * w + q))
        for q in range(4): a("v_cvt_pk_bf16_f32 v%d, v%d, v%d" % (20 + q, AC + 2 * q, AC + 1 + 2 * q))
        a("v_permlane32_swap_b32 v20, v22"); a("v_permlane32_swap_b32 v21, v23")
        a("buffer_store_dwordx4 v[20:23], v3, s[60:63], s32 offen")
        a.label("K2_fin")
        st()
        st.flush(2, 20, 24, "K2_end2")
        a.label("K2_end")
        a("s_endpgm")
        self.emit_rare()
        return a

if __name__ == "__main__":
    out = sys.argv[1] if len(sys.argv) > 1 else "v12.s"
    POL = "" if "--plain" in sys.argv else ("sc1 nt" if "--sc1nt" in sys.argv else "nt")
    if "--norot" in sys.argv: ROT = False
    for x in sys.argv:
        if x.startswith("--early="): EARLY = int(x.split("=")[1])
        if x.startswith("--pre2="): PRE2 = int(x.split("=")[1])
        if x.startswith("--late0="): LATE0 = int(x.split("=")[1])
        if x == "--noxtr": XTR = False
        if x == "--xtr": XTR = True
        if x.startswith("--codewarm="): CODEWARM = int(x.split("=")[1])
        if x.startswith("--pick="): PICK = set(int(v) for v in x.split("=")[1].split(","))
    k2 = Main(POL, stamps=("--stampm" in sys.argv), trickle=("--notrickle" not in sys.argv), pretouch=("--nopretouch" not in sys.argv)).build()
    build_file([(MAIN, k2, 256, 256, LDS_MAIN, NV + 32, NV, 102)], out)
```

```python
import sys, struct, math
from asmlib import *

MAIN = "standalone__gqa_block_cached__near_ridge_kernel"
WS_Q = 0x0
WS_G = 0x400000
GS = 0x2C000
G_F1 = 0x22000
G_F0 = 0x22080
G_QX = 0x23000
WS_B = 0x1400000
BS = 0x110000
def f32bits(x): return struct.unpack("<I", struct.pack("<f", x))[0]
CSCALE = f32bits((128 ** -0.5) * math.log2(math.e))
THRESH = f32bits(2.0 ** 20)

def srd(a, dst, lo, hi, nbytes):
    a("s_mov_b32 s%d, s%d" % (dst, lo)); a("s_mov_b32 s%d, s%d" % (dst + 1, hi))
    a("s_mov_b32 s%d, 0x%x" % (dst + 2, nbytes)); a("s_mov_b32 s%d, 0x20000" % (dst + 3))
def vr(b, n=1): return "v%d" % b if n == 1 else "v[%d:%d]" % (b, b + n - 1)
def ar(b, n=1): return "a%d" % b if n == 1 else "a[%d:%d]" % (b, b + n - 1)

def kv_base(a, idreg, dst, tmp):
    a("s_and_b32 s21, s%d, 7" % idreg); a("s_lshr_b32 s22, s%d, 3" % idreg); a("s_lshr_b32 s23, s22, 2"); a("s_and_b32 s24, s22, 3")
    a("s_lshl_b32 s%d, s23, 3" % dst); a("s_add_u32 s%d, s%d, s21" % (dst, dst)); a("s_lshl_b32 s%d, s%d, 19" % (dst, dst))
    a("s_lshl_b32 s%d, s24, 17" % tmp); a("s_add_u32 s%d, s%d, s%d" % (dst, dst, tmp))

PF_DELAY = 2
PF_DEPTH = None
PF_TILES = [1, 3, 5, 7]
PF_WO = True
PF_SEQ = 0
Q_TOUCH = False
ROT = True
TLBWARM = 0
KQ2_PF = [(0, 1)]
def k_q(stamps=False):
    a = Asm(); st = Stamper(a, stamps, 0, 16)
    st()
    a("s_cmp_ge_u32 s2, 256"); a("s_cbranch_scc1 K1_end")
    a("s_load_dwordx2 s[4:5], s[0:1], 0")
    a("s_load_dwordx2 s[6:7], s[0:1], 24")
    a("s_load_dwordx2 s[8:9], s[0:1], 56")
    a("s_load_dwordx4 s[52:55], s[0:1], 8")
    a("s_load_dwordx2 s[46:47], s[0:1], 32")
    a("v_lshrrev_b32 v1, 6, v0")
    a("v_and_b32 v0, 63, v0")
    a("v_readfirstlane_b32 s20, v1")
    a("s_bitcmp1_b32 s2, 3"); a("s_cbranch_scc1 K1_pf")
    a("s_and_b32 s21, s2, 7"); a("s_lshl_b32 s21, s21, 2"); a("s_lshr_b32 s22, s2, 4"); a("s_and_b32 s23, s22, 3")
    a("s_add_u32 s21, s21, s23")
    a("s_lshr_b32 s22, s22, 2")
    a("s_add_u32 s43, s22, s23"); a("s_and_b32 s43, s43, 3")
    a("v_lshrrev_b32 v2, 4, v0"); a("v_and_b32 v4, 15, v0"); a("v_lshlrev_b32 v3, 2, v2"); a("v_xor_b32 v3, v3, v4")
    a("v_lshlrev_b32 v3, 4, v3"); a("v_lshlrev_b32 v5, 13, v2"); a("v_add_u32 v20, v5, v3")
    a("s_lshl_b32 s37, s20, 3"); a("s_and_b32 s37, s37, 15")
    a("v_add_u32 v3, s37, v2"); a("v_xor_b32 v5, v3, v4"); a("v_lshlrev_b32 v5, 4, v5"); a("v_lshlrev_b32 v6, 10, v2"); a("v_add_u32 v21, v5, v6")
    a("v_add_u32 v3, 4, v3"); a("v_xor_b32 v5, v3, v4"); a("v_lshlrev_b32 v5, 4, v5"); a("v_add_u32 v22, v5, v6")
    a("s_waitcnt lgkmcnt(0)")
    srd(a, 12, 4, 5, 8 * 32 * 512 * 2)
    srd(a, 16, 6, 7, 512 * 4096 * 2)
    srd(a, 24, 8, 9, 0x10000000)
    st()
    if Q_TOUCH:
        a("s_cmp_ge_u32 s20, 6"); a("s_cbranch_scc1 K1_td")
        a("s_cmp_ge_u32 s20, 4"); a("s_cbranch_scc1 K1_tx")
        a("v_lshlrev_b32 v30, 13, v0")
        a("s_lshl_b32 s30, s22, 20"); a("s_lshr_b32 s31, s20, 1"); a("s_lshl_b32 s31, s31, 19"); a("s_add_u32 s30, s30, s31")
        a("s_and_b32 s31, s20, 1"); a("s_lshl_b32 s31, s31, 7"); a("s_add_u32 s30, s30, s31"); a("s_lshl_b32 s31, s21, 8"); a("s_add_u32 s30, s30, s31")
        a("buffer_load_dword v31, v30, s[16:19], s30 offen")
        a("s_branch K1_td")
        a.label("K1_tx")
        a("v_lshlrev_b32 v30, 7, v0")
        a("s_lshl_b32 s30, s22, 16"); a("s_lshl_b32 s31, s23, 14"); a("s_add_u32 s30, s30, s31"); a("s_sub_u32 s31, s20, 4"); a("s_lshl_b32 s31, s31, 13"); a("s_add_u32 s30, s30, s31")
        a("buffer_load_dword v31, v30, s[12:15], s30 offen")
        a.label("K1_td")
        a("s_waitcnt vmcnt(0)")
        a("s_barrier")
    a("s_lshl_b32 s33, s22, 16"); a("s_lshl_b32 s34, s20, 13"); a("s_add_u32 s33, s33, s34")
    a("s_lshl_b32 s34, s20, 11")
    a("s_lshl_b32 s30, s20, 17"); a("s_lshl_b32 s31, s21, 8"); a("s_add_u32 s30, s30, s31")
    a("s_lshl_b32 s32, s20, 12"); a("s_add_u32 s32, s32, 65536")
    def x_stage(i):
        a("s_add_u32 s39, s43, %d" % i); a("s_and_b32 s39, s39, 3"); a("s_lshl_b32 s39, s39, 8"); a("s_add_u32 s39, s39, s33")
        a("s_add_u32 m0, s34, %d" % (i * 16384))
        a("s_add_u32 s36, s39, 4096")
        a("buffer_load_dwordx4 v21, s[12:15], s39 offen lds")
        a("s_add_u32 m0, s34, %d" % (i * 16384 + 1024))
        a("s_nop 0")
        a("buffer_load_dwordx4 v22, s[12:15], s36 offen lds")
    def wq_stage(i):
        a("s_add_u32 s39, s43, %d" % i); a("s_and_b32 s39, s39, 3"); a("s_lshl_b32 s39, s39, 20"); a("s_add_u32 s39, s39, s30")
        for e in range(4):
            a("s_add_u32 m0, s32, %d" % ((i % 3) * 32768 + e * 1024))
            a("s_add_u32 s36, s39, %d" % (e * 32768))
            a("buffer_load_dwordx4 v20, s[16:19], s36 offen lds")
    for i in range(3):
        x_stage(i); wq_stage(i)
    x_stage(3)
    a("s_and_b32 s40, s20, 3"); a("s_lshr_b32 s41, s20, 2")
    a("v_and_b32 v4, 15, v0"); a("v_lshrrev_b32 v4, 2, v4")
    a("v_lshrrev_b32 v5, 5, v0")
    a("v_lshlrev_b32 v6, 3, v5"); a("v_add_u32 v6, v6, v4"); a("v_lshlrev_b32 v6, 8, v6")
    a("v_xor_b32 v7, s40, v4"); a("v_lshlrev_b32 v7, 6, v7"); a("v_add_u32 v6, v6, v7")
    a("v_lshrrev_b32 v7, 4, v0"); a("v_and_b32 v7, 1, v7"); a("v_lshlrev_b32 v7, 5, v7"); a("v_add_u32 v6, v6, v7")
    a("v_and_b32 v7, 3, v0"); a("v_lshlrev_b32 v7, 3, v7"); a("v_add_u32 v6, v6, v7")
    a("v_add_u32 v6, 0x10000, v6")
    a("v_add_u32 v7, 0x10000, v6")
    a("v_and_b32 v8, 31, v0")
    a("v_and_b32 v9, 15, v8"); a("v_xor_b32 v9, v9, v5"); a("v_lshlrev_b32 v9, 4, v9")
    a("v_lshlrev_b32 v8, 8, v8"); a("s_lshl_b32 s42, s41, 13"); a("v_add_u32 v8, s42, v8")
    for e in range(8):
        a("v_xor_b32 v%d, %d, v9" % (10 + e, e * 32)); a("v_add_u32 v%d, v%d, v8" % (10 + e, 10 + e))
    ACC = 32; AF = 48; BF = 80
    def reads(i, e):
        slot = i % 3
        base, off = (6, slot * 32768) if slot < 2 else (7, 0)
        off += e * 4096
        fr = AF + 4 * e; br = BF + 4 * e
        return ["ds_read_b64_tr_b16 v[%d:%d], v%d offset:%d" % (fr, fr + 1, base, off),
                "ds_read_b64_tr_b16 v[%d:%d], v%d offset:%d" % (fr + 2, fr + 3, base, off + 1024),
                "ds_read_b128 v[%d:%d], v%d offset:%d" % (br, br + 3, 10 + e, i * 16384)]
    waits = [14, 8 + 4, 4, 0]
    waits = [14, 12, 4, 0]
    for i in range(4):
        a("s_waitcnt vmcnt(%d)" % waits[i])
        a("s_barrier")
        if i == 0: st()
        for e in range(8):
            for o in reads(i, e): a(o)
        for e in range(8):
            a("s_waitcnt lgkmcnt(%d)" % min(15, 3 * (7 - e)))
            fr = AF + 4 * e; br = BF + 4 * e
            a("v_mfma_f32_32x32x16_bf16 v[%d:%d], v[%d:%d], v[%d:%d], %s" % (ACC, ACC + 15, fr, fr + 3, br, br + 3, "0" if (i == 0 and e == 0) else "v[%d:%d]" % (ACC, ACC + 15)))
        if i == 0:
            a("s_barrier")
            wq_stage(3)
    st()
    a("s_mov_b32 s50, 0x%x" % CSCALE)
    a("s_lshl_b32 s34, s22, 1"); a("s_add_u32 s34, s34, s41"); a("s_lshl_b32 s34, s34, 5"); a("s_add_u32 s34, s34, s21"); a("s_lshl_b32 s34, s34, 13")
    a("s_lshl_b32 s35, s40, 11"); a("s_add_u32 s34, s34, s35")
    if WS_Q: a("s_add_u32 s34, s34, 0x%x" % WS_Q)
    a("v_lshlrev_b32 v2, 4, v0")
    for i in range(16): a("v_mul_f32 v%d, s50, v%d" % (ACC + i, ACC + i))
    for i in range(8): a("v_cvt_pk_bf16_f32 v%d, v%d, v%d" % (24 + i, ACC + 2 * i, ACC + 1 + 2 * i))
    for u in range(2):
        a("v_permlane32_swap_b32 v%d, v%d" % (24 + 4 * u, 26 + 4 * u))
        a("v_permlane32_swap_b32 v%d, v%d" % (25 + 4 * u, 27 + 4 * u))
    a("buffer_store_dwordx4 v[24:27], v2, s[24:27], s34 offen")
    a("buffer_store_dwordx4 v[28:31], v2, s[24:27], s34 offen offset:1024")
    st()
    st.flush(2, 20, 8, "K1_end2")
    a("s_branch K1_end")
    a.label("K1_pf")
    a("s_waitcnt lgkmcnt(0)")
    srd(a, 24, 8, 9, 0x10000000)
    srd(a, 56, 52, 53, 0x2000000); srd(a, 60, 54, 55, 0x2000000)
    a("s_cmp_lg_u32 s20, 0"); a("s_cbranch_scc1 K1_pf2")
    a("v_mov_b32 v4, 0"); a("v_mov_b32 v5, 0")
    a("s_mov_b64 s[44:45], exec"); a("s_mov_b64 exec, 1")
    for d in (8, 0):
        a("s_sub_u32 s30, s2, %d" % d)
        a("s_lshr_b32 s31, s30, 2"); a("s_mul_i32 s31, s31, 0x%x" % GS); a("s_and_b32 s32, s30, 3"); a("s_lshl_b32 s32, s32, 7")
        a("s_add_u32 s31, s31, s32"); a("s_add_u32 s31, s31, 0x%x" % (WS_G + 0x22000))
        a("buffer_store_dword v5, v4, s[24:27], s31 offen")
        a("s_lshr_b32 s31, s30, 5"); a("s_mul_i32 s31, s31, 0x%x" % BS); a("s_and_b32 s32, s30, 31"); a("s_lshl_b32 s32, s32, 7")
        a("s_add_u32 s31, s31, s32"); a("s_add_u32 s31, s31, 0x%x" % (WS_B + 0x100000))
        a("buffer_store_dword v5, v4, s[24:27], s31 offen")
    a("s_mov_b64 exec, s[44:45]")
    a.label("K1_pf2")
    if PF_TILES:
        a("s_lshr_b32 s30, s20, 2"); a("s_lshl_b32 s30, s30, 3"); a("s_sub_u32 s30, s2, s30")
        kv_base(a, 30, 40, 41)
        if ROT: a("s_lshr_b32 s43, s30, 3"); a("s_and_b32 s43, s43, 15")
        else: a("s_mov_b32 s43, 0")
        a("s_bitcmp1_b32 s20, 1")
        a("s_cselect_b32 s56, s60, s56"); a("s_cselect_b32 s57, s61, s57")
        a("v_lshlrev_b32 v30, 7, v0")
        for d in range(PF_DELAY):
            a("v_mov_b32 v31, %d" % (d * 128))
            a("buffer_load_dword v31, v31, s[56:59], s40 offen")
            a("s_waitcnt vmcnt(0)")
        if PF_SEQ:
            a("s_bitcmp1_b32 s20, 0"); a("s_cbranch_scc1 K1_pfd")
            for i, t in enumerate(PF_TILES):
                a("s_add_u32 s41, s40, 0x%x" % (t * 8192))
                a("buffer_load_dword v%d, v30, s[56:59], s41 offen" % (32 + i))
                a("s_waitcnt vmcnt(%d)" % (PF_SEQ - 1))
            a.label("K1_pfd")
        else:
            ta = PF_TILES[0::2]; tb = PF_TILES[1::2]
            n = max(len(ta), len(tb))
            for i in range(n):
                x0 = ta[i] if i < len(ta) else None
                x1 = tb[i] if i < len(tb) else None
                a("s_bitcmp1_b32 s20, 0")
                a("s_mov_b32 s42, %d" % (x0 if x0 is not None else 0))
                a("s_cselect_b32 s41, %d, s42" % (x1 if x1 is not None else (x0 if x0 is not None else 0)))
                a("s_add_u32 s41, s41, s43"); a("s_and_b32 s41, s41, 15"); a("s_lshl_b32 s41, s41, 13")
                a("s_add_u32 s41, s41, s40")
                a("buffer_load_dword v%d, v30, s[56:59], s41 offen" % (32 + i))
        if PF_WO:
            srd(a, 48, 46, 47, 4096 * 512 * 2)
            a("s_and_b32 s30, s2, 7"); a("s_lshl_b32 s30, s30, 19"); a("s_lshr_b32 s31, s2, 4"); a("s_lshl_b32 s31, s31, 15"); a("s_add_u32 s30, s30, s31")
            a("s_lshl_b32 s31, s20, 12"); a("s_add_u32 s30, s30, s31")
            a("s_mov_b64 exec, 0xffffffff") if False else None
            a("v_cmp_gt_u32 vcc, 32, v0"); a("s_and_saveexec_b64 s[44:45], vcc")
            a("buffer_load_dword v40, v30, s[48:51], s30 offen")
            a("s_mov_b64 exec, s[44:45]")
        a("s_waitcnt vmcnt(0)")
    if stamps:
        a("s_memrealtime s[66:67]"); a("s_memrealtime s[68:69]"); a("s_memrealtime s[70:71]"); a("s_memrealtime s[72:73]")
        st.n = 5
        st.flush(2, 20, 8, "K1_end3")
    a.label("K1_end")
    a("s_endpgm")
    return a


def k_q2(stamps=False):
    a = Asm(); st = Stamper(a, stamps, 0, 16)
    st()
    a("s_cmp_ge_u32 s2, 256"); a("s_cbranch_scc1 K1_end")
    a("s_load_dwordx2 s[16:17], s[0:1], 24")
    a("s_load_dwordx2 s[12:13], s[0:1], 0")
    a("s_load_dwordx2 s[24:25], s[0:1], 56")
    a("s_load_dwordx4 s[52:55], s[0:1], 8")
    a("v_lshrrev_b32 v1, 6, v0")
    a("v_and_b32 v0, 63, v0")
    a("v_readfirstlane_b32 s20, v1")
    a("s_mov_b32 s18, 0x400000"); a("s_mov_b32 s19, 0x20000"); a("s_mov_b32 s14, 0x40000"); a("s_mov_b32 s15, 0x20000"); a("s_mov_b32 s26, 0x10000000"); a("s_mov_b32 s27, 0x20000")
    a("s_and_b32 s21, s2, 7"); a("s_lshl_b32 s21, s21, 2"); a("s_lshr_b32 s22, s2, 3"); a("s_and_b32 s23, s22, 3"); a("s_add_u32 s21, s21, s23")
    a("s_lshr_b32 s22, s2, 5")
    a("s_add_u32 s43, s22, s23"); a("s_and_b32 s43, s43, 3")
    a("v_lshrrev_b32 v2, 4, v0"); a("v_and_b32 v4, 15, v0"); a("v_lshlrev_b32 v3, 2, v2"); a("v_xor_b32 v3, v3, v4")
    a("v_lshlrev_b32 v3, 4, v3"); a("v_lshlrev_b32 v5, 13, v2"); a("v_add_u32 v20, v5, v3")
    a("s_lshl_b32 s37, s20, 3"); a("s_and_b32 s37, s37, 15")
    a("v_add_u32 v3, s37, v2"); a("v_xor_b32 v5, v3, v4"); a("v_lshlrev_b32 v5, 4, v5"); a("v_lshlrev_b32 v6, 10, v2"); a("v_add_u32 v21, v5, v6")
    a("v_add_u32 v3, 4, v3"); a("v_xor_b32 v5, v3, v4"); a("v_lshlrev_b32 v5, 4, v5"); a("v_add_u32 v22, v5, v6")
    a("s_lshl_b32 s33, s22, 15"); a("s_lshl_b32 s34, s20, 13"); a("s_add_u32 s33, s33, s34")
    a("s_lshl_b32 s34, s20, 11")
    a("s_lshl_b32 s30, s20, 18"); a("s_lshl_b32 s31, s21, 8"); a("s_add_u32 s30, s30, s31")
    a("s_lshl_b32 s32, s20, 13"); a("s_add_u32 s32, s32, 8192")
    a("s_waitcnt lgkmcnt(0)")
    st()
    if TLBWARM:
        a("s_lshr_b32 s40, s2, 5"); a("s_lshl_b32 s40, s40, 3"); a("s_and_b32 s41, s2, 7"); a("s_add_u32 s40, s40, s41")
        a("s_mul_i32 s46, s40, 0x%x" % GS); a("s_add_u32 s46, s46, 0x%x" % WS_G)
        a("s_lshl_b32 s40, s40, 19"); a("s_lshr_b32 s41, s2, 3"); a("s_and_b32 s41, s41, 3"); a("s_lshl_b32 s41, s41, 17"); a("s_add_u32 s40, s40, s41")
        a("s_lshr_b32 s42, s2, 3"); a("s_and_b32 s42, s42, 15"); a("s_lshl_b32 s42, s42, 13"); a("s_add_u32 s40, s40, s42")
        a("v_lshlrev_b32 v30, 7, v0")
        a("s_mov_b32 s58, 0x2000000"); a("s_mov_b32 s59, 0x20000")
        a("s_mov_b64 s[44:45], exec")
        a("s_cmp_ge_u32 s20, 2"); a("s_cbranch_scc1 K1_tw2")
        a("s_bitcmp1_b32 s20, 0")
        a("s_cselect_b32 s56, s54, s52"); a("s_cselect_b32 s57, s55, s53")
        a("s_mov_b64 exec, 0x%x" % TLBWARM)
        a("buffer_load_dword v31, v30, s[56:59], s40 offen")
        a("s_branch K1_tw3")
        a.label("K1_tw2")
        a("s_cmp_eq_u32 s20, 2"); a("s_cbranch_scc0 K1_tw3")
        a("s_mov_b64 exec, 1")
        a("buffer_load_dword v31, v30, s[24:27], s46 offen")
        a.label("K1_tw3")
        a("s_mov_b64 exec, s[44:45]")
    for i in range(4):
        a("s_add_u32 s38, s43, %d" % i); a("s_and_b32 s38, s38, 3")
        a("s_lshl_b32 s39, s38, 20"); a("s_add_u32 s39, s39, s30")
        for e in range(8):
            a("s_add_u32 m0, s32, %d" % (i * 40960 + e * 1024))
            a("s_add_u32 s36, s39, %d" % (e * 32768))
            a("buffer_load_dwordx4 v20, s[16:19], s36 offen lds")
        a("s_lshl_b32 s39, s38, 8"); a("s_add_u32 s39, s39, s33")
        a("s_add_u32 m0, s34, %d" % (i * 40960))
        a("s_add_u32 s36, s39, 4096")
        a("buffer_load_dwordx4 v21, s[12:15], s39 offen lds")
        a("s_add_u32 m0, s34, %d" % (i * 40960 + 1024))
        a("s_nop 0")
        a("buffer_load_dwordx4 v22, s[12:15], s36 offen lds")
    if KQ2_PF:
        a("s_lshr_b32 s40, s2, 5"); a("s_lshl_b32 s40, s40, 3"); a("s_and_b32 s41, s2, 7"); a("s_add_u32 s40, s40, s41"); a("s_lshl_b32 s40, s40, 19")
        a("s_lshr_b32 s41, s2, 3"); a("s_and_b32 s41, s41, 3"); a("s_lshl_b32 s41, s41, 17"); a("s_add_u32 s40, s40, s41")
        if ROT: a("s_lshr_b32 s42, s2, 3"); a("s_and_b32 s42, s42, 15")
        else: a("s_mov_b32 s42, 0")
        a("v_lshlrev_b32 v30, 7, v0")
        a("s_bitcmp1_b32 s20, 0")
        a("s_cselect_b32 s56, s54, s52"); a("s_cselect_b32 s57, s55, s53"); a("s_mov_b32 s58, 0x2000000"); a("s_mov_b32 s59, 0x20000")
        for rnd, tiles in enumerate(KQ2_PF):
            a("s_lshr_b32 s41, s20, 1")
            a("s_cmp_eq_u32 s41, 0"); a("s_cselect_b32 s41, %d, %d" % (tiles[0], tiles[1]))
            a("s_add_u32 s41, s41, s42"); a("s_and_b32 s41, s41, 15"); a("s_lshl_b32 s41, s41, 13"); a("s_add_u32 s41, s41, s40")
            a("buffer_load_dword v%d, v30, s[56:59], s41 offen" % (28 + rnd))
    a("s_cmp_lg_u32 s20, 0"); a("s_cbranch_scc1 K1_nz")
    a("v_mov_b32 v4, 0"); a("v_mov_b32 v5, 0")
    a("s_mov_b64 s[44:45], exec"); a("s_mov_b64 exec, 1")
    a("s_lshr_b32 s31, s2, 2"); a("s_mul_i32 s31, s31, 0x%x" % GS); a("s_and_b32 s35, s2, 3"); a("s_lshl_b32 s35, s35, 7")
    a("s_add_u32 s31, s31, s35"); a("s_add_u32 s31, s31, 0x%x" % (WS_G + 0x22000))
    a("buffer_store_dword v5, v4, s[24:27], s31 offen")
    a("s_lshr_b32 s31, s2, 5"); a("s_mul_i32 s31, s31, 0x%x" % BS); a("s_and_b32 s35, s2, 31"); a("s_lshl_b32 s35, s35, 7")
    a("s_add_u32 s31, s31, s35"); a("s_add_u32 s31, s31, 0x%x" % (WS_B + 0x100000))
    a("buffer_store_dword v5, v4, s[24:27], s31 offen")
    a("s_mov_b64 exec, s[44:45]")
    a.label("K1_nz")
    a("v_and_b32 v4, 15, v0"); a("v_lshrrev_b32 v4, 2, v4"); a("v_lshrrev_b32 v5, 5, v0")
    a("v_lshlrev_b32 v6, 3, v5"); a("v_add_u32 v6, v6, v4"); a("v_lshlrev_b32 v6, 8, v6")
    a("v_xor_b32 v7, s20, v4"); a("v_lshlrev_b32 v7, 6, v7"); a("v_add_u32 v6, v6, v7")
    a("v_lshrrev_b32 v7, 4, v0"); a("v_and_b32 v7, 1, v7"); a("v_lshlrev_b32 v7, 5, v7"); a("v_add_u32 v6, v6, v7")
    a("v_and_b32 v7, 3, v0"); a("v_lshlrev_b32 v7, 3, v7"); a("v_add_u32 v6, v6, v7")
    a("v_add_u32 v6, 8192, v6")
    a("v_and_b32 v8, 31, v0"); a("v_and_b32 v9, 15, v8"); a("v_xor_b32 v9, v9, v5"); a("v_lshlrev_b32 v9, 4, v9"); a("v_lshlrev_b32 v8, 8, v8")
    for e in range(8):
        a("v_xor_b32 v%d, %d, v9" % (10 + e, e * 32)); a("v_add_u32 v%d, v%d, v8" % (10 + e, 10 + e))
    ACC = 32; AF = [48, 112]; BF = [80, 144]
    def reads(i):
        out = []
        for e in range(8):
            fr = AF[i % 2] + 4 * e; br = BF[i % 2] + 4 * e
            out += ["ds_read_b64_tr_b16 v[%d:%d], v6 offset:%d" % (fr, fr + 1, e * 4096),
                    "ds_read_b64_tr_b16 v[%d:%d], v6 offset:%d" % (fr + 2, fr + 3, e * 4096 + 1024),
                    "ds_read_b128 v[%d:%d], v%d" % (br, br + 3, 10 + e)]
        return out
    def advance():
        a("v_add_u32 v6, 40960, v6")
        for e in range(8): a("v_add_u32 v%d, 40960, v%d" % (10 + e, 10 + e))
    for i in range(4):
        a("s_waitcnt vmcnt(%d)" % (10 * (3 - i)))
        a("s_barrier")
        if i == 0: st()
        for o in reads(i): a(o)
        if i < 3: advance()
        for e in range(8):
            a("s_waitcnt lgkmcnt(%d)" % min(15, 3 * (7 - e)))
            fr = AF[i % 2] + 4 * e; br = BF[i % 2] + 4 * e
            a("v_mfma_f32_32x32x16_bf16 v[%d:%d], v[%d:%d], v[%d:%d], %s" % (ACC, ACC + 15, fr, fr + 3, br, br + 3, "0" if (i == 0 and e == 0) else "v[%d:%d]" % (ACC, ACC + 15)))
    st()
    a("s_mov_b32 s50, 0x%x" % CSCALE)
    a("s_lshl_b32 s34, s22, 5"); a("s_add_u32 s34, s34, s21"); a("s_lshl_b32 s34, s34, 13")
    a("s_lshl_b32 s35, s20, 11"); a("s_add_u32 s34, s34, s35")
    a("v_lshlrev_b32 v2, 4, v0")
    for i in range(16): a("v_mul_f32 v%d, s50, v%d" % (ACC + i, ACC + i))
    for i in range(8): a("v_cvt_pk_bf16_f32 v%d, v%d, v%d" % (24 + i, ACC + 2 * i, ACC + 1 + 2 * i))
    for u in range(2):
        a("v_permlane32_swap_b32 v%d, v%d" % (24 + 4 * u, 26 + 4 * u))
        a("v_permlane32_swap_b32 v%d, v%d" % (25 + 4 * u, 27 + 4 * u))
    a("buffer_store_dwordx4 v[24:27], v2, s[24:27], s34 offen")
    a("buffer_store_dwordx4 v[28:31], v2, s[24:27], s34 offen offset:1024")
    st()
    st.flush(2, 20, 24, "K1_end2")
    a.label("K1_end")
    a("s_endpgm")
    return a

VK0, VK1, VV = 8, 9, 10
LANE16 = 11
KRA = 12
VRA = 20
MREF, LSUM, TS, TS2 = 24, 25, 26, 27
T0, T1 = 28, 29
NEGM = 32
SB = [48, 64]
E = 80
P = 96
KF = 104
VF = 136
O = 168
NV = 232
WOROW = 1088
BIMG = 128 * WOROW
KRING = 81920
VRING = KRING + 32768
OWNP = VRING + 32768
NONL = 114680
SCRL = OWNP + 8192 + 512
LDS_MAIN = 163840

EARLY = 1
PRE2 = 0
LATE0 = 0
XTR = False
CODEWARM = 0
PICK = {0, 2, 4, 5, 7, 9, 10, 14}
class PickStamper(Stamper):
    def __init__(self, *a, pick=None, **k):
        super().__init__(*a, **k); self.pick = pick; self.calls = 0; self.force = False
    def __call__(self):
        c = self.calls; self.calls += 1
        if self.force or c in self.pick: super().__call__()
    def flush(self, *a):
        self.force = True
        super().flush(*a)

class Main:
    def __init__(self, pol="nt", stamps=False, trickle=True, pretouch=True):
        self.a = Asm(); self.pol = pol
        self.st = PickStamper(self.a, stamps, 0, 16, sbase=84, pick=PICK)
        self.rare_id = 0; self.rare = []
        self.trickle = trickle; self.pretouch = pretouch

    def issue(self, k_slot, v_slot, kmode, vmode):
        pol = self.pol; out = []
        if kmode:
            out.append("s_lshl_b32 s34, s64, 13")
            out.append("s_add_u32 m0, s36, %d" % (KRING + k_slot * 8192))
            out.append("s_add_u32 s34, s34, s66")
            if kmode == 'dyn':
                out.append("s_cmp_ge_u32 s42, %d" % self.dyn_limit)
                out.append("s_cselect_b32 s34, 0x4000000, s34")
            out.append("buffer_load_dwordx4 v%d, s[12:15], s34 offen %s lds" % (VK0, pol))
            out.append("buffer_load_dwordx4 v%d, s[12:15], s34 offen offset:1024 %s lds" % (VK1, pol))
            out.append("s_add_u32 s64, s64, 1")
            out.append("s_and_b32 s64, s64, 15")
        if vmode:
            out.append("s_lshl_b32 s35, s65, 13")
            out.append("s_add_u32 m0, s36, %d" % (VRING + v_slot * 8192))
            out.append("s_add_u32 s35, s35, s66")
            out.append("buffer_load_dwordx4 v%d, s[16:19], s35 offen %s lds" % (VV, pol))
            out.append("buffer_load_dwordx4 v%d, s[16:19], s35 offen offset:1024 %s lds" % (VV, pol))
            out.append("s_add_u32 s65, s65, 1")
            out.append("s_and_b32 s65, s65, 15")
        return out
    def wo_rows(self, n):
        out = []
        for _ in range(n):
            out.append("s_mov_b32 m0, s49")
            out.append("s_add_u32 s49, s49, %d" % (4 * WOROW))
            out.append("buffer_load_dwordx4 v%d, s[56:59], s48 offen lds" % LANE16)
            out.append("s_add_u32 s48, s48, 4096")
        return out

    def kreads(self, slot):
        return ["ds_read_b128 %s, v%d offset:%d" % (vr(KF + 4 * j, 4), KRA + j, slot * 8192) for j in range(8)]
    def vread(self, slot, u, db):
        r = VF + (u * 4 + db) * 4
        return ["ds_read_b64_tr_b16 %s, v%d offset:%d" % (vr(r, 2), VRA + db, slot * 8192 + u * 4096),
                "ds_read_b64_tr_b16 %s, v%d offset:%d" % (vr(r + 2, 2), VRA + db, slot * 8192 + u * 4096 + 2048)]
    def qk(self, j, snxt):
        return "v_mfma_f32_32x32x16_bf16 %s, %s, %s, %s" % (vr(snxt, 16), vr(KF + 4 * j, 4), ar(4 * j, 4), vr(NEGM, 16) if j == 0 else vr(snxt, 16))
    def pv(self, u, db):
        return "v_mfma_f32_32x32x16_bf16 %s, %s, %s, %s" % (vr(O + 16 * db, 16), vr(VF + (u * 4 + db) * 4, 4), vr(P + 4 * u, 4), vr(O + 16 * db, 16))
    def softmax_ops(self, scur):
        g = []
        for j in range(9):
            ops = []
            if j < 8:
                ops.append("v_exp_f32 v%d, v%d" % (E + 2 * j, scur + 2 * j))
                ops.append("v_exp_f32 v%d, v%d" % (E + 2 * j + 1, scur + 2 * j + 1))
            if j >= 1:
                i = j - 1
                if i == 1:
                    ops.append("v_add_f32 v%d, v%d, v%d" % (TS, E + 0, E + 2)); ops.append("v_add_f32 v%d, v%d, v%d" % (TS2, E + 1, E + 3))
                elif i > 1:
                    ops.append("v_add_f32 v%d, v%d, v%d" % (TS, TS, E + 2 * i)); ops.append("v_add_f32 v%d, v%d, v%d" % (TS2, TS2, E + 2 * i + 1))
                ops.append("v_cvt_pk_bf16_f32 v%d, v%d, v%d" % (P + i, E + 2 * i, E + 2 * i + 1))
            g.append(ops)
        return g
    def phaseA(self, scur, snxt, do_qk):
        a = self.a
        g = self.softmax_ops(scur)
        for j in range(8):
            if do_qk:
                if j == 0: a("s_waitcnt lgkmcnt(10)")
                a(self.qk(j, snxt))
            for o in g[j]: a(o)
        for o in g[8]: a(o)
        a("v_add_f32 v%d, v%d, v%d" % (TS, TS, TS2))
        a("v_cmp_lt_f32 vcc, s44, v%d" % TS)
        rid = self.rare_id; self.rare_id += 1
        a("s_cbranch_vccnz RARE%d" % rid)
        a.label("RET%d" % rid)
        a("v_add_f32 v%d, v%d, v%d" % (LSUM, LSUM, TS))
        self.rare.append((rid, scur, snxt if do_qk else None))
    def phaseB(self, wait_vm, issue_ops, kslot, vslot, barrier=True):
        a = self.a
        if barrier:
            a("s_waitcnt vmcnt(%d) lgkmcnt(0)" % wait_vm)
            a("s_barrier")
        else:
            a("s_waitcnt lgkmcnt(0)")
        kr = self.kreads(kslot) if kslot is not None else []
        iss = list(issue_ops)
        per = (len(iss) + 7) // 8
        for u in range(2):
            for db in range(4):
                a(self.pv(u, db))
                for _ in range(2):
                    if kr: a(kr.pop(0))
                if vslot is not None:
                    for o in self.vread(vslot, u, db): a(o)
                for _ in range(per):
                    if iss: a(iss.pop(0))
        for o in iss: a(o)
    def poll_counter(self, name, soff, target, depth=4):
        a = self.a
        a("s_mov_b64 exec, 1")
        a("s_mov_b32 s41, 0")
        for k in range(depth):
            a("buffer_load_dword v%d, v2, s[24:27], s%d offen sc1" % (12 + k, soff))
            if k < depth - 1: a("s_sleep 2")
        a.label(name)
        for k in range(depth):
            a("s_waitcnt vmcnt(%d)" % (depth - 1))
            a("v_cmp_gt_u32 vcc, %d, v%d" % (target, 12 + k))
            a("s_cbranch_vccz %s_d" % name)
            a("buffer_load_dword v%d, v2, s[24:27], s%d offen sc1" % (12 + k, soff))
        a("s_add_u32 s41, s41, 1")
        a("s_cmp_lt_u32 s41, 0x2000"); a("s_cbranch_scc1 %s" % name)
        a.label("%s_d" % name)
        a("s_mov_b64 exec, -1")

    def emit_rare(self):
        a = self.a
        for rid, scur, snxt in self.rare:
            a.label("RARE%d" % rid)
            a("s_nop 15")
            a("v_max3_f32 v%d, v%d, v%d, v%d" % (T0, scur, scur + 1, scur + 2))
            for i in range(3, 15, 2): a("v_max3_f32 v%d, v%d, v%d, v%d" % (T0, T0, scur + i, scur + i + 1))
            a("v_max_f32 v%d, v%d, v%d" % (T0, T0, scur + 15))
            a("v_mov_b32 v%d, v%d" % (T1, T0))
            a("s_nop 1")
            a("v_permlane32_swap_b32 v%d, v%d" % (T0, T1))
            a("v_max_f32 v%d, v%d, v%d" % (T0, T0, T1))
            a("v_max_f32 v%d, 0, v%d" % (T0, T0))
            a("v_add_f32 v%d, v%d, v%d" % (MREF, MREF, T0))
            a("v_sub_f32 v%d, 0, v%d" % (T1, T0))
            a("v_exp_f32 v%d, v%d" % (T1, T1))
            for i in range(16): a("v_sub_f32 v%d, v%d, v%d" % (NEGM + i, NEGM + i, T0))
            for i in range(16): a("v_sub_f32 v%d, v%d, v%d" % (scur + i, scur + i, T0))
            if snxt is not None:
                for i in range(16): a("v_sub_f32 v%d, v%d, v%d" % (snxt + i, snxt + i, T0))
            a("v_mul_f32 v%d, v%d, v%d" % (LSUM, LSUM, T1))
            for i in range(64): a("v_mul_f32 v%d, v%d, v%d" % (O + i, O + i, T1))
            for grp in self.softmax_ops(scur):
                for o in grp: a(o)
                a("s_nop 0")
            a("v_add_f32 v%d, v%d, v%d" % (TS, TS, TS2))
            a("s_nop 1")
            a("s_branch RET%d" % rid)

    def poll_flags(self, name, voff, soff, reg=12, depth=4):
        a = self.a
        ld = lambda k: "buffer_load_dwordx2 v[%d:%d], v%d, s[24:27], s%d offen sc1" % (reg + 2 * k, reg + 2 * k + 1, voff, soff)
        a("s_mov_b32 s41, 0")
        for k in range(depth):
            a(ld(k))
            if k < depth - 1: a("s_sleep 2")
        a.label(name)
        for k in range(depth):
            a("s_waitcnt vmcnt(%d)" % (depth - 1))
            a("v_cmp_ne_u64 vcc, s[80:81], v[%d:%d]" % (reg + 2 * k, reg + 2 * k + 1))
            a("s_cbranch_vccz %s_d" % name)
            a(ld(k))
        a("s_add_u32 s41, s41, 1")
        a("s_cmp_lt_u32 s41, 0x2000"); a("s_cbranch_scc1 %s" % name)
        a.label("%s_d" % name)

    def build(self):
        a = self.a; st = self.st
        st()
        a("s_cmp_ge_u32 s2, 256"); a("s_cbranch_scc1 K2_end")
        for reg, off in ((72, 24), (68, 0), (12, 8), (16, 16), (24, 56), (56, 32), (60, 40), (76, 48)):
            a("s_load_dwordx2 s[%d:%d], s[0:1], %d" % (reg, reg + 1, off))
        a("v_lshrrev_b32 v1, 6, v0")
        a("v_and_b32 v0, 63, v0")
        a("v_readfirstlane_b32 s20, v1")
        a("s_and_b32 s21, s2, 7")
        a("s_lshr_b32 s22, s2, 3"); a("s_and_b32 s23, s22, 3")
        a("s_lshr_b32 s22, s22, 2")
        a("s_lshl_b32 s47, s21, 2"); a("s_add_u32 s47, s47, s23")
        a("s_mov_b32 s74, 0x400000"); a("s_mov_b32 s75, 0x20000"); a("s_mov_b32 s70, 0x40000"); a("s_mov_b32 s71, 0x20000")
        a("v_lshrrev_b32 v2, 4, v0"); a("v_and_b32 v4, 15, v0"); a("v_lshlrev_b32 v3, 2, v2"); a("v_xor_b32 v3, v3, v4")
        a("v_lshlrev_b32 v3, 4, v3"); a("v_lshlrev_b32 v5, 13, v2"); a("v_add_u32 v20, v5, v3")
        a("s_lshl_b32 s37, s20, 3"); a("s_and_b32 s37, s37, 15")
        a("v_add_u32 v3, s37, v2"); a("v_xor_b32 v5, v3, v4"); a("v_lshlrev_b32 v5, 4, v5"); a("v_lshlrev_b32 v6, 10, v2"); a("v_add_u32 v21, v5, v6")
        a("v_add_u32 v3, 4, v3"); a("v_xor_b32 v5, v3, v4"); a("v_lshlrev_b32 v5, 4, v5"); a("v_add_u32 v22, v5, v6")
        a("s_add_u32 s43, s22, s23"); a("s_and_b32 s43, s43, 3")
        a("s_lshl_b32 s33, s22, 15"); a("s_lshl_b32 s34, s20, 13"); a("s_add_u32 s33, s33, s34")
        a("s_lshl_b32 s34, s20, 11")
        a("s_lshl_b32 s30, s20, 18"); a("s_lshl_b32 s31, s47, 8"); a("s_add_u32 s30, s30, s31")
        a("s_lshl_b32 s32, s20, 13"); a("s_add_u32 s32, s32, 8192")
        if CODEWARM:
            a("s_lshr_b32 s38, s2, 3"); a("s_cmp_ge_u32 s38, %d" % CODEWARM); a("s_cbranch_scc1 K2_ncw")
            a("s_cmp_lg_u32 s20, 3"); a("s_cbranch_scc1 K2_ncw")
            a("s_getpc_b64 s[40:41]")
            a("s_lshl_b32 s38, s38, 13")
            a("v_lshlrev_b32 v24, 7, v0"); a("v_add_u32 v24, s38, v24")
            a("v_mov_b32 v25, s41")
            a("v_add_co_u32 v24, vcc, s40, v24")
            a("v_addc_co_u32 v25, vcc, 0, v25, vcc")
            a("global_load_dword v26, v[24:25], off")
            a.label("K2_ncw")
        a("s_waitcnt lgkmcnt(0)")
        QS = lambda i: (81920, 122880, 40960, 0)[i]
        for i in range(4):
            a("s_add_u32 s38, s43, %d" % i); a("s_and_b32 s38, s38, 3")
            a("s_lshl_b32 s39, s38, 20"); a("s_add_u32 s39, s39, s30")
            for e in range(8):
                a("s_add_u32 m0, s32, %d" % (QS(i) + e * 1024))
                a("s_add_u32 s40, s39, %d" % (e * 32768))
                a("buffer_load_dwordx4 v20, s[72:75], s40 offen lds")
            a("s_lshl_b32 s39, s38, 8"); a("s_add_u32 s39, s39, s33")
            a("s_add_u32 m0, s34, %d" % QS(i))
            a("s_add_u32 s40, s39, 4096")
            a("buffer_load_dwordx4 v21, s[68:71], s39 offen lds")
            a("s_add_u32 m0, s34, %d" % (QS(i) + 1024))
            a("s_nop 0")
            a("buffer_load_dwordx4 v22, s[68:71], s40 offen lds")
        for reg, nb in ((12, 0x2000000), (16, 0x2000000), (24, 0x10000000), (56, 4096 * 512 * 2), (60, 8 * 32 * 512 * 2), (76, 256)):
            a("s_mov_b32 s%d, 0x%x" % (reg + 2, nb)); a("s_mov_b32 s%d, 0x20000" % (reg + 3))
        a("s_lshl_b32 s28, s22, 3"); a("s_add_u32 s28, s28, s21")
        a("s_lshl_b32 s29, s28, 19"); a("s_lshl_b32 s30, s23, 17"); a("s_add_u32 s29, s29, s30")
        a("s_mul_i32 s54, s28, 0x%x" % GS); a("s_add_u32 s54, s54, 0x%x" % WS_G)
        a("s_mul_i32 s55, s22, 0x%x" % BS); a("s_add_u32 s55, s55, 0x%x" % WS_B)
        a("s_cmp_lg_u32 s20, 0"); a("s_cbranch_scc1 K2_noat")
        a("s_memrealtime s[82:83]")
        a("v_mov_b32 v30, 0"); a("v_mov_b32 v31, 0"); a("v_mov_b32 v7, 0")
        a("s_lshl_b32 s38, s22, 5")
        a("s_waitcnt lgkmcnt(0)")
        a("s_or_b32 s82, s82, 1")
        a("v_mov_b32 v28, s82"); a("v_mov_b32 v29, s83")
        a("s_mov_b64 exec, 1")
        a("buffer_atomic_cmpswap_x2 v[28:31], v7, s[76:79], s38 offen sc0 sc1")
        a("s_mov_b64 exec, -1")
        a.label("K2_noat")
        a("v_lshrrev_b32 v2, 4, v0"); a("v_and_b32 v3, 15, v0")
        a("s_lshl_b32 s31, s20, 3"); a("s_and_b32 s31, s31, 15")
        a("v_add_u32 v4, s31, v2")
        a("v_xor_b32 v5, v4, v3"); a("v_lshlrev_b32 v5, 4, v5")
        a("v_lshlrev_b32 v6, 8, v2")
        a("v_add_u32 v%d, v5, v6" % VK0)
        a("v_add_u32 v4, 4, v4")
        a("v_xor_b32 v5, v4, v3"); a("v_lshlrev_b32 v5, 4, v5")
        a("v_add_u32 v%d, v5, v6" % VK1)
        a("v_lshlrev_b32 v5, 2, v2"); a("v_xor_b32 v5, v5, v3"); a("v_lshlrev_b32 v5, 4, v5")
        a("v_add_u32 v%d, v5, v6" % VV)
        a("v_lshlrev_b32 v%d, 4, v0" % LANE16)
        a("s_lshl_b32 s36, s20, 11")
        a("s_add_u32 s66, s29, s36")
        if ROT: a("s_lshr_b32 s64, s2, 3"); a("s_and_b32 s64, s64, 15")
        else: a("s_mov_b32 s64, 0")
        a("s_mov_b32 s65, s64")
        a("s_lshl_b32 s48, s47, 7"); a("s_add_u32 s48, s48, s20"); a("s_lshl_b32 s48, s48, 10")
        a("s_mul_i32 s49, s20, %d" % WOROW)
        a("v_and_b32 v4, 15, v0"); a("v_lshrrev_b32 v4, 2, v4"); a("v_lshrrev_b32 v5, 5, v0")
        a("v_lshlrev_b32 v6, 3, v5"); a("v_add_u32 v6, v6, v4"); a("v_lshlrev_b32 v6, 8, v6")
        a("v_xor_b32 v7, s20, v4"); a("v_lshlrev_b32 v7, 6, v7"); a("v_add_u32 v6, v6, v7")
        a("v_lshrrev_b32 v7, 4, v0"); a("v_and_b32 v7, 1, v7"); a("v_lshlrev_b32 v7, 5, v7"); a("v_add_u32 v6, v6, v7")
        a("v_and_b32 v7, 3, v0"); a("v_lshlrev_b32 v7, 3, v7"); a("v_add_u32 v6, v6, v7")
        a("v_add_u32 v6, %d, v6" % (8192 + QS(0)))
        a("v_and_b32 v1, 31, v0"); a("v_and_b32 v7, 15, v1"); a("v_xor_b32 v7, v7, v5"); a("v_lshlrev_b32 v7, 4, v7"); a("v_lshlrev_b32 v1, 8, v1"); a("v_add_u32 v1, %d, v1" % QS(0))
        for e in range(8):
            a("v_xor_b32 v%d, %d, v7" % (12 + e, e * 32)); a("v_add_u32 v%d, v%d, v1" % (12 + e, 12 + e))
        ACC = SB[0]; AF = [KF, O]; BF = [VF, O + 32]
        def qreads(i):
            out = []
            for e in range(8):
                fr = AF[i % 2] + 4 * e; br = BF[i % 2] + 4 * e
                out += ["ds_read_b64_tr_b16 v[%d:%d], v6 offset:%d" % (fr, fr + 1, e * 4096),
                        "ds_read_b64_tr_b16 v[%d:%d], v6 offset:%d" % (fr + 2, fr + 3, e * 4096 + 1024),
                        "ds_read_b128 v[%d:%d], v%d" % (br, br + 3, 12 + e)]
            return out
        tr = [2, 1, 1, 1] if self.trickle else [0, 0, 0, 0]
        def dummy(n):
            out = []
            for _ in range(n):
                out += ["s_mov_b32 m0, %d" % SCRL, "s_mov_b32 s38, 0x4000000", "buffer_load_dwordx4 v%d, s[56:59], s38 offen lds" % LANE16]
            return out
        for i in range(4):
            if i < 3: a("s_waitcnt vmcnt(%d)" % (30, 20, 16)[i])
            else:
                a("s_waitcnt vmcnt(%d)" % ((6, 2, 0)[LATE0] + sum(4 + tr[t] for t in (1, 2)[:PRE2])))
                a("s_cmp_lg_u32 s20, 0"); a("s_cbranch_scc1 K2_nonl")
                a("v_mov_b32 v1, s82"); a("v_mov_b32 v2, s83")
                a("v_cmp_eq_u32 vcc, 0, v28")
                a("v_cndmask_b32 v28, v28, v1, vcc"); a("v_cndmask_b32 v29, v29, v2, vcc")
                a("v_mov_b32 v1, %d" % NONL)
                a("s_mov_b64 exec, 1")
                a("ds_write_b64 v1, v[28:29]")
                a("s_mov_b64 exec, -1")
                a("s_waitcnt lgkmcnt(0)")
                a.label("K2_nonl")
            a("s_barrier")
            if i == 0: st()
            if i == 1:
                if LATE0 == 0:
                    for o in self.issue(0, None, 'real', None) + self.issue(1, 0, 'real', 'real'): a(o)
                elif LATE0 == 1:
                    for o in self.issue(0, None, 'real', None): a(o)
            if i == 2:
                for t in (1, 2)[:PRE2]:
                    for o in self.issue(t + 1, t, 'real', 'real') + dummy(tr[t]): a(o)
            for o in qreads(i): a(o)
            if i < 3:
                dl = (QS(i + 1) - QS(i)) & 0xffffffff
                a("v_add_u32 v6, 0x%x, v6" % dl)
                for e in range(8): a("v_add_u32 v%d, 0x%x, v%d" % (12 + e, dl, 12 + e))
            if i == 3:
                a("v_mov_b32 v1, %d" % NONL); a("ds_read_b64 v[2:3], v1")
            for e in range(8):
                a("s_waitcnt lgkmcnt(%d)" % min(15, 3 * (7 - e) + (1 if i == 3 else 0)))
                fr = AF[i % 2] + 4 * e; br = BF[i % 2] + 4 * e
                a("v_mfma_f32_32x32x16_bf16 %s, v[%d:%d], v[%d:%d], %s" % (vr(ACC, 16), fr, fr + 3, br, br + 3, "0" if (i == 0 and e == 0) else vr(ACC, 16)))
        st()
        a("s_waitcnt lgkmcnt(0)")
        a("v_readfirstlane_b32 s80, v2"); a("v_readfirstlane_b32 s81, v3")
        a("s_mov_b32 s50, 0x%x" % CSCALE)
        a("s_lshl_b32 s34, s23, 13"); a("s_add_u32 s34, s34, s54"); a("s_add_u32 s34, s34, 0x%x" % G_QX); a("s_add_u32 s34, s34, s36")
        for i in range(16): a("v_mul_f32 v%d, s50, v%d" % (ACC + i, ACC + i))
        for i in range(8): a("v_cvt_pk_bf16_f32 v%d, v%d, v%d" % (E + i, ACC + 2 * i, ACC + 1 + 2 * i))
        for u in range(2):
            a("v_permlane32_swap_b32 v%d, v%d" % (E + 4 * u, E + 2 + 4 * u))
            a("v_permlane32_swap_b32 v%d, v%d" % (E + 1 + 4 * u, E + 3 + 4 * u))
        a("buffer_store_dwordx4 %s, v%d, s[24:27], s34 offen sc1" % (vr(E, 4), LANE16))
        a("buffer_store_dwordx4 %s, v%d, s[24:27], s34 offen offset:1024 sc1" % (vr(E + 4, 4), LANE16))
        a("v_and_b32 v1, 31, v0"); a("v_lshrrev_b32 v2, 5, v0")
        a("v_xor_b32 v3, v1, v2"); a("v_and_b32 v3, 15, v3"); a("v_lshlrev_b32 v3, 4, v3")
        a("v_lshlrev_b32 v6, 8, v1"); a("v_add_u32 v6, 0x%x, v6" % KRING)
        for j in range(8):
            a("v_xor_b32 v%d, %d, v3" % (KRA + j, j * 32))
            a("v_add_u32 v%d, v%d, v6" % (KRA + j, KRA + j))
        a("v_and_b32 v3, 15, v0"); a("v_lshrrev_b32 v3, 2, v3")
        a("v_lshlrev_b32 v6, 2, v2"); a("v_add_u32 v6, v6, v3"); a("v_lshlrev_b32 v6, 8, v6")
        a("v_lshrrev_b32 v4, 4, v0"); a("v_and_b32 v4, 1, v4"); a("v_lshlrev_b32 v4, 5, v4"); a("v_add_u32 v6, v6, v4")
        a("v_and_b32 v4, 3, v0"); a("v_lshlrev_b32 v4, 3, v4"); a("v_add_u32 v6, v6, v4")
        a("v_add_u32 v6, 0x%x, v6" % VRING)
        for db in range(4):
            a("v_xor_b32 v4, %d, v3" % db); a("v_lshlrev_b32 v4, 6, v4")
            a("v_add_u32 v%d, v6, v4" % (VRA + db))
        for i in range(64): a("v_mov_b32 v%d, 0" % (O + i))
        for i in range(16): a("v_mov_b32 v%d, 0" % (NEGM + i))
        a("v_mov_b32 v%d, 0" % LSUM)
        a("s_mov_b32 s44, 0x%x" % THRESH)
        a("s_mov_b32 s42, 0")
        a("v_mov_b32 v%d, s80" % (E + 8)); a("v_mov_b32 v%d, s81" % (E + 9)); a("v_mov_b32 v7, 0")
        a("s_lshl_b32 s37, s23, 5"); a("s_lshl_b32 s38, s20, 3"); a("s_add_u32 s37, s37, s38"); a("s_add_u32 s37, s37, s54"); a("s_add_u32 s37, s37, 0x%x" % G_F0)
        a("s_waitcnt vmcnt(0)")
        st()
        a("s_mov_b64 exec, 1")
        a("buffer_store_dwordx2 v[%d:%d], v7, s[24:27], s37 offen sc1" % (E + 8, E + 9))
        if LATE0 == 0: a("s_barrier")
        a("s_mov_b64 exec, -1")
        if LATE0 == 2:
            for o in self.issue(0, None, 'real', None): a(o)
        if LATE0 >= 1:
            for o in self.issue(1, 0, 'real', 'real'): a(o)
        for t in (1, 2)[PRE2:PRE2 + EARLY]:
            for o in self.issue(t + 1, t, 'real', 'real') + dummy(tr[t]): a(o)
        a("s_mov_b64 exec, 0xf")
        a("v_lshlrev_b32 v7, 3, v0")
        a("s_lshl_b32 s37, s20, 5"); a("s_add_u32 s37, s37, s54"); a("s_add_u32 s37, s37, 0x%x" % G_F0)
        self.poll_flags("POLL0", 7, 37, reg=VF)
        a("s_mov_b64 exec, -1")
        st()
        a("s_lshl_b32 s33, s20, 13"); a("s_add_u32 s33, s33, s54"); a("s_add_u32 s33, s33, 0x%x" % G_QX); a("s_add_u32 s37, s33, 4096")
        for j in range(8):
            a("buffer_load_dwordx4 %s, v%d, s[24:27], s%d offen offset:%d sc1" % (ar(4 * j, 4), LANE16, 33 if j < 4 else 37, (j % 4) * 1024))
        for t in (1, 2)[PRE2 + EARLY:]:
            for o in self.issue(t + 1, t, 'real', 'real') + dummy(tr[t]): a(o)
        if LATE0 == 0:
            for o in self.kreads(0): a(o)
            a("s_waitcnt vmcnt(%d) lgkmcnt(0)" % sum(4 + tr[t] for t in (1, 2)[PRE2 + EARLY:]))
        else:
            a("s_waitcnt vmcnt(%d)" % sum(4 + tr[t] for t in (1, 2)[PRE2 + EARLY:]))
            a("s_barrier")
            for o in self.kreads(0): a(o)
            a("s_waitcnt lgkmcnt(0)")
        for j in range(8): a(self.qk(j, SB[0]))
        a("s_barrier")
        for o in self.issue(0, 3, 'real', 'real') + dummy(tr[3]): a(o)
        for o in self.kreads(1): a(o)
        for u in range(2):
            for db in range(4):
                for o in self.vread(0, u, db): a(o)
        if self.pretouch:
            a("v_mul_u32_u24 v1, 0x%x, v0" % 0x8000)
            a("s_mov_b64 s[50:51], exec"); a("s_mov_b64 exec, 0x1f")
            a("buffer_load_dword v2, v1, s[24:27], s54 offen")
            a("v_lshlrev_b32 v1, 18, v0")
            a("buffer_load_dword v3, v1, s[24:27], s55 offen")
            a("s_mov_b64 exec, 1")
            a("s_lshl_b32 s38, s22, 15")
            a("v_mov_b32 v1, 0")
            a("buffer_load_dword v4, v1, s[60:63], s38 offen")
            a("s_mov_b64 exec, s[50:51]")
        s0 = SB[0]
        a("v_max3_f32 v%d, v%d, v%d, v%d" % (T0, s0, s0 + 1, s0 + 2))
        for i in range(3, 15, 2): a("v_max3_f32 v%d, v%d, v%d, v%d" % (T0, T0, s0 + i, s0 + i + 1))
        a("v_max_f32 v%d, v%d, v%d" % (T0, T0, s0 + 15))
        a("v_mov_b32 v%d, v%d" % (T1, T0))
        a("v_permlane32_swap_b32 v%d, v%d" % (T0, T1))
        a("v_max_f32 v%d, v%d, v%d" % (MREF, T0, T1))
        for i in range(16): a("v_sub_f32 v%d, 0, v%d" % (NEGM + i, MREF))
        for i in range(16): a("v_sub_f32 v%d, v%d, v%d" % (s0 + i, s0 + i, MREF))
        self.dyn_limit = 2
        st()
        a.label("K2_loop")
        for k in range(4):
            self.phaseA(SB[k % 2], SB[(k + 1) % 2], True)
            iss = self.issue((k + 1) % 4, k, 'dyn' if k == 3 else 'real', 'real') + self.wo_rows(tr[k])
            self.phaseB(8 + sum(tr) - tr[k], iss, (k + 2) % 4, (k + 1) % 4)
        a("s_add_u32 s42, s42, 1"); a("s_cmp_lt_u32 s42, 3")
        a("s_cbranch_scc1 K2_loop")
        st()
        x12 = 2 if (self.trickle and XTR) else 0; x13 = 1 if (self.trickle and XTR) else 0
        self.phaseA(SB[0], SB[1], True)
        self.phaseB(8 + tr[1] + tr[2] + tr[3], self.wo_rows(x12), 2, 1)
        self.phaseA(SB[1], SB[0], True)
        self.phaseB(4 + tr[2] + tr[3] + x12, self.wo_rows(x13), 3, 2)
        self.phaseA(SB[0], SB[1], True)
        self.phaseB(0, [], None, None, barrier=False)
        self.phaseA(SB[1], None, False)
        a("s_waitcnt vmcnt(0)")
        a("s_barrier")
        st()
        for db in range(4):
            for u in range(2):
                for o in self.vread(3, u, db): a(o)
        nrow_done = (15 + x12 + x13) if self.trickle else 0
        a("v_mov_b32 v%d, v%d" % (T0, LSUM))
        a("s_lshl_b32 s46, s20, 15"); a("s_lshl_b32 s37, s23, 13"); a("s_add_u32 s46, s46, s37"); a("s_add_u32 s46, s46, s54")
        a("v_permlane32_swap_b32 v%d, v%d" % (LSUM, T0))
        a("s_lshl_b32 s37, s20, 11"); a("s_lshl_b32 s38, s23, 9"); a("s_add_u32 s37, s37, s38"); a("s_add_u32 s37, s37, s54"); a("s_add_u32 s37, s37, 0x20000")
        a("v_add_f32 v%d, v%d, v%d" % (LSUM, LSUM, T0))
        a("v_mov_b32 v%d, 0" % TS); a("v_mov_b32 v%d, 0" % TS2)
        a("s_mov_b32 s12, s24"); a("s_mov_b32 s13, s25"); a("s_mov_b32 s15, 0x20000")
        a("s_cmp_eq_u32 s20, s23"); a("s_cselect_b32 s14, 0, 0x10000000")
        a("v_cmp_gt_u32 vcc, 32, v0")
        a("s_and_saveexec_b64 s[50:51], vcc")
        a("buffer_store_dwordx4 v[%d:%d], v%d, s[12:15], s37 offen sc1" % (MREF, TS2, LANE16))
        a("s_mov_b64 exec, s[50:51]")
        a("s_add_u32 s38, s46, 4096")
        n = 16
        def pub(db):
            for i in (2 * db, 2 * db + 1):
                for q in range(4):
                    a("v_cvt_pk_bf16_f32 v%d, v%d, v%d" % (KF + 4 * i + q, O + 8 * i + 2 * q, O + 8 * i + 2 * q + 1))
                a("buffer_store_dwordx4 %s, v%d, s[12:15], s%d offen offset:%d sc1" % (vr(KF + 4 * i, 4), LANE16, 46 if i < 4 else 38, (i % 4) * 1024))
        for db in range(4):
            a("s_waitcnt lgkmcnt(%d)" % (12 - 4 * db))
            a(self.pv(0, db)); a(self.pv(1, db))
            if db >= 1: pub(db - 1)
        pub(3)
        st()
        a("s_cmp_lg_u32 s20, s23"); a("s_cbranch_scc1 K2_nown")
        a("v_add_u32 v1, %d, v%d" % (OWNP, LANE16))
        for i in range(8): a("ds_write_b128 v1, %s offset:%d" % (vr(KF + 4 * i, 4), i * 1024))
        a("s_mov_b64 exec, 0xffffffff") if False else None
        a("v_cmp_gt_u32 vcc, 32, v0"); a("s_and_saveexec_b64 s[50:51], vcc")
        a("ds_write_b128 v1, v[%d:%d] offset:8192" % (MREF, TS2))
        a("s_mov_b64 exec, s[50:51]")
        a.label("K2_nown")
        a("s_barrier")
        a("s_lshl_b32 s40, s20, 5"); a("s_lshl_b32 s38, s23, 3"); a("s_add_u32 s40, s40, s38"); a("s_add_u32 s40, s40, s54"); a("s_add_u32 s40, s40, 0x%x" % G_F1)
        a("v_mov_b32 v4, s80"); a("v_mov_b32 v5, s81"); a("v_mov_b32 v2, 0")
        a("s_waitcnt vmcnt(0)")
        st()
        a("s_mov_b64 exec, 1")
        a("buffer_store_dwordx2 v[4:5], v2, s[12:15], s40 offen sc1")
        a("s_mov_b64 exec, -1")
        for o in self.wo_rows(32 - nrow_done): a(o)
        a("s_cmp_lg_u32 s20, 0"); a("s_cbranch_scc1 K2_nopoll")
        a("s_lshl_b32 s40, s23, 5"); a("s_add_u32 s40, s40, s54"); a("s_add_u32 s40, s40, 0x%x" % G_F1)
        a("v_lshlrev_b32 v7, 3, v0")
        a("s_lshl_b32 s38, 1, s23"); a("s_andn2_b32 s38, 0xf, s38"); a("s_mov_b32 s39, 0"); a("s_mov_b64 exec, s[38:39]")
        self.poll_flags("K2_poll", 7, 40, reg=12)
        a("s_mov_b64 exec, -1")
        a.label("K2_nopoll")
        a("s_waitcnt lgkmcnt(0)")
        a("s_barrier")
        st()
        a("v_and_b32 v3, 31, v0"); a("v_lshlrev_b32 v3, 4, v3")
        a("s_lshl_b32 s37, s23, 11"); a("s_add_u32 s37, s37, s54"); a("s_add_u32 s37, s37, 0x20000")
        a("s_lshl_b32 s46, s23, 15"); a("s_add_u32 s46, s46, s54"); a("s_add_u32 s46, s46, s36")
        for k in range(1, 4):
            a("s_add_u32 s38, s23, %d" % k); a("s_and_b32 s38, s38, 3"); a("s_lshl_b32 s39, s38, 9"); a("s_add_u32 s39, s39, s37")
            a("buffer_load_dwordx4 v[%d:%d], v3, s[24:27], s39 offen sc1" % (32 + 4 * k, 35 + 4 * k))
        for k in range(1, 4):
            a("s_add_u32 s38, s23, %d" % k); a("s_and_b32 s38, s38, 3"); a("s_lshl_b32 s39, s38, 13"); a("s_add_u32 s39, s39, s46")
            for i in range(2):
                r = 64 + 8 * k + 4 * i
                a("buffer_load_dwordx4 v[%d:%d], v%d, s[24:27], s39 offen offset:%d sc1" % (r, r + 3, LANE16, i * 1024))
        a("v_add_u32 v1, %d, v3" % (OWNP + 8192)); a("ds_read_b128 v[32:35], v1")
        a("s_add_u32 s39, s36, %d" % OWNP); a("v_add_u32 v1, s39, v%d" % LANE16)
        a("ds_read_b128 v[64:67], v1"); a("ds_read_b128 v[68:71], v1 offset:1024")
        a("v_and_b32 v4, 15, v0"); a("v_lshrrev_b32 v4, 2, v4")
        a("v_lshrrev_b32 v5, 5, v0"); a("v_lshlrev_b32 v5, 2, v5"); a("v_add_u32 v4, v4, v5")
        a("v_mul_u32_u24 v4, %d, v4" % WOROW)
        a("v_lshrrev_b32 v5, 4, v0"); a("v_and_b32 v5, 1, v5"); a("v_lshlrev_b32 v5, 5, v5"); a("v_add_u32 v4, v4, v5")
        a("v_and_b32 v5, 3, v0"); a("v_lshlrev_b32 v5, 3, v5"); a("v_add_u32 v4, v4, v5")
        a("s_lshl_b32 s38, s20, 8"); a("v_add_u32 v4, s38, v4")
        a("v_add_u32 v5, %d, v4" % (64 * WOROW))
        a("s_waitcnt vmcnt(6) lgkmcnt(0)")
        a("v_max3_f32 v16, v32, v36, v40"); a("v_max_f32 v16, v16, v44")
        for s in range(4): a("v_sub_f32 v%d, v%d, v16" % (32 + 4 * s, 32 + 4 * s))
        for s in range(4): a("v_exp_f32 v%d, v%d" % (32 + 4 * s, 32 + 4 * s))
        a("v_mul_f32 v17, v32, v33"); a("v_fmac_f32 v17, v36, v37"); a("v_fmac_f32 v17, v40, v41"); a("v_fmac_f32 v17, v44, v45")
        a("v_rcp_f32 v17, v17")
        for s in range(4): a("v_mul_f32 v%d, v%d, v17" % (32 + 4 * s, 32 + 4 * s))
        a("s_mov_b32 s40, 0xffff0000")
        a("s_waitcnt vmcnt(0)")
        st()
        for i in range(8):
            for s in range(4):
                r = 64 + 8 * s + i
                a("v_lshlrev_b32 v18, 16, v%d" % r); a("v_and_b32 v19, s40, v%d" % r)
                if s == 0:
                    a("v_mul_f32 v20, v18, v32"); a("v_mul_f32 v21, v19, v32")
                else:
                    a("v_fmac_f32 v20, v18, v%d" % (32 + 4 * s)); a("v_fmac_f32 v21, v19, v%d" % (32 + 4 * s))
            a("v_cvt_pk_bf16_f32 v%d, v20, v21" % (24 + i))
        a("s_add_u32 s39, s36, %d" % BIMG)
        a("v_add_u32 v6, s39, v%d" % LANE16)
        a("ds_write_b128 v6, v[24:27]"); a("ds_write_b128 v6, v[28:31] offset:1024")
        a("v_add_u32 v6, %d, v%d" % (BIMG, LANE16))
        a("s_waitcnt lgkmcnt(0)")
        a("s_barrier")
        for i in range(8): a("ds_read_b128 v[%d:%d], v6 offset:%d" % (32 + 4 * i, 35 + 4 * i, i * 1024))
        seq = [(nt, db, u) for nt in range(4) for db in range(4) for u in range(2)]
        AFR = 64; ACC = 168
        a("s_lshl_b32 s34, s20, 18"); a("s_lshl_b32 s35, s47, 10"); a("s_add_u32 s34, s34, s35"); a("s_add_u32 s34, s34, s55")
        def reads(n):
            nt, db, u = seq[n]
            fr = AFR + 4 * (n % 8)
            base = 4 if db < 2 else 5
            off = ((db % 2) * 32 + 16 * u) * WOROW + nt * 64
            return ["ds_read_b64_tr_b16 v[%d:%d], v%d offset:%d" % (fr, fr + 1, base, off),
                    "ds_read_b64_tr_b16 v[%d:%d], v%d offset:%d" % (fr + 2, fr + 3, base, off + 8 * WOROW)]
        def pub2(nt):
            for u in range(2):
                r = 96 + 4 * ((2 * nt + u) % 4)
                for q in range(4):
                    a("v_cvt_pk_bf16_f32 v%d, v%d, v%d" % (r + q, ACC + 16 * nt + 8 * u + 2 * q, ACC + 16 * nt + 8 * u + 2 * q + 1))
                a("buffer_store_dwordx4 v[%d:%d], v%d, s[24:27], s34 offen sc1" % (r, r + 3, LANE16))
                a("s_add_u32 s34, s34, 0x8000")
        D = 6
        for n in range(D):
            for o in reads(n): a(o)
        for n in range(32):
            nt, db, u = seq[n]
            fr = AFR + 4 * (n % 8)
            rem = min(D - 1, 31 - n)
            a("s_waitcnt lgkmcnt(%d)" % (2 * rem))
            bq = 32 + (db * 2 + u) * 4
            first = (db == 0 and u == 0)
            acc = "v[%d:%d]" % (ACC + 16 * nt, ACC + 16 * nt + 15)
            a("v_mfma_f32_32x32x16_bf16 %s, v[%d:%d], v[%d:%d], %s" % (acc, fr, fr + 3, bq, bq + 3, "0" if first else acc))
            if n + D < 32:
                for o in reads(n + D): a(o)
            if n % 8 == 2 and nt >= 1: pub2(nt - 1)
        st()
        pub2(3)
        a("s_lshl_b32 s40, s20, 11"); a("s_lshl_b32 s38, s47, 3"); a("s_add_u32 s40, s40, s38"); a("s_add_u32 s40, s40, s55"); a("s_add_u32 s40, s40, 0x100000")
        a("v_mov_b32 v4, s80"); a("v_mov_b32 v5, s81"); a("v_lshlrev_b32 v2, 8, v0")
        a("s_waitcnt vmcnt(0)")
        st()
        a("s_mov_b64 exec, 0xff")
        a("buffer_store_dwordx2 v[4:5], v2, s[24:27], s40 offen sc1")
        a("s_mov_b64 exec, -1")
        a("s_cmp_lg_u32 s20, 0"); a("s_cbranch_scc1 K2_polled2")
        a("s_lshl_b32 s40, s47, 8"); a("s_add_u32 s40, s40, s55"); a("s_add_u32 s40, s40, 0x100000")
        a("v_lshlrev_b32 v7, 3, v0")
        a("s_mov_b32 s38, -1"); a("s_mov_b32 s39, 0"); a("s_mov_b64 exec, s[38:39]")
        self.poll_flags("K2_poll2", 7, 40, reg=12)
        a("s_mov_b64 exec, -1")
        a.label("K2_polled2")
        a("s_barrier")
        st()
        a("s_lshl_b32 s30, s47, 15"); a("s_lshl_b32 s31, s20, 13"); a("s_add_u32 s30, s30, s31"); a("s_add_u32 s30, s30, s55")
        for i in range(8):
            if i == 4: a("s_add_u32 s30, s30, 4096")
            a("buffer_load_dwordx4 v[%d:%d], v%d, s[24:27], s30 offen offset:%d sc1" % (32 + 4 * i, 35 + 4 * i, LANE16, (i % 4) * 1024))
        a("s_mov_b32 s40, 0xffff0000")
        a("v_add_u32 v3, s36, v%d" % LANE16)
        AC = 64
        for i in range(8):
            a("s_waitcnt vmcnt(%d)" % (7 - i))
            for q in range(4):
                r = 32 + 4 * i + q
                if i == 0:
                    a("v_lshlrev_b32 v%d, 16, v%d" % (AC + 2 * q, r)); a("v_and_b32 v%d, s40, v%d" % (AC + 1 + 2 * q, r))
                else:
                    a("v_lshlrev_b32 v4, 16, v%d" % r); a("v_and_b32 v5, s40, v%d" % r)
                    a("v_add_f32 v%d, v%d, v4" % (AC + 2 * q, AC + 2 * q)); a("v_add_f32 v%d, v%d, v5" % (AC + 1 + 2 * q, AC + 1 + 2 * q))
        st()
        a("ds_write_b128 v3, v[%d:%d]" % (AC, AC + 3)); a("ds_write_b128 v3, v[%d:%d] offset:1024" % (AC + 4, AC + 7))
        a("s_waitcnt lgkmcnt(0)"); a("s_barrier")
        a("s_cmp_lg_u32 s20, 0"); a("s_cbranch_scc1 K2_fin")
        for w in range(1, 4):
            a("ds_read_b128 v[%d:%d], v%d offset:%d" % (72 + 8 * w, 75 + 8 * w, LANE16, w * 2048))
            a("ds_read_b128 v[%d:%d], v%d offset:%d" % (76 + 8 * w, 79 + 8 * w, LANE16, w * 2048 + 1024))
        a("v_and_b32 v3, 31, v0"); a("v_lshlrev_b32 v3, 10, v3")
        a("v_lshrrev_b32 v4, 5, v0"); a("v_lshlrev_b32 v4, 4, v4"); a("v_add_u32 v3, v3, v4")
        a("s_lshl_b32 s32, s22, 15"); a("s_lshl_b32 s33, s47, 5"); a("s_add_u32 s32, s32, s33")
        a("s_waitcnt lgkmcnt(0)")
        for w in range(1, 4):
            for q in range(8): a("v_add_f32 v%d, v%d, v%d" % (AC + q, AC + q, 72 + 8 * w + q))
        for q in range(4): a("v_cvt_pk_bf16_f32 v%d, v%d, v%d" % (20 + q, AC + 2 * q, AC + 1 + 2 * q))
        a("v_permlane32_swap_b32 v20, v22"); a("v_permlane32_swap_b32 v21, v23")
        a("buffer_store_dwordx4 v[20:23], v3, s[60:63], s32 offen")
        a.label("K2_fin")
        st()
        st.flush(2, 20, 24, "K2_end2")
        a.label("K2_end")
        a("s_endpgm")
        self.emit_rare()
        return a

if __name__ == "__main__":
    out = sys.argv[1] if len(sys.argv) > 1 else "v17.s"
    POL = "" if "--plain" in sys.argv else ("sc1 nt" if "--sc1nt" in sys.argv else "nt")
    if "--norot" in sys.argv: ROT = False
    for x in sys.argv:
        if x.startswith("--early="): EARLY = int(x.split("=")[1])
        if x.startswith("--pre2="): PRE2 = int(x.split("=")[1])
        if x.startswith("--late0="): LATE0 = int(x.split("=")[1])
        if x == "--noxtr": XTR = False
        if x == "--xtr": XTR = True
        if x.startswith("--codewarm="): CODEWARM = int(x.split("=")[1])
        if x.startswith("--pick="): PICK = set(int(v) for v in x.split("=")[1].split(","))
    k2 = Main(POL, stamps=("--stampm" in sys.argv), trickle=("--notrickle" not in sys.argv), pretouch=("--pretouch" in sys.argv)).build()
    build_file([(MAIN, k2, 256, 256, LDS_MAIN, NV + 32, NV, 102)], out)
```

```python
import sys, struct, math
from asmlib import *

MAIN = "standalone__gqa_block_cached__near_ridge_kernel"
WS_Q = 0x0
WS_G = 0x400000
GS = 0x2C000
G_F1 = 0x22000
G_F0 = 0x22080
G_QX = 0x23000
WS_B = 0x1400000
BS = 0x110000
def f32bits(x): return struct.unpack("<I", struct.pack("<f", x))[0]
CSCALE = f32bits((128 ** -0.5) * math.log2(math.e))
THRESH = f32bits(2.0 ** 20)

def srd(a, dst, lo, hi, nbytes):
    a("s_mov_b32 s%d, s%d" % (dst, lo)); a("s_mov_b32 s%d, s%d" % (dst + 1, hi))
    a("s_mov_b32 s%d, 0x%x" % (dst + 2, nbytes)); a("s_mov_b32 s%d, 0x20000" % (dst + 3))
def vr(b, n=1): return "v%d" % b if n == 1 else "v[%d:%d]" % (b, b + n - 1)
def ar(b, n=1): return "a%d" % b if n == 1 else "a[%d:%d]" % (b, b + n - 1)

def kv_base(a, idreg, dst, tmp):
    a("s_and_b32 s21, s%d, 7" % idreg); a("s_lshr_b32 s22, s%d, 3" % idreg); a("s_lshr_b32 s23, s22, 2"); a("s_and_b32 s24, s22, 3")
    a("s_lshl_b32 s%d, s23, 3" % dst); a("s_add_u32 s%d, s%d, s21" % (dst, dst)); a("s_lshl_b32 s%d, s%d, 19" % (dst, dst))
    a("s_lshl_b32 s%d, s24, 17" % tmp); a("s_add_u32 s%d, s%d, s%d" % (dst, dst, tmp))

PF_DELAY = 2
PF_DEPTH = None
PF_TILES = [1, 3, 5, 7]
PF_WO = True
PF_SEQ = 0
Q_TOUCH = False
ROT = True
TLBWARM = 0
KQ2_PF = [(0, 1)]
def k_q(stamps=False):
    a = Asm(); st = Stamper(a, stamps, 0, 16)
    st()
    a("s_cmp_ge_u32 s2, 256"); a("s_cbranch_scc1 K1_end")
    a("s_load_dwordx2 s[4:5], s[0:1], 0")
    a("s_load_dwordx2 s[6:7], s[0:1], 24")
    a("s_load_dwordx2 s[8:9], s[0:1], 56")
    a("s_load_dwordx4 s[52:55], s[0:1], 8")
    a("s_load_dwordx2 s[46:47], s[0:1], 32")
    a("v_lshrrev_b32 v1, 6, v0")
    a("v_and_b32 v0, 63, v0")
    a("v_readfirstlane_b32 s20, v1")
    a("s_bitcmp1_b32 s2, 3"); a("s_cbranch_scc1 K1_pf")
    a("s_and_b32 s21, s2, 7"); a("s_lshl_b32 s21, s21, 2"); a("s_lshr_b32 s22, s2, 4"); a("s_and_b32 s23, s22, 3")
    a("s_add_u32 s21, s21, s23")
    a("s_lshr_b32 s22, s22, 2")
    a("s_add_u32 s43, s22, s23"); a("s_and_b32 s43, s43, 3")
    a("v_lshrrev_b32 v2, 4, v0"); a("v_and_b32 v4, 15, v0"); a("v_lshlrev_b32 v3, 2, v2"); a("v_xor_b32 v3, v3, v4")
    a("v_lshlrev_b32 v3, 4, v3"); a("v_lshlrev_b32 v5, 13, v2"); a("v_add_u32 v20, v5, v3")
    a("s_lshl_b32 s37, s20, 3"); a("s_and_b32 s37, s37, 15")
    a("v_add_u32 v3, s37, v2"); a("v_xor_b32 v5, v3, v4"); a("v_lshlrev_b32 v5, 4, v5"); a("v_lshlrev_b32 v6, 10, v2"); a("v_add_u32 v21, v5, v6")
    a("v_add_u32 v3, 4, v3"); a("v_xor_b32 v5, v3, v4"); a("v_lshlrev_b32 v5, 4, v5"); a("v_add_u32 v22, v5, v6")
    a("s_waitcnt lgkmcnt(0)")
    srd(a, 12, 4, 5, 8 * 32 * 512 * 2)
    srd(a, 16, 6, 7, 512 * 4096 * 2)
    srd(a, 24, 8, 9, 0x10000000)
    st()
    if Q_TOUCH:
        a("s_cmp_ge_u32 s20, 6"); a("s_cbranch_scc1 K1_td")
        a("s_cmp_ge_u32 s20, 4"); a("s_cbranch_scc1 K1_tx")
        a("v_lshlrev_b32 v30, 13, v0")
        a("s_lshl_b32 s30, s22, 20"); a("s_lshr_b32 s31, s20, 1"); a("s_lshl_b32 s31, s31, 19"); a("s_add_u32 s30, s30, s31")
        a("s_and_b32 s31, s20, 1"); a("s_lshl_b32 s31, s31, 7"); a("s_add_u32 s30, s30, s31"); a("s_lshl_b32 s31, s21, 8"); a("s_add_u32 s30, s30, s31")
        a("buffer_load_dword v31, v30, s[16:19], s30 offen")
        a("s_branch K1_td")
        a.label("K1_tx")
        a("v_lshlrev_b32 v30, 7, v0")
        a("s_lshl_b32 s30, s22, 16"); a("s_lshl_b32 s31, s23, 14"); a("s_add_u32 s30, s30, s31"); a("s_sub_u32 s31, s20, 4"); a("s_lshl_b32 s31, s31, 13"); a("s_add_u32 s30, s30, s31")
        a("buffer_load_dword v31, v30, s[12:15], s30 offen")
        a.label("K1_td")
        a("s_waitcnt vmcnt(0)")
        a("s_barrier")
    a("s_lshl_b32 s33, s22, 16"); a("s_lshl_b32 s34, s20, 13"); a("s_add_u32 s33, s33, s34")
    a("s_lshl_b32 s34, s20, 11")
    a("s_lshl_b32 s30, s20, 17"); a("s_lshl_b32 s31, s21, 8"); a("s_add_u32 s30, s30, s31")
    a("s_lshl_b32 s32, s20, 12"); a("s_add_u32 s32, s32, 65536")
    def x_stage(i):
        a("s_add_u32 s39, s43, %d" % i); a("s_and_b32 s39, s39, 3"); a("s_lshl_b32 s39, s39, 8"); a("s_add_u32 s39, s39, s33")
        a("s_add_u32 m0, s34, %d" % (i * 16384))
        a("s_add_u32 s36, s39, 4096")
        a("buffer_load_dwordx4 v21, s[12:15], s39 offen lds")
        a("s_add_u32 m0, s34, %d" % (i * 16384 + 1024))
        a("s_nop 0")
        a("buffer_load_dwordx4 v22, s[12:15], s36 offen lds")
    def wq_stage(i):
        a("s_add_u32 s39, s43, %d" % i); a("s_and_b32 s39, s39, 3"); a("s_lshl_b32 s39, s39, 20"); a("s_add_u32 s39, s39, s30")
        for e in range(4):
            a("s_add_u32 m0, s32, %d" % ((i % 3) * 32768 + e * 1024))
            a("s_add_u32 s36, s39, %d" % (e * 32768))
            a("buffer_load_dwordx4 v20, s[16:19], s36 offen lds")
    for i in range(3):
        x_stage(i); wq_stage(i)
    x_stage(3)
    a("s_and_b32 s40, s20, 3"); a("s_lshr_b32 s41, s20, 2")
    a("v_and_b32 v4, 15, v0"); a("v_lshrrev_b32 v4, 2, v4")
    a("v_lshrrev_b32 v5, 5, v0")
    a("v_lshlrev_b32 v6, 3, v5"); a("v_add_u32 v6, v6, v4"); a("v_lshlrev_b32 v6, 8, v6")
    a("v_xor_b32 v7, s40, v4"); a("v_lshlrev_b32 v7, 6, v7"); a("v_add_u32 v6, v6, v7")
    a("v_lshrrev_b32 v7, 4, v0"); a("v_and_b32 v7, 1, v7"); a("v_lshlrev_b32 v7, 5, v7"); a("v_add_u32 v6, v6, v7")
    a("v_and_b32 v7, 3, v0"); a("v_lshlrev_b32 v7, 3, v7"); a("v_add_u32 v6, v6, v7")
    a("v_add_u32 v6, 0x10000, v6")
    a("v_add_u32 v7, 0x10000, v6")
    a("v_and_b32 v8, 31, v0")
    a("v_and_b32 v9, 15, v8"); a("v_xor_b32 v9, v9, v5"); a("v_lshlrev_b32 v9, 4, v9")
    a("v_lshlrev_b32 v8, 8, v8"); a("s_lshl_b32 s42, s41, 13"); a("v_add_u32 v8, s42, v8")
    for e in range(8):
        a("v_xor_b32 v%d, %d, v9" % (10 + e, e * 32)); a("v_add_u32 v%d, v%d, v8" % (10 + e, 10 + e))
    ACC = 32; AF = 48; BF = 80
    def reads(i, e):
        slot = i % 3
        base, off = (6, slot * 32768) if slot < 2 else (7, 0)
        off += e * 4096
        fr = AF + 4 * e; br = BF + 4 * e
        return ["ds_read_b64_tr_b16 v[%d:%d], v%d offset:%d" % (fr, fr + 1, base, off),
                "ds_read_b64_tr_b16 v[%d:%d], v%d offset:%d" % (fr + 2, fr + 3, base, off + 1024),
                "ds_read_b128 v[%d:%d], v%d offset:%d" % (br, br + 3, 10 + e, i * 16384)]
    waits = [14, 8 + 4, 4, 0]
    waits = [14, 12, 4, 0]
    for i in range(4):
        a("s_waitcnt vmcnt(%d)" % waits[i])
        a("s_barrier")
        if i == 0: st()
        for e in range(8):
            for o in reads(i, e): a(o)
        for e in range(8):
            a("s_waitcnt lgkmcnt(%d)" % min(15, 3 * (7 - e)))
            fr = AF + 4 * e; br = BF + 4 * e
            a("v_mfma_f32_32x32x16_bf16 v[%d:%d], v[%d:%d], v[%d:%d], %s" % (ACC, ACC + 15, fr, fr + 3, br, br + 3, "0" if (i == 0 and e == 0) else "v[%d:%d]" % (ACC, ACC + 15)))
        if i == 0:
            a("s_barrier")
            wq_stage(3)
    st()
    a("s_mov_b32 s50, 0x%x" % CSCALE)
    a("s_lshl_b32 s34, s22, 1"); a("s_add_u32 s34, s34, s41"); a("s_lshl_b32 s34, s34, 5"); a("s_add_u32 s34, s34, s21"); a("s_lshl_b32 s34, s34, 13")
    a("s_lshl_b32 s35, s40, 11"); a("s_add_u32 s34, s34, s35")
    if WS_Q: a("s_add_u32 s34, s34, 0x%x" % WS_Q)
    a("v_lshlrev_b32 v2, 4, v0")
    for i in range(16): a("v_mul_f32 v%d, s50, v%d" % (ACC + i, ACC + i))
    for i in range(8): a("v_cvt_pk_bf16_f32 v%d, v%d, v%d" % (24 + i, ACC + 2 * i, ACC + 1 + 2 * i))
    for u in range(2):
        a("v_permlane32_swap_b32 v%d, v%d" % (24 + 4 * u, 26 + 4 * u))
        a("v_permlane32_swap_b32 v%d, v%d" % (25 + 4 * u, 27 + 4 * u))
    a("buffer_store_dwordx4 v[24:27], v2, s[24:27], s34 offen")
    a("buffer_store_dwordx4 v[28:31], v2, s[24:27], s34 offen offset:1024")
    st()
    st.flush(2, 20, 8, "K1_end2")
    a("s_branch K1_end")
    a.label("K1_pf")
    a("s_waitcnt lgkmcnt(0)")
    srd(a, 24, 8, 9, 0x10000000)
    srd(a, 56, 52, 53, 0x2000000); srd(a, 60, 54, 55, 0x2000000)
    a("s_cmp_lg_u32 s20, 0"); a("s_cbranch_scc1 K1_pf2")
    a("v_mov_b32 v4, 0"); a("v_mov_b32 v5, 0")
    a("s_mov_b64 s[44:45], exec"); a("s_mov_b64 exec, 1")
    for d in (8, 0):
        a("s_sub_u32 s30, s2, %d" % d)
        a("s_lshr_b32 s31, s30, 2"); a("s_mul_i32 s31, s31, 0x%x" % GS); a("s_and_b32 s32, s30, 3"); a("s_lshl_b32 s32, s32, 7")
        a("s_add_u32 s31, s31, s32"); a("s_add_u32 s31, s31, 0x%x" % (WS_G + 0x22000))
        a("buffer_store_dword v5, v4, s[24:27], s31 offen")
        a("s_lshr_b32 s31, s30, 5"); a("s_mul_i32 s31, s31, 0x%x" % BS); a("s_and_b32 s32, s30, 31"); a("s_lshl_b32 s32, s32, 7")
        a("s_add_u32 s31, s31, s32"); a("s_add_u32 s31, s31, 0x%x" % (WS_B + 0x100000))
        a("buffer_store_dword v5, v4, s[24:27], s31 offen")
    a("s_mov_b64 exec, s[44:45]")
    a.label("K1_pf2")
    if PF_TILES:
        a("s_lshr_b32 s30, s20, 2"); a("s_lshl_b32 s30, s30, 3"); a("s_sub_u32 s30, s2, s30")
        kv_base(a, 30, 40, 41)
        if ROT: a("s_lshr_b32 s43, s30, 3"); a("s_and_b32 s43, s43, 15")
        else: a("s_mov_b32 s43, 0")
        a("s_bitcmp1_b32 s20, 1")
        a("s_cselect_b32 s56, s60, s56"); a("s_cselect_b32 s57, s61, s57")
        a("v_lshlrev_b32 v30, 7, v0")
        for d in range(PF_DELAY):
            a("v_mov_b32 v31, %d" % (d * 128))
            a("buffer_load_dword v31, v31, s[56:59], s40 offen")
            a("s_waitcnt vmcnt(0)")
        if PF_SEQ:
            a("s_bitcmp1_b32 s20, 0"); a("s_cbranch_scc1 K1_pfd")
            for i, t in enumerate(PF_TILES):
                a("s_add_u32 s41, s40, 0x%x" % (t * 8192))
                a("buffer_load_dword v%d, v30, s[56:59], s41 offen" % (32 + i))
                a("s_waitcnt vmcnt(%d)" % (PF_SEQ - 1))
            a.label("K1_pfd")
        else:
            ta = PF_TILES[0::2]; tb = PF_TILES[1::2]
            n = max(len(ta), len(tb))
            for i in range(n):
                x0 = ta[i] if i < len(ta) else None
                x1 = tb[i] if i < len(tb) else None
                a("s_bitcmp1_b32 s20, 0")
                a("s_mov_b32 s42, %d" % (x0 if x0 is not None else 0))
                a("s_cselect_b32 s41, %d, s42" % (x1 if x1 is not None else (x0 if x0 is not None else 0)))
                a("s_add_u32 s41, s41, s43"); a("s_and_b32 s41, s41, 15"); a("s_lshl_b32 s41, s41, 13")
                a("s_add_u32 s41, s41, s40")
                a("buffer_load_dword v%d, v30, s[56:59], s41 offen" % (32 + i))
        if PF_WO:
            srd(a, 48, 46, 47, 4096 * 512 * 2)
            a("s_and_b32 s30, s2, 7"); a("s_lshl_b32 s30, s30, 19"); a("s_lshr_b32 s31, s2, 4"); a("s_lshl_b32 s31, s31, 15"); a("s_add_u32 s30, s30, s31")
            a("s_lshl_b32 s31, s20, 12"); a("s_add_u32 s30, s30, s31")
            a("s_mov_b64 exec, 0xffffffff") if False else None
            a("v_cmp_gt_u32 vcc, 32, v0"); a("s_and_saveexec_b64 s[44:45], vcc")
            a("buffer_load_dword v40, v30, s[48:51], s30 offen")
            a("s_mov_b64 exec, s[44:45]")
        a("s_waitcnt vmcnt(0)")
    if stamps:
        a("s_memrealtime s[66:67]"); a("s_memrealtime s[68:69]"); a("s_memrealtime s[70:71]"); a("s_memrealtime s[72:73]")
        st.n = 5
        st.flush(2, 20, 8, "K1_end3")
    a.label("K1_end")
    a("s_endpgm")
    return a


def k_q2(stamps=False):
    a = Asm(); st = Stamper(a, stamps, 0, 16)
    st()
    a("s_cmp_ge_u32 s2, 256"); a("s_cbranch_scc1 K1_end")
    a("s_load_dwordx2 s[16:17], s[0:1], 24")
    a("s_load_dwordx2 s[12:13], s[0:1], 0")
    a("s_load_dwordx2 s[24:25], s[0:1], 56")
    a("s_load_dwordx4 s[52:55], s[0:1], 8")
    a("v_lshrrev_b32 v1, 6, v0")
    a("v_and_b32 v0, 63, v0")
    a("v_readfirstlane_b32 s20, v1")
    a("s_mov_b32 s18, 0x400000"); a("s_mov_b32 s19, 0x20000"); a("s_mov_b32 s14, 0x40000"); a("s_mov_b32 s15, 0x20000"); a("s_mov_b32 s26, 0x10000000"); a("s_mov_b32 s27, 0x20000")
    a("s_and_b32 s21, s2, 7"); a("s_lshl_b32 s21, s21, 2"); a("s_lshr_b32 s22, s2, 3"); a("s_and_b32 s23, s22, 3"); a("s_add_u32 s21, s21, s23")
    a("s_lshr_b32 s22, s2, 5")
    a("s_add_u32 s43, s22, s23"); a("s_and_b32 s43, s43, 3")
    a("v_lshrrev_b32 v2, 4, v0"); a("v_and_b32 v4, 15, v0"); a("v_lshlrev_b32 v3, 2, v2"); a("v_xor_b32 v3, v3, v4")
    a("v_lshlrev_b32 v3, 4, v3"); a("v_lshlrev_b32 v5, 13, v2"); a("v_add_u32 v20, v5, v3")
    a("s_lshl_b32 s37, s20, 3"); a("s_and_b32 s37, s37, 15")
    a("v_add_u32 v3, s37, v2"); a("v_xor_b32 v5, v3, v4"); a("v_lshlrev_b32 v5, 4, v5"); a("v_lshlrev_b32 v6, 10, v2"); a("v_add_u32 v21, v5, v6")
    a("v_add_u32 v3, 4, v3"); a("v_xor_b32 v5, v3, v4"); a("v_lshlrev_b32 v5, 4, v5"); a("v_add_u32 v22, v5, v6")
    a("s_lshl_b32 s33, s22, 15"); a("s_lshl_b32 s34, s20, 13"); a("s_add_u32 s33, s33, s34")
    a("s_lshl_b32 s34, s20, 11")
    a("s_lshl_b32 s30, s20, 18"); a("s_lshl_b32 s31, s21, 8"); a("s_add_u32 s30, s30, s31")
    a("s_lshl_b32 s32, s20, 13"); a("s_add_u32 s32, s32, 8192")
    a("s_waitcnt lgkmcnt(0)")
    st()
    if TLBWARM:
        a("s_lshr_b32 s40, s2, 5"); a("s_lshl_b32 s40, s40, 3"); a("s_and_b32 s41, s2, 7"); a("s_add_u32 s40, s40, s41")
        a("s_mul_i32 s46, s40, 0x%x" % GS); a("s_add_u32 s46, s46, 0x%x" % WS_G)
        a("s_lshl_b32 s40, s40, 19"); a("s_lshr_b32 s41, s2, 3"); a("s_and_b32 s41, s41, 3"); a("s_lshl_b32 s41, s41, 17"); a("s_add_u32 s40, s40, s41")
        a("s_lshr_b32 s42, s2, 3"); a("s_and_b32 s42, s42, 15"); a("s_lshl_b32 s42, s42, 13"); a("s_add_u32 s40, s40, s42")
        a("v_lshlrev_b32 v30, 7, v0")
        a("s_mov_b32 s58, 0x2000000"); a("s_mov_b32 s59, 0x20000")
        a("s_mov_b64 s[44:45], exec")
        a("s_cmp_ge_u32 s20, 2"); a("s_cbranch_scc1 K1_tw2")
        a("s_bitcmp1_b32 s20, 0")
        a("s_cselect_b32 s56, s54, s52"); a("s_cselect_b32 s57, s55, s53")
        a("s_mov_b64 exec, 0x%x" % TLBWARM)
        a("buffer_load_dword v31, v30, s[56:59], s40 offen")
        a("s_branch K1_tw3")
        a.label("K1_tw2")
        a("s_cmp_eq_u32 s20, 2"); a("s_cbranch_scc0 K1_tw3")
        a("s_mov_b64 exec, 1")
        a("buffer_load_dword v31, v30, s[24:27], s46 offen")
        a.label("K1_tw3")
        a("s_mov_b64 exec, s[44:45]")
    for i in range(4):
        a("s_add_u32 s38, s43, %d" % i); a("s_and_b32 s38, s38, 3")
        a("s_lshl_b32 s39, s38, 20"); a("s_add_u32 s39, s39, s30")
        for e in range(8):
            a("s_add_u32 m0, s32, %d" % (i * 40960 + e * 1024))
            a("s_add_u32 s36, s39, %d" % (e * 32768))
            a("buffer_load_dwordx4 v20, s[16:19], s36 offen lds")
        a("s_lshl_b32 s39, s38, 8"); a("s_add_u32 s39, s39, s33")
        a("s_add_u32 m0, s34, %d" % (i * 40960))
        a("s_add_u32 s36, s39, 4096")
        a("buffer_load_dwordx4 v21, s[12:15], s39 offen lds")
        a("s_add_u32 m0, s34, %d" % (i * 40960 + 1024))
        a("s_nop 0")
        a("buffer_load_dwordx4 v22, s[12:15], s36 offen lds")
    if KQ2_PF:
        a("s_lshr_b32 s40, s2, 5"); a("s_lshl_b32 s40, s40, 3"); a("s_and_b32 s41, s2, 7"); a("s_add_u32 s40, s40, s41"); a("s_lshl_b32 s40, s40, 19")
        a("s_lshr_b32 s41, s2, 3"); a("s_and_b32 s41, s41, 3"); a("s_lshl_b32 s41, s41, 17"); a("s_add_u32 s40, s40, s41")
        if ROT: a("s_lshr_b32 s42, s2, 3"); a("s_and_b32 s42, s42, 15")
        else: a("s_mov_b32 s42, 0")
        a("v_lshlrev_b32 v30, 7, v0")
        a("s_bitcmp1_b32 s20, 0")
        a("s_cselect_b32 s56, s54, s52"); a("s_cselect_b32 s57, s55, s53"); a("s_mov_b32 s58, 0x2000000"); a("s_mov_b32 s59, 0x20000")
        for rnd, tiles in enumerate(KQ2_PF):
            a("s_lshr_b32 s41, s20, 1")
            a("s_cmp_eq_u32 s41, 0"); a("s_cselect_b32 s41, %d, %d" % (tiles[0], tiles[1]))
            a("s_add_u32 s41, s41, s42"); a("s_and_b32 s41, s41, 15"); a("s_lshl_b32 s41, s41, 13"); a("s_add_u32 s41, s41, s40")
            a("buffer_load_dword v%d, v30, s[56:59], s41 offen" % (28 + rnd))
    a("s_cmp_lg_u32 s20, 0"); a("s_cbranch_scc1 K1_nz")
    a("v_mov_b32 v4, 0"); a("v_mov_b32 v5, 0")
    a("s_mov_b64 s[44:45], exec"); a("s_mov_b64 exec, 1")
    a("s_lshr_b32 s31, s2, 2"); a("s_mul_i32 s31, s31, 0x%x" % GS); a("s_and_b32 s35, s2, 3"); a("s_lshl_b32 s35, s35, 7")
    a("s_add_u32 s31, s31, s35"); a("s_add_u32 s31, s31, 0x%x" % (WS_G + 0x22000))
    a("buffer_store_dword v5, v4, s[24:27], s31 offen")
    a("s_lshr_b32 s31, s2, 5"); a("s_mul_i32 s31, s31, 0x%x" % BS); a("s_and_b32 s35, s2, 31"); a("s_lshl_b32 s35, s35, 7")
    a("s_add_u32 s31, s31, s35"); a("s_add_u32 s31, s31, 0x%x" % (WS_B + 0x100000))
    a("buffer_store_dword v5, v4, s[24:27], s31 offen")
    a("s_mov_b64 exec, s[44:45]")
    a.label("K1_nz")
    a("v_and_b32 v4, 15, v0"); a("v_lshrrev_b32 v4, 2, v4"); a("v_lshrrev_b32 v5, 5, v0")
    a("v_lshlrev_b32 v6, 3, v5"); a("v_add_u32 v6, v6, v4"); a("v_lshlrev_b32 v6, 8, v6")
    a("v_xor_b32 v7, s20, v4"); a("v_lshlrev_b32 v7, 6, v7"); a("v_add_u32 v6, v6, v7")
    a("v_lshrrev_b32 v7, 4, v0"); a("v_and_b32 v7, 1, v7"); a("v_lshlrev_b32 v7, 5, v7"); a("v_add_u32 v6, v6, v7")
    a("v_and_b32 v7, 3, v0"); a("v_lshlrev_b32 v7, 3, v7"); a("v_add_u32 v6, v6, v7")
    a("v_add_u32 v6, 8192, v6")
    a("v_and_b32 v8, 31, v0"); a("v_and_b32 v9, 15, v8"); a("v_xor_b32 v9, v9, v5"); a("v_lshlrev_b32 v9, 4, v9"); a("v_lshlrev_b32 v8, 8, v8")
    for e in range(8):
        a("v_xor_b32 v%d, %d, v9" % (10 + e, e * 32)); a("v_add_u32 v%d, v%d, v8" % (10 + e, 10 + e))
    ACC = 32; AF = [48, 112]; BF = [80, 144]
    def reads(i):
        out = []
        for e in range(8):
            fr = AF[i % 2] + 4 * e; br = BF[i % 2] + 4 * e
            out += ["ds_read_b64_tr_b16 v[%d:%d], v6 offset:%d" % (fr, fr + 1, e * 4096),
                    "ds_read_b64_tr_b16 v[%d:%d], v6 offset:%d" % (fr + 2, fr + 3, e * 4096 + 1024),
                    "ds_read_b128 v[%d:%d], v%d" % (br, br + 3, 10 + e)]
        return out
    def advance():
        a("v_add_u32 v6, 40960, v6")
        for e in range(8): a("v_add_u32 v%d, 40960, v%d" % (10 + e, 10 + e))
    for i in range(4):
        a("s_waitcnt vmcnt(%d)" % (10 * (3 - i)))
        a("s_barrier")
        if i == 0: st()
        for o in reads(i): a(o)
        if i < 3: advance()
        for e in range(8):
            a("s_waitcnt lgkmcnt(%d)" % min(15, 3 * (7 - e)))
            fr = AF[i % 2] + 4 * e; br = BF[i % 2] + 4 * e
            a("v_mfma_f32_32x32x16_bf16 v[%d:%d], v[%d:%d], v[%d:%d], %s" % (ACC, ACC + 15, fr, fr + 3, br, br + 3, "0" if (i == 0 and e == 0) else "v[%d:%d]" % (ACC, ACC + 15)))
    st()
    a("s_mov_b32 s50, 0x%x" % CSCALE)
    a("s_lshl_b32 s34, s22, 5"); a("s_add_u32 s34, s34, s21"); a("s_lshl_b32 s34, s34, 13")
    a("s_lshl_b32 s35, s20, 11"); a("s_add_u32 s34, s34, s35")
    a("v_lshlrev_b32 v2, 4, v0")
    for i in range(16): a("v_mul_f32 v%d, s50, v%d" % (ACC + i, ACC + i))
    for i in range(8): a("v_cvt_pk_bf16_f32 v%d, v%d, v%d" % (24 + i, ACC + 2 * i, ACC + 1 + 2 * i))
    for u in range(2):
        a("v_permlane32_swap_b32 v%d, v%d" % (24 + 4 * u, 26 + 4 * u))
        a("v_permlane32_swap_b32 v%d, v%d" % (25 + 4 * u, 27 + 4 * u))
    a("buffer_store_dwordx4 v[24:27], v2, s[24:27], s34 offen")
    a("buffer_store_dwordx4 v[28:31], v2, s[24:27], s34 offen offset:1024")
    st()
    st.flush(2, 20, 24, "K1_end2")
    a.label("K1_end")
    a("s_endpgm")
    return a

VK0, VK1, VV = 8, 9, 10
LANE16 = 11
KRA = 12
VRA = 20
MREF, LSUM, TS, TS2 = 24, 25, 26, 27
T0, T1 = 28, 29
NEGM = 32
SB = [48, 64]
E = 80
P = 96
KF = 104
VF = 136
O = 168
NV = 232
WOROW = 1088
BIMG = 128 * WOROW
KRING = 81920
VRING = KRING + 32768
OWNP = VRING + 32768
NONL = 114680
SCRL = OWNP + 8192 + 512
LDS_MAIN = 163840

EARLY = 1
PSLEEP = 2
PRE2 = 0
LATE0 = 0
XTR = False
CODEWARM = 0
PICK = {0, 2, 4, 5, 7, 9, 10, 14}
class PickStamper(Stamper):
    def __init__(self, *a, pick=None, **k):
        super().__init__(*a, **k); self.pick = pick; self.calls = 0; self.force = False
    def __call__(self):
        c = self.calls; self.calls += 1
        if self.force or c in self.pick: super().__call__()
    def flush(self, *a):
        self.force = True
        super().flush(*a)

class Main:
    def __init__(self, pol="nt", stamps=False, trickle=True, pretouch=True):
        self.a = Asm(); self.pol = pol
        self.st = PickStamper(self.a, stamps, 0, 16, sbase=84, pick=PICK)
        self.rare_id = 0; self.rare = []
        self.trickle = trickle; self.pretouch = pretouch

    def issue(self, k_slot, v_slot, kmode, vmode):
        pol = self.pol; out = []
        if kmode:
            out.append("s_lshl_b32 s34, s64, 13")
            out.append("s_add_u32 m0, s36, %d" % (KRING + k_slot * 8192))
            out.append("s_add_u32 s34, s34, s66")
            if kmode == 'dyn':
                out.append("s_cmp_ge_u32 s42, %d" % self.dyn_limit)
                out.append("s_cselect_b32 s34, 0x4000000, s34")
            out.append("buffer_load_dwordx4 v%d, s[12:15], s34 offen %s lds" % (VK0, pol))
            out.append("buffer_load_dwordx4 v%d, s[12:15], s34 offen offset:1024 %s lds" % (VK1, pol))
            out.append("s_add_u32 s64, s64, 1")
            out.append("s_and_b32 s64, s64, 15")
        if vmode:
            out.append("s_lshl_b32 s35, s65, 13")
            out.append("s_add_u32 m0, s36, %d" % (VRING + v_slot * 8192))
            out.append("s_add_u32 s35, s35, s66")
            out.append("buffer_load_dwordx4 v%d, s[16:19], s35 offen %s lds" % (VV, pol))
            out.append("buffer_load_dwordx4 v%d, s[16:19], s35 offen offset:1024 %s lds" % (VV, pol))
            out.append("s_add_u32 s65, s65, 1")
            out.append("s_and_b32 s65, s65, 15")
        return out
    def wo_rows(self, n):
        out = []
        for _ in range(n):
            out.append("s_mov_b32 m0, s49")
            out.append("s_add_u32 s49, s49, %d" % (4 * WOROW))
            out.append("buffer_load_dwordx4 v%d, s[56:59], s48 offen lds" % LANE16)
            out.append("s_add_u32 s48, s48, 4096")
        return out

    def kreads(self, slot):
        return ["ds_read_b128 %s, v%d offset:%d" % (vr(KF + 4 * j, 4), KRA + j, slot * 8192) for j in range(8)]
    def vread(self, slot, u, db):
        r = VF + (u * 4 + db) * 4
        return ["ds_read_b64_tr_b16 %s, v%d offset:%d" % (vr(r, 2), VRA + db, slot * 8192 + u * 4096),
                "ds_read_b64_tr_b16 %s, v%d offset:%d" % (vr(r + 2, 2), VRA + db, slot * 8192 + u * 4096 + 2048)]
    def qk(self, j, snxt):
        return "v_mfma_f32_32x32x16_bf16 %s, %s, %s, %s" % (vr(snxt, 16), vr(KF + 4 * j, 4), ar(4 * j, 4), vr(NEGM, 16) if j == 0 else vr(snxt, 16))
    def pv(self, u, db):
        return "v_mfma_f32_32x32x16_bf16 %s, %s, %s, %s" % (vr(O + 16 * db, 16), vr(VF + (u * 4 + db) * 4, 4), vr(P + 4 * u, 4), vr(O + 16 * db, 16))
    def softmax_ops(self, scur):
        g = []
        for j in range(9):
            ops = []
            if j < 8:
                ops.append("v_exp_f32 v%d, v%d" % (E + 2 * j, scur + 2 * j))
                ops.append("v_exp_f32 v%d, v%d" % (E + 2 * j + 1, scur + 2 * j + 1))
            if j >= 1:
                i = j - 1
                if i == 1:
                    ops.append("v_add_f32 v%d, v%d, v%d" % (TS, E + 0, E + 2)); ops.append("v_add_f32 v%d, v%d, v%d" % (TS2, E + 1, E + 3))
                elif i > 1:
                    ops.append("v_add_f32 v%d, v%d, v%d" % (TS, TS, E + 2 * i)); ops.append("v_add_f32 v%d, v%d, v%d" % (TS2, TS2, E + 2 * i + 1))
                ops.append("v_cvt_pk_bf16_f32 v%d, v%d, v%d" % (P + i, E + 2 * i, E + 2 * i + 1))
            g.append(ops)
        return g
    def phaseA(self, scur, snxt, do_qk):
        a = self.a
        g = self.softmax_ops(scur)
        for j in range(8):
            if do_qk:
                if j == 0: a("s_waitcnt lgkmcnt(10)")
                a(self.qk(j, snxt))
            for o in g[j]: a(o)
        for o in g[8]: a(o)
        a("v_add_f32 v%d, v%d, v%d" % (TS, TS, TS2))
        a("v_cmp_lt_f32 vcc, s44, v%d" % TS)
        rid = self.rare_id; self.rare_id += 1
        a("s_cbranch_vccnz RARE%d" % rid)
        a.label("RET%d" % rid)
        a("v_add_f32 v%d, v%d, v%d" % (LSUM, LSUM, TS))
        self.rare.append((rid, scur, snxt if do_qk else None))
    def phaseB(self, wait_vm, issue_ops, kslot, vslot, barrier=True):
        a = self.a
        if barrier:
            a("s_waitcnt vmcnt(%d) lgkmcnt(0)" % wait_vm)
            a("s_barrier")
        else:
            a("s_waitcnt lgkmcnt(0)")
        kr = self.kreads(kslot) if kslot is not None else []
        iss = list(issue_ops)
        per = (len(iss) + 7) // 8
        for u in range(2):
            for db in range(4):
                a(self.pv(u, db))
                for _ in range(2):
                    if kr: a(kr.pop(0))
                if vslot is not None:
                    for o in self.vread(vslot, u, db): a(o)
                for _ in range(per):
                    if iss: a(iss.pop(0))
        for o in iss: a(o)
    def poll_counter(self, name, soff, target, depth=4):
        a = self.a
        a("s_mov_b64 exec, 1")
        a("s_mov_b32 s41, 0")
        for k in range(depth):
            a("buffer_load_dword v%d, v2, s[24:27], s%d offen sc1" % (12 + k, soff))
            if k < depth - 1: a("s_sleep 2")
        a.label(name)
        for k in range(depth):
            a("s_waitcnt vmcnt(%d)" % (depth - 1))
            a("v_cmp_gt_u32 vcc, %d, v%d" % (target, 12 + k))
            a("s_cbranch_vccz %s_d" % name)
            a("buffer_load_dword v%d, v2, s[24:27], s%d offen sc1" % (12 + k, soff))
        a("s_add_u32 s41, s41, 1")
        a("s_cmp_lt_u32 s41, 0x2000"); a("s_cbranch_scc1 %s" % name)
        a.label("%s_d" % name)
        a("s_mov_b64 exec, -1")

    def emit_rare(self):
        a = self.a
        for rid, scur, snxt in self.rare:
            a.label("RARE%d" % rid)
            a("s_nop 15")
            a("v_max3_f32 v%d, v%d, v%d, v%d" % (T0, scur, scur + 1, scur + 2))
            for i in range(3, 15, 2): a("v_max3_f32 v%d, v%d, v%d, v%d" % (T0, T0, scur + i, scur + i + 1))
            a("v_max_f32 v%d, v%d, v%d" % (T0, T0, scur + 15))
            a("v_mov_b32 v%d, v%d" % (T1, T0))
            a("s_nop 1")
            a("v_permlane32_swap_b32 v%d, v%d" % (T0, T1))
            a("v_max_f32 v%d, v%d, v%d" % (T0, T0, T1))
            a("v_max_f32 v%d, 0, v%d" % (T0, T0))
            a("v_add_f32 v%d, v%d, v%d" % (MREF, MREF, T0))
            a("v_sub_f32 v%d, 0, v%d" % (T1, T0))
            a("v_exp_f32 v%d, v%d" % (T1, T1))
            for i in range(16): a("v_sub_f32 v%d, v%d, v%d" % (NEGM + i, NEGM + i, T0))
            for i in range(16): a("v_sub_f32 v%d, v%d, v%d" % (scur + i, scur + i, T0))
            if snxt is not None:
                for i in range(16): a("v_sub_f32 v%d, v%d, v%d" % (snxt + i, snxt + i, T0))
            a("v_mul_f32 v%d, v%d, v%d" % (LSUM, LSUM, T1))
            for i in range(64): a("v_mul_f32 v%d, v%d, v%d" % (O + i, O + i, T1))
            for grp in self.softmax_ops(scur):
                for o in grp: a(o)
                a("s_nop 0")
            a("v_add_f32 v%d, v%d, v%d" % (TS, TS, TS2))
            a("s_nop 1")
            a("s_branch RET%d" % rid)

    def poll_flags(self, name, voff, soff, reg=12, depth=4):
        a = self.a
        ld = lambda k: "buffer_load_dwordx2 v[%d:%d], v%d, s[24:27], s%d offen sc1" % (reg + 2 * k, reg + 2 * k + 1, voff, soff)
        a("s_mov_b32 s41, 0")
        for k in range(depth):
            a(ld(k))
            if k < depth - 1: a("s_sleep %d" % PSLEEP)
        a.label(name)
        for k in range(depth):
            a("s_waitcnt vmcnt(%d)" % (depth - 1))
            a("v_cmp_ne_u64 vcc, s[80:81], v[%d:%d]" % (reg + 2 * k, reg + 2 * k + 1))
            a("s_cbranch_vccz %s_d" % name)
            a(ld(k))
        a("s_add_u32 s41, s41, 1")
        a("s_cmp_lt_u32 s41, 0x2000"); a("s_cbranch_scc1 %s" % name)
        a.label("%s_d" % name)

    def build(self):
        a = self.a; st = self.st
        st()
        a("s_cmp_ge_u32 s2, 256"); a("s_cbranch_scc1 K2_end")
        for reg, off in ((72, 24), (68, 0), (12, 8), (16, 16), (24, 56), (56, 32), (60, 40), (76, 48)):
            a("s_load_dwordx2 s[%d:%d], s[0:1], %d" % (reg, reg + 1, off))
        a("v_lshrrev_b32 v1, 6, v0")
        a("v_and_b32 v0, 63, v0")
        a("v_readfirstlane_b32 s20, v1")
        a("s_and_b32 s21, s2, 7")
        a("s_lshr_b32 s22, s2, 3"); a("s_and_b32 s23, s22, 3")
        a("s_lshr_b32 s22, s22, 2")
        a("s_lshl_b32 s47, s21, 2"); a("s_add_u32 s47, s47, s23")
        a("s_mov_b32 s74, 0x400000"); a("s_mov_b32 s75, 0x20000"); a("s_mov_b32 s70, 0x40000"); a("s_mov_b32 s71, 0x20000")
        a("v_lshrrev_b32 v2, 4, v0"); a("v_and_b32 v4, 15, v0"); a("v_lshlrev_b32 v3, 2, v2"); a("v_xor_b32 v3, v3, v4")
        a("v_lshlrev_b32 v3, 4, v3"); a("v_lshlrev_b32 v5, 13, v2"); a("v_add_u32 v20, v5, v3")
        a("s_lshl_b32 s37, s20, 3"); a("s_and_b32 s37, s37, 15")
        a("v_add_u32 v3, s37, v2"); a("v_xor_b32 v5, v3, v4"); a("v_lshlrev_b32 v5, 4, v5"); a("v_lshlrev_b32 v6, 10, v2"); a("v_add_u32 v21, v5, v6")
        a("v_add_u32 v3, 4, v3"); a("v_xor_b32 v5, v3, v4"); a("v_lshlrev_b32 v5, 4, v5"); a("v_add_u32 v22, v5, v6")
        a("s_add_u32 s43, s22, s23"); a("s_and_b32 s43, s43, 3")
        a("s_lshl_b32 s33, s22, 15"); a("s_lshl_b32 s34, s20, 13"); a("s_add_u32 s33, s33, s34")
        a("s_lshl_b32 s34, s20, 11")
        a("s_lshl_b32 s30, s20, 18"); a("s_lshl_b32 s31, s47, 8"); a("s_add_u32 s30, s30, s31")
        a("s_lshl_b32 s32, s20, 13"); a("s_add_u32 s32, s32, 8192")
        if CODEWARM:
            a("s_lshr_b32 s38, s2, 3"); a("s_cmp_ge_u32 s38, %d" % CODEWARM); a("s_cbranch_scc1 K2_ncw")
            a("s_cmp_lg_u32 s20, 3"); a("s_cbranch_scc1 K2_ncw")
            a("s_getpc_b64 s[40:41]")
            a("s_lshl_b32 s38, s38, 13")
            a("v_lshlrev_b32 v24, 7, v0"); a("v_add_u32 v24, s38, v24")
            a("v_mov_b32 v25, s41")
            a("v_add_co_u32 v24, vcc, s40, v24")
            a("v_addc_co_u32 v25, vcc, 0, v25, vcc")
            a("global_load_dword v26, v[24:25], off")
            a.label("K2_ncw")
        a("s_waitcnt lgkmcnt(0)")
        QS = lambda i: (81920, 122880, 40960, 0)[i]
        for i in range(4):
            a("s_add_u32 s38, s43, %d" % i); a("s_and_b32 s38, s38, 3")
            a("s_lshl_b32 s39, s38, 20"); a("s_add_u32 s39, s39, s30")
            for e in range(8):
                a("s_add_u32 m0, s32, %d" % (QS(i) + e * 1024))
                a("s_add_u32 s40, s39, %d" % (e * 32768))
                a("buffer_load_dwordx4 v20, s[72:75], s40 offen lds")
            a("s_lshl_b32 s39, s38, 8"); a("s_add_u32 s39, s39, s33")
            a("s_add_u32 m0, s34, %d" % QS(i))
            a("s_add_u32 s40, s39, 4096")
            a("buffer_load_dwordx4 v21, s[68:71], s39 offen lds")
            a("s_add_u32 m0, s34, %d" % (QS(i) + 1024))
            a("s_nop 0")
            a("buffer_load_dwordx4 v22, s[68:71], s40 offen lds")
        for reg, nb in ((12, 0x2000000), (16, 0x2000000), (24, 0x10000000), (56, 4096 * 512 * 2), (60, 8 * 32 * 512 * 2), (76, 256)):
            a("s_mov_b32 s%d, 0x%x" % (reg + 2, nb)); a("s_mov_b32 s%d, 0x20000" % (reg + 3))
        a("s_lshl_b32 s28, s22, 3"); a("s_add_u32 s28, s28, s21")
        a("s_lshl_b32 s29, s28, 19"); a("s_lshl_b32 s30, s23, 17"); a("s_add_u32 s29, s29, s30")
        a("s_mul_i32 s54, s28, 0x%x" % GS); a("s_add_u32 s54, s54, 0x%x" % WS_G)
        a("s_mul_i32 s55, s22, 0x%x" % BS); a("s_add_u32 s55, s55, 0x%x" % WS_B)
        a("s_cmp_lg_u32 s20, 0"); a("s_cbranch_scc1 K2_noat")
        a("s_memrealtime s[82:83]")
        a("v_mov_b32 v30, 0"); a("v_mov_b32 v31, 0"); a("v_mov_b32 v7, 0")
        a("s_lshl_b32 s38, s22, 5")
        a("s_waitcnt lgkmcnt(0)")
        a("s_or_b32 s82, s82, 1")
        a("v_mov_b32 v28, s82"); a("v_mov_b32 v29, s83")
        a("s_mov_b64 exec, 1")
        a("buffer_atomic_cmpswap_x2 v[28:31], v7, s[76:79], s38 offen sc0 sc1")
        a("s_mov_b64 exec, -1")
        a.label("K2_noat")
        a("v_lshrrev_b32 v2, 4, v0"); a("v_and_b32 v3, 15, v0")
        a("s_lshl_b32 s31, s20, 3"); a("s_and_b32 s31, s31, 15")
        a("v_add_u32 v4, s31, v2")
        a("v_xor_b32 v5, v4, v3"); a("v_lshlrev_b32 v5, 4, v5")
        a("v_lshlrev_b32 v6, 8, v2")
        a("v_add_u32 v%d, v5, v6" % VK0)
        a("v_add_u32 v4, 4, v4")
        a("v_xor_b32 v5, v4, v3"); a("v_lshlrev_b32 v5, 4, v5")
        a("v_add_u32 v%d, v5, v6" % VK1)
        a("v_lshlrev_b32 v5, 2, v2"); a("v_xor_b32 v5, v5, v3"); a("v_lshlrev_b32 v5, 4, v5")
        a("v_add_u32 v%d, v5, v6" % VV)
        a("v_lshlrev_b32 v%d, 4, v0" % LANE16)
        a("s_lshl_b32 s36, s20, 11")
        a("s_add_u32 s66, s29, s36")
        if ROT: a("s_lshr_b32 s64, s2, 3"); a("s_and_b32 s64, s64, 15")
        else: a("s_mov_b32 s64, 0")
        a("s_mov_b32 s65, s64")
        a("s_lshl_b32 s48, s47, 7"); a("s_add_u32 s48, s48, s20"); a("s_lshl_b32 s48, s48, 10")
        a("s_mul_i32 s49, s20, %d" % WOROW)
        a("v_and_b32 v4, 15, v0"); a("v_lshrrev_b32 v4, 2, v4"); a("v_lshrrev_b32 v5, 5, v0")
        a("v_lshlrev_b32 v6, 3, v5"); a("v_add_u32 v6, v6, v4"); a("v_lshlrev_b32 v6, 8, v6")
        a("v_xor_b32 v7, s20, v4"); a("v_lshlrev_b32 v7, 6, v7"); a("v_add_u32 v6, v6, v7")
        a("v_lshrrev_b32 v7, 4, v0"); a("v_and_b32 v7, 1, v7"); a("v_lshlrev_b32 v7, 5, v7"); a("v_add_u32 v6, v6, v7")
        a("v_and_b32 v7, 3, v0"); a("v_lshlrev_b32 v7, 3, v7"); a("v_add_u32 v6, v6, v7")
        a("v_add_u32 v6, %d, v6" % (8192 + QS(0)))
        a("v_and_b32 v1, 31, v0"); a("v_and_b32 v7, 15, v1"); a("v_xor_b32 v7, v7, v5"); a("v_lshlrev_b32 v7, 4, v7"); a("v_lshlrev_b32 v1, 8, v1"); a("v_add_u32 v1, %d, v1" % QS(0))
        for e in range(8):
            a("v_xor_b32 v%d, %d, v7" % (12 + e, e * 32)); a("v_add_u32 v%d, v%d, v1" % (12 + e, 12 + e))
        ACC = SB[0]; AF = [KF, O]; BF = [VF, O + 32]
        def qreads(i):
            out = []
            for e in range(8):
                fr = AF[i % 2] + 4 * e; br = BF[i % 2] + 4 * e
                out += ["ds_read_b64_tr_b16 v[%d:%d], v6 offset:%d" % (fr, fr + 1, e * 4096),
                        "ds_read_b64_tr_b16 v[%d:%d], v6 offset:%d" % (fr + 2, fr + 3, e * 4096 + 1024),
                        "ds_read_b128 v[%d:%d], v%d" % (br, br + 3, 12 + e)]
            return out
        tr = [2, 1, 1, 1] if self.trickle else [0, 0, 0, 0]
        def dummy(n):
            out = []
            for _ in range(n):
                out += ["s_mov_b32 m0, %d" % SCRL, "s_mov_b32 s38, 0x4000000", "buffer_load_dwordx4 v%d, s[56:59], s38 offen lds" % LANE16]
            return out
        for i in range(4):
            if i < 3: a("s_waitcnt vmcnt(%d)" % (30, 20, 16)[i])
            else:
                a("s_waitcnt vmcnt(%d)" % ((6, 2, 0)[LATE0] + sum(4 + tr[t] for t in (1, 2)[:PRE2])))
                a("s_cmp_lg_u32 s20, 0"); a("s_cbranch_scc1 K2_nonl")
                a("v_mov_b32 v1, s82"); a("v_mov_b32 v2, s83")
                a("v_cmp_eq_u32 vcc, 0, v28")
                a("v_cndmask_b32 v28, v28, v1, vcc"); a("v_cndmask_b32 v29, v29, v2, vcc")
                a("v_mov_b32 v1, %d" % NONL)
                a("s_mov_b64 exec, 1")
                a("ds_write_b64 v1, v[28:29]")
                a("s_mov_b64 exec, -1")
                a("s_waitcnt lgkmcnt(0)")
                a.label("K2_nonl")
            a("s_barrier")
            if i == 0: st()
            if i == 1:
                if LATE0 == 0:
                    for o in self.issue(0, None, 'real', None) + self.issue(1, 0, 'real', 'real'): a(o)
                elif LATE0 == 1:
                    for o in self.issue(0, None, 'real', None): a(o)
            if i == 2:
                for t in (1, 2)[:PRE2]:
                    for o in self.issue(t + 1, t, 'real', 'real') + dummy(tr[t]): a(o)
            for o in qreads(i): a(o)
            if i < 3:
                dl = (QS(i + 1) - QS(i)) & 0xffffffff
                a("v_add_u32 v6, 0x%x, v6" % dl)
                for e in range(8): a("v_add_u32 v%d, 0x%x, v%d" % (12 + e, dl, 12 + e))
            if i == 3:
                a("v_mov_b32 v1, %d" % NONL); a("ds_read_b64 v[2:3], v1")
            for e in range(8):
                a("s_waitcnt lgkmcnt(%d)" % min(15, 3 * (7 - e) + (1 if i == 3 else 0)))
                fr = AF[i % 2] + 4 * e; br = BF[i % 2] + 4 * e
                a("v_mfma_f32_32x32x16_bf16 %s, v[%d:%d], v[%d:%d], %s" % (vr(ACC, 16), fr, fr + 3, br, br + 3, "0" if (i == 0 and e == 0) else vr(ACC, 16)))
        st()
        a("s_waitcnt lgkmcnt(0)")
        a("v_readfirstlane_b32 s80, v2"); a("v_readfirstlane_b32 s81, v3")
        a("s_mov_b32 s50, 0x%x" % CSCALE)
        a("s_lshl_b32 s34, s23, 13"); a("s_add_u32 s34, s34, s54"); a("s_add_u32 s34, s34, 0x%x" % G_QX); a("s_add_u32 s34, s34, s36")
        for i in range(16): a("v_mul_f32 v%d, s50, v%d" % (ACC + i, ACC + i))
        for i in range(8): a("v_cvt_pk_bf16_f32 v%d, v%d, v%d" % (E + i, ACC + 2 * i, ACC + 1 + 2 * i))
        for u in range(2):
            a("v_permlane32_swap_b32 v%d, v%d" % (E + 4 * u, E + 2 + 4 * u))
            a("v_permlane32_swap_b32 v%d, v%d" % (E + 1 + 4 * u, E + 3 + 4 * u))
        a("buffer_store_dwordx4 %s, v%d, s[24:27], s34 offen sc1" % (vr(E, 4), LANE16))
        a("buffer_store_dwordx4 %s, v%d, s[24:27], s34 offen offset:1024 sc1" % (vr(E + 4, 4), LANE16))
        a("v_and_b32 v1, 31, v0"); a("v_lshrrev_b32 v2, 5, v0")
        a("v_xor_b32 v3, v1, v2"); a("v_and_b32 v3, 15, v3"); a("v_lshlrev_b32 v3, 4, v3")
        a("v_lshlrev_b32 v6, 8, v1"); a("v_add_u32 v6, 0x%x, v6" % KRING)
        for j in range(8):
            a("v_xor_b32 v%d, %d, v3" % (KRA + j, j * 32))
            a("v_add_u32 v%d, v%d, v6" % (KRA + j, KRA + j))
        a("v_and_b32 v3, 15, v0"); a("v_lshrrev_b32 v3, 2, v3")
        a("v_lshlrev_b32 v6, 2, v2"); a("v_add_u32 v6, v6, v3"); a("v_lshlrev_b32 v6, 8, v6")
        a("v_lshrrev_b32 v4, 4, v0"); a("v_and_b32 v4, 1, v4"); a("v_lshlrev_b32 v4, 5, v4"); a("v_add_u32 v6, v6, v4")
        a("v_and_b32 v4, 3, v0"); a("v_lshlrev_b32 v4, 3, v4"); a("v_add_u32 v6, v6, v4")
        a("v_add_u32 v6, 0x%x, v6" % VRING)
        for db in range(4):
            a("v_xor_b32 v4, %d, v3" % db); a("v_lshlrev_b32 v4, 6, v4")
            a("v_add_u32 v%d, v6, v4" % (VRA + db))
        for i in range(64): a("v_mov_b32 v%d, 0" % (O + i))
        for i in range(16): a("v_mov_b32 v%d, 0" % (NEGM + i))
        a("v_mov_b32 v%d, 0" % LSUM)
        a("s_mov_b32 s44, 0x%x" % THRESH)
        a("s_mov_b32 s42, 0")
        a("v_mov_b32 v%d, s80" % (E + 8)); a("v_mov_b32 v%d, s81" % (E + 9)); a("v_mov_b32 v7, 0")
        a("s_lshl_b32 s37, s23, 5"); a("s_lshl_b32 s38, s20, 3"); a("s_add_u32 s37, s37, s38"); a("s_add_u32 s37, s37, s54"); a("s_add_u32 s37, s37, 0x%x" % G_F0)
        a("s_waitcnt vmcnt(0)")
        st()
        a("s_mov_b64 exec, 1")
        a("buffer_store_dwordx2 v[%d:%d], v7, s[24:27], s37 offen sc1" % (E + 8, E + 9))
        if LATE0 == 0: a("s_barrier")
        a("s_mov_b64 exec, -1")
        if LATE0 == 2:
            for o in self.issue(0, None, 'real', None): a(o)
        if LATE0 >= 1:
            for o in self.issue(1, 0, 'real', 'real'): a(o)
        for t in (1, 2)[PRE2:PRE2 + EARLY]:
            for o in self.issue(t + 1, t, 'real', 'real') + dummy(tr[t]): a(o)
        a("s_mov_b64 exec, 0xf")
        a("v_lshlrev_b32 v7, 3, v0")
        a("s_lshl_b32 s37, s20, 5"); a("s_add_u32 s37, s37, s54"); a("s_add_u32 s37, s37, 0x%x" % G_F0)
        self.poll_flags("POLL0", 7, 37, reg=VF)
        a("s_mov_b64 exec, -1")
        st()
        a("s_lshl_b32 s33, s20, 13"); a("s_add_u32 s33, s33, s54"); a("s_add_u32 s33, s33, 0x%x" % G_QX); a("s_add_u32 s37, s33, 4096")
        for j in range(8):
            a("buffer_load_dwordx4 %s, v%d, s[24:27], s%d offen offset:%d sc1" % (ar(4 * j, 4), LANE16, 33 if j < 4 else 37, (j % 4) * 1024))
        for t in (1, 2)[PRE2 + EARLY:]:
            for o in self.issue(t + 1, t, 'real', 'real') + dummy(tr[t]): a(o)
        if LATE0 == 0:
            for o in self.kreads(0): a(o)
            a("s_waitcnt vmcnt(%d) lgkmcnt(0)" % sum(4 + tr[t] for t in (1, 2)[PRE2 + EARLY:]))
        else:
            a("s_waitcnt vmcnt(%d)" % sum(4 + tr[t] for t in (1, 2)[PRE2 + EARLY:]))
            a("s_barrier")
            for o in self.kreads(0): a(o)
            a("s_waitcnt lgkmcnt(0)")
        for j in range(8): a(self.qk(j, SB[0]))
        a("s_barrier")
        for o in self.issue(0, 3, 'real', 'real') + dummy(tr[3]): a(o)
        for o in self.kreads(1): a(o)
        for u in range(2):
            for db in range(4):
                for o in self.vread(0, u, db): a(o)
        if self.pretouch:
            a("v_mul_u32_u24 v1, 0x%x, v0" % 0x8000)
            a("s_mov_b64 s[50:51], exec"); a("s_mov_b64 exec, 0x1f")
            a("buffer_load_dword v2, v1, s[24:27], s54 offen")
            a("v_lshlrev_b32 v1, 18, v0")
            a("buffer_load_dword v3, v1, s[24:27], s55 offen")
            a("s_mov_b64 exec, 1")
            a("s_lshl_b32 s38, s22, 15")
            a("v_mov_b32 v1, 0")
            a("buffer_load_dword v4, v1, s[60:63], s38 offen")
            a("s_mov_b64 exec, s[50:51]")
        s0 = SB[0]
        a("v_max3_f32 v%d, v%d, v%d, v%d" % (T0, s0, s0 + 1, s0 + 2))
        for i in range(3, 15, 2): a("v_max3_f32 v%d, v%d, v%d, v%d" % (T0, T0, s0 + i, s0 + i + 1))
        a("v_max_f32 v%d, v%d, v%d" % (T0, T0, s0 + 15))
        a("v_mov_b32 v%d, v%d" % (T1, T0))
        a("v_permlane32_swap_b32 v%d, v%d" % (T0, T1))
        a("v_max_f32 v%d, v%d, v%d" % (MREF, T0, T1))
        for i in range(16): a("v_sub_f32 v%d, 0, v%d" % (NEGM + i, MREF))
        for i in range(16): a("v_sub_f32 v%d, v%d, v%d" % (s0 + i, s0 + i, MREF))
        self.dyn_limit = 2
        st()
        a.label("K2_loop")
        for k in range(4):
            self.phaseA(SB[k % 2], SB[(k + 1) % 2], True)
            iss = self.issue((k + 1) % 4, k, 'dyn' if k == 3 else 'real', 'real') + self.wo_rows(tr[k])
            self.phaseB(8 + sum(tr) - tr[k], iss, (k + 2) % 4, (k + 1) % 4)
        a("s_add_u32 s42, s42, 1"); a("s_cmp_lt_u32 s42, 3")
        a("s_cbranch_scc1 K2_loop")
        st()
        x12 = 2 if (self.trickle and XTR) else 0; x13 = 1 if (self.trickle and XTR) else 0
        self.phaseA(SB[0], SB[1], True)
        self.phaseB(8 + tr[1] + tr[2] + tr[3], self.wo_rows(x12), 2, 1)
        self.phaseA(SB[1], SB[0], True)
        self.phaseB(4 + tr[2] + tr[3] + x12, self.wo_rows(x13), 3, 2)
        self.phaseA(SB[0], SB[1], True)
        self.phaseB(0, [], None, None, barrier=False)
        self.phaseA(SB[1], None, False)
        a("s_waitcnt vmcnt(0)")
        a("s_barrier")
        st()
        for db in range(4):
            for u in range(2):
                for o in self.vread(3, u, db): a(o)
        nrow_done = (15 + x12 + x13) if self.trickle else 0
        a("v_mov_b32 v%d, v%d" % (T0, LSUM))
        a("s_lshl_b32 s46, s20, 15"); a("s_lshl_b32 s37, s23, 13"); a("s_add_u32 s46, s46, s37"); a("s_add_u32 s46, s46, s54")
        a("v_permlane32_swap_b32 v%d, v%d" % (LSUM, T0))
        a("s_lshl_b32 s37, s20, 11"); a("s_lshl_b32 s38, s23, 9"); a("s_add_u32 s37, s37, s38"); a("s_add_u32 s37, s37, s54"); a("s_add_u32 s37, s37, 0x20000")
        a("v_add_f32 v%d, v%d, v%d" % (LSUM, LSUM, T0))
        a("v_mov_b32 v%d, 0" % TS); a("v_mov_b32 v%d, 0" % TS2)
        a("s_mov_b32 s12, s24"); a("s_mov_b32 s13, s25"); a("s_mov_b32 s15, 0x20000")
        a("s_cmp_eq_u32 s20, s23"); a("s_cselect_b32 s14, 0, 0x10000000")
        a("v_cmp_gt_u32 vcc, 32, v0")
        a("s_and_saveexec_b64 s[50:51], vcc")
        a("buffer_store_dwordx4 v[%d:%d], v%d, s[12:15], s37 offen sc1" % (MREF, TS2, LANE16))
        a("s_mov_b64 exec, s[50:51]")
        a("s_add_u32 s38, s46, 4096")
        n = 16
        def pub(db):
            for i in (2 * db, 2 * db + 1):
                for q in range(4):
                    a("v_cvt_pk_bf16_f32 v%d, v%d, v%d" % (KF + 4 * i + q, O + 8 * i + 2 * q, O + 8 * i + 2 * q + 1))
                a("buffer_store_dwordx4 %s, v%d, s[12:15], s%d offen offset:%d sc1" % (vr(KF + 4 * i, 4), LANE16, 46 if i < 4 else 38, (i % 4) * 1024))
        for db in range(4):
            a("s_waitcnt lgkmcnt(%d)" % (12 - 4 * db))
            a(self.pv(0, db)); a(self.pv(1, db))
            if db >= 1: pub(db - 1)
        pub(3)
        st()
        a("s_cmp_lg_u32 s20, s23"); a("s_cbranch_scc1 K2_nown")
        a("v_add_u32 v1, %d, v%d" % (OWNP, LANE16))
        for i in range(8): a("ds_write_b128 v1, %s offset:%d" % (vr(KF + 4 * i, 4), i * 1024))
        a("s_mov_b64 exec, 0xffffffff") if False else None
        a("v_cmp_gt_u32 vcc, 32, v0"); a("s_and_saveexec_b64 s[50:51], vcc")
        a("ds_write_b128 v1, v[%d:%d] offset:8192" % (MREF, TS2))
        a("s_mov_b64 exec, s[50:51]")
        a.label("K2_nown")
        a("s_waitcnt lgkmcnt(0)")
        a("s_barrier")
        a("s_lshl_b32 s40, s20, 5"); a("s_lshl_b32 s38, s23, 3"); a("s_add_u32 s40, s40, s38"); a("s_add_u32 s40, s40, s54"); a("s_add_u32 s40, s40, 0x%x" % G_F1)
        a("v_mov_b32 v4, s80"); a("v_mov_b32 v5, s81"); a("v_mov_b32 v2, 0")
        a("s_waitcnt vmcnt(0)")
        st()
        a("s_mov_b64 exec, 1")
        a("buffer_store_dwordx2 v[4:5], v2, s[12:15], s40 offen sc1")
        a("s_mov_b64 exec, -1")
        for o in self.wo_rows(32 - nrow_done): a(o)
        a("s_lshl_b32 s40, s23, 5"); a("s_add_u32 s40, s40, s54"); a("s_add_u32 s40, s40, 0x%x" % G_F1)
        a("v_lshlrev_b32 v7, 3, v0")
        a("s_lshl_b32 s38, 1, s23"); a("s_andn2_b32 s38, 0xf, s38"); a("s_mov_b32 s39, 0"); a("s_mov_b64 exec, s[38:39]")
        self.poll_flags("K2_poll", 7, 40, reg=12)
        a("s_mov_b64 exec, -1")
        st()
        a("v_and_b32 v3, 31, v0"); a("v_lshlrev_b32 v3, 4, v3")
        a("s_lshl_b32 s37, s23, 11"); a("s_add_u32 s37, s37, s54"); a("s_add_u32 s37, s37, 0x20000")
        a("s_lshl_b32 s46, s23, 15"); a("s_add_u32 s46, s46, s54"); a("s_add_u32 s46, s46, s36")
        for k in range(1, 4):
            a("s_add_u32 s38, s23, %d" % k); a("s_and_b32 s38, s38, 3"); a("s_lshl_b32 s39, s38, 9"); a("s_add_u32 s39, s39, s37")
            a("buffer_load_dwordx4 v[%d:%d], v3, s[24:27], s39 offen sc1" % (32 + 4 * k, 35 + 4 * k))
        for k in range(1, 4):
            a("s_add_u32 s38, s23, %d" % k); a("s_and_b32 s38, s38, 3"); a("s_lshl_b32 s39, s38, 13"); a("s_add_u32 s39, s39, s46")
            for i in range(2):
                r = 64 + 8 * k + 4 * i
                a("buffer_load_dwordx4 v[%d:%d], v%d, s[24:27], s39 offen offset:%d sc1" % (r, r + 3, LANE16, i * 1024))
        a("v_add_u32 v1, %d, v3" % (OWNP + 8192)); a("ds_read_b128 v[32:35], v1")
        a("s_add_u32 s39, s36, %d" % OWNP); a("v_add_u32 v1, s39, v%d" % LANE16)
        a("ds_read_b128 v[64:67], v1"); a("ds_read_b128 v[68:71], v1 offset:1024")
        a("v_and_b32 v4, 15, v0"); a("v_lshrrev_b32 v4, 2, v4")
        a("v_lshrrev_b32 v5, 5, v0"); a("v_lshlrev_b32 v5, 2, v5"); a("v_add_u32 v4, v4, v5")
        a("v_mul_u32_u24 v4, %d, v4" % WOROW)
        a("v_lshrrev_b32 v5, 4, v0"); a("v_and_b32 v5, 1, v5"); a("v_lshlrev_b32 v5, 5, v5"); a("v_add_u32 v4, v4, v5")
        a("v_and_b32 v5, 3, v0"); a("v_lshlrev_b32 v5, 3, v5"); a("v_add_u32 v4, v4, v5")
        a("s_lshl_b32 s38, s20, 8"); a("v_add_u32 v4, s38, v4")
        a("v_add_u32 v5, %d, v4" % (64 * WOROW))
        a("s_waitcnt vmcnt(6) lgkmcnt(0)")
        a("v_max3_f32 v16, v32, v36, v40"); a("v_max_f32 v16, v16, v44")
        for s in range(4): a("v_sub_f32 v%d, v%d, v16" % (32 + 4 * s, 32 + 4 * s))
        for s in range(4): a("v_exp_f32 v%d, v%d" % (32 + 4 * s, 32 + 4 * s))
        a("v_mul_f32 v17, v32, v33"); a("v_fmac_f32 v17, v36, v37"); a("v_fmac_f32 v17, v40, v41"); a("v_fmac_f32 v17, v44, v45")
        a("v_rcp_f32 v17, v17")
        for s in range(4): a("v_mul_f32 v%d, v%d, v17" % (32 + 4 * s, 32 + 4 * s))
        a("s_mov_b32 s40, 0xffff0000")
        a("s_waitcnt vmcnt(0)")
        st()
        for i in range(8):
            for s in range(4):
                r = 64 + 8 * s + i
                a("v_lshlrev_b32 v18, 16, v%d" % r); a("v_and_b32 v19, s40, v%d" % r)
                if s == 0:
                    a("v_mul_f32 v20, v18, v32"); a("v_mul_f32 v21, v19, v32")
                else:
                    a("v_fmac_f32 v20, v18, v%d" % (32 + 4 * s)); a("v_fmac_f32 v21, v19, v%d" % (32 + 4 * s))
            a("v_cvt_pk_bf16_f32 v%d, v20, v21" % (24 + i))
        a("s_add_u32 s39, s36, %d" % BIMG)
        a("v_add_u32 v6, s39, v%d" % LANE16)
        a("ds_write_b128 v6, v[24:27]"); a("ds_write_b128 v6, v[28:31] offset:1024")
        a("v_add_u32 v6, %d, v%d" % (BIMG, LANE16))
        a("s_waitcnt lgkmcnt(0)")
        a("s_barrier")
        for i in range(8): a("ds_read_b128 v[%d:%d], v6 offset:%d" % (32 + 4 * i, 35 + 4 * i, i * 1024))
        seq = [(nt, db, u) for nt in range(4) for db in range(4) for u in range(2)]
        AFR = 64; ACC = 168
        a("s_lshl_b32 s34, s20, 18"); a("s_lshl_b32 s35, s47, 10"); a("s_add_u32 s34, s34, s35"); a("s_add_u32 s34, s34, s55")
        def reads(n):
            nt, db, u = seq[n]
            fr = AFR + 4 * (n % 8)
            base = 4 if db < 2 else 5
            off = ((db % 2) * 32 + 16 * u) * WOROW + nt * 64
            return ["ds_read_b64_tr_b16 v[%d:%d], v%d offset:%d" % (fr, fr + 1, base, off),
                    "ds_read_b64_tr_b16 v[%d:%d], v%d offset:%d" % (fr + 2, fr + 3, base, off + 8 * WOROW)]
        def pub2(nt):
            for u in range(2):
                r = 96 + 4 * ((2 * nt + u) % 4)
                for q in range(4):
                    a("v_cvt_pk_bf16_f32 v%d, v%d, v%d" % (r + q, ACC + 16 * nt + 8 * u + 2 * q, ACC + 16 * nt + 8 * u + 2 * q + 1))
                a("buffer_store_dwordx4 v[%d:%d], v%d, s[24:27], s34 offen sc1" % (r, r + 3, LANE16))
                a("s_add_u32 s34, s34, 0x8000")
        D = 6
        for n in range(D):
            for o in reads(n): a(o)
        for n in range(32):
            nt, db, u = seq[n]
            fr = AFR + 4 * (n % 8)
            rem = min(D - 1, 31 - n)
            a("s_waitcnt lgkmcnt(%d)" % (2 * rem))
            bq = 32 + (db * 2 + u) * 4
            first = (db == 0 and u == 0)
            acc = "v[%d:%d]" % (ACC + 16 * nt, ACC + 16 * nt + 15)
            a("v_mfma_f32_32x32x16_bf16 %s, v[%d:%d], v[%d:%d], %s" % (acc, fr, fr + 3, bq, bq + 3, "0" if first else acc))
            if n + D < 32:
                for o in reads(n + D): a(o)
            if n % 8 == 2 and nt >= 1: pub2(nt - 1)
        st()
        pub2(3)
        a("s_lshl_b32 s40, s20, 11"); a("s_lshl_b32 s38, s47, 3"); a("s_add_u32 s40, s40, s38"); a("s_add_u32 s40, s40, s55"); a("s_add_u32 s40, s40, 0x100000")
        a("v_mov_b32 v4, s80"); a("v_mov_b32 v5, s81"); a("v_lshlrev_b32 v2, 8, v0")
        a("s_waitcnt vmcnt(0)")
        st()
        a("s_mov_b64 exec, 0xff")
        a("buffer_store_dwordx2 v[4:5], v2, s[24:27], s40 offen sc1")
        a("s_mov_b64 exec, -1")
        a("s_lshl_b32 s40, s47, 8"); a("s_lshl_b32 s38, s20, 6"); a("s_add_u32 s40, s40, s38"); a("s_add_u32 s40, s40, s55"); a("s_add_u32 s40, s40, 0x100000")
        a("v_lshlrev_b32 v7, 3, v0")
        a("s_mov_b64 exec, 0xff")
        self.poll_flags("K2_poll2", 7, 40, reg=12)
        a("s_mov_b64 exec, -1")
        st()
        a("s_lshl_b32 s30, s47, 15"); a("s_lshl_b32 s31, s20, 13"); a("s_add_u32 s30, s30, s31"); a("s_add_u32 s30, s30, s55")
        for i in range(8):
            if i == 4: a("s_add_u32 s30, s30, 4096")
            a("buffer_load_dwordx4 v[%d:%d], v%d, s[24:27], s30 offen offset:%d sc1" % (32 + 4 * i, 35 + 4 * i, LANE16, (i % 4) * 1024))
        a("s_mov_b32 s40, 0xffff0000")
        a("s_add_u32 s38, s36, %d" % OWNP); a("v_add_u32 v3, s38, v%d" % LANE16)
        AC = 64
        for i in range(8):
            a("s_waitcnt vmcnt(%d)" % (7 - i))
            for q in range(4):
                r = 32 + 4 * i + q
                if i == 0:
                    a("v_lshlrev_b32 v%d, 16, v%d" % (AC + 2 * q, r)); a("v_and_b32 v%d, s40, v%d" % (AC + 1 + 2 * q, r))
                else:
                    a("v_lshlrev_b32 v4, 16, v%d" % r); a("v_and_b32 v5, s40, v%d" % r)
                    a("v_add_f32 v%d, v%d, v4" % (AC + 2 * q, AC + 2 * q)); a("v_add_f32 v%d, v%d, v5" % (AC + 1 + 2 * q, AC + 1 + 2 * q))
        st()
        a("ds_write_b128 v3, v[%d:%d]" % (AC, AC + 3)); a("ds_write_b128 v3, v[%d:%d] offset:1024" % (AC + 4, AC + 7))
        a("s_waitcnt lgkmcnt(0)"); a("s_barrier")
        a("s_cmp_lg_u32 s20, 0"); a("s_cbranch_scc1 K2_fin")
        for w in range(1, 4):
            a("ds_read_b128 v[%d:%d], v3 offset:%d" % (72 + 8 * w, 75 + 8 * w, w * 2048))
            a("ds_read_b128 v[%d:%d], v3 offset:%d" % (76 + 8 * w, 79 + 8 * w, w * 2048 + 1024))
        a("v_and_b32 v3, 31, v0"); a("v_lshlrev_b32 v3, 10, v3")
        a("v_lshrrev_b32 v4, 5, v0"); a("v_lshlrev_b32 v4, 4, v4"); a("v_add_u32 v3, v3, v4")
        a("s_lshl_b32 s32, s22, 15"); a("s_lshl_b32 s33, s47, 5"); a("s_add_u32 s32, s32, s33")
        a("s_waitcnt lgkmcnt(0)")
        for w in range(1, 4):
            for q in range(8): a("v_add_f32 v%d, v%d, v%d" % (AC + q, AC + q, 72 + 8 * w + q))
        for q in range(4): a("v_cvt_pk_bf16_f32 v%d, v%d, v%d" % (20 + q, AC + 2 * q, AC + 1 + 2 * q))
        a("v_permlane32_swap_b32 v20, v22"); a("v_permlane32_swap_b32 v21, v23")
        a("buffer_store_dwordx4 v[20:23], v3, s[60:63], s32 offen")
        a.label("K2_fin")
        st()
        st.flush(2, 20, 24, "K2_end2")
        a.label("K2_end")
        a("s_endpgm")
        self.emit_rare()
        return a

if __name__ == "__main__":
    out = sys.argv[1] if len(sys.argv) > 1 else "v19.s"
    POL = "" if "--plain" in sys.argv else ("sc1 nt" if "--sc1nt" in sys.argv else "nt")
    if "--norot" in sys.argv: ROT = False
    for x in sys.argv:
        if x.startswith("--early="): EARLY = int(x.split("=")[1])
        if x.startswith("--psleep="): PSLEEP = int(x.split("=")[1])
        if x.startswith("--pre2="): PRE2 = int(x.split("=")[1])
        if x.startswith("--late0="): LATE0 = int(x.split("=")[1])
        if x == "--noxtr": XTR = False
        if x == "--xtr": XTR = True
        if x.startswith("--codewarm="): CODEWARM = int(x.split("=")[1])
        if x.startswith("--pick="): PICK = set(int(v) for v in x.split("=")[1].split(","))
    k2 = Main(POL, stamps=("--stampm" in sys.argv), trickle=("--notrickle" not in sys.argv), pretouch=("--pretouch" in sys.argv)).build()
    build_file([(MAIN, k2, 256, 256, LDS_MAIN, NV + 32, NV, 102)], out)
```

```python
import sys, struct, math
from asmlib import *

MAIN = "standalone__gqa_block_cached__near_ridge_kernel"
WS_Q = 0x0
WS_G = 0x400000
GS = 0x2C000
G_F1 = 0x22000
G_F0 = 0x22080
G_QX = 0x23000
WS_B = 0x1400000
BS = 0x110000
def f32bits(x): return struct.unpack("<I", struct.pack("<f", x))[0]
CSCALE = f32bits((128 ** -0.5) * math.log2(math.e))
THRESH = f32bits(2.0 ** 20)

def srd(a, dst, lo, hi, nbytes):
    a("s_mov_b32 s%d, s%d" % (dst, lo)); a("s_mov_b32 s%d, s%d" % (dst + 1, hi))
    a("s_mov_b32 s%d, 0x%x" % (dst + 2, nbytes)); a("s_mov_b32 s%d, 0x20000" % (dst + 3))
def vr(b, n=1): return "v%d" % b if n == 1 else "v[%d:%d]" % (b, b + n - 1)
def ar(b, n=1): return "a%d" % b if n == 1 else "a[%d:%d]" % (b, b + n - 1)

def kv_base(a, idreg, dst, tmp):
    a("s_and_b32 s21, s%d, 7" % idreg); a("s_lshr_b32 s22, s%d, 3" % idreg); a("s_lshr_b32 s23, s22, 2"); a("s_and_b32 s24, s22, 3")
    a("s_lshl_b32 s%d, s23, 3" % dst); a("s_add_u32 s%d, s%d, s21" % (dst, dst)); a("s_lshl_b32 s%d, s%d, 19" % (dst, dst))
    a("s_lshl_b32 s%d, s24, 17" % tmp); a("s_add_u32 s%d, s%d, s%d" % (dst, dst, tmp))

PF_DELAY = 2
PF_DEPTH = None
PF_TILES = [1, 3, 5, 7]
PF_WO = True
PF_SEQ = 0
Q_TOUCH = False
ROT = True
TLBWARM = 0
KQ2_PF = [(0, 1)]
def k_q(stamps=False):
    a = Asm(); st = Stamper(a, stamps, 0, 16)
    st()
    a("s_cmp_ge_u32 s2, 256"); a("s_cbranch_scc1 K1_end")
    a("s_load_dwordx2 s[4:5], s[0:1], 0")
    a("s_load_dwordx2 s[6:7], s[0:1], 24")
    a("s_load_dwordx2 s[8:9], s[0:1], 56")
    a("s_load_dwordx4 s[52:55], s[0:1], 8")
    a("s_load_dwordx2 s[46:47], s[0:1], 32")
    a("v_lshrrev_b32 v1, 6, v0")
    a("v_and_b32 v0, 63, v0")
    a("v_readfirstlane_b32 s20, v1")
    a("s_bitcmp1_b32 s2, 3"); a("s_cbranch_scc1 K1_pf")
    a("s_and_b32 s21, s2, 7"); a("s_lshl_b32 s21, s21, 2"); a("s_lshr_b32 s22, s2, 4"); a("s_and_b32 s23, s22, 3")
    a("s_add_u32 s21, s21, s23")
    a("s_lshr_b32 s22, s22, 2")
    a("s_add_u32 s43, s22, s23"); a("s_and_b32 s43, s43, 3")
    a("v_lshrrev_b32 v2, 4, v0"); a("v_and_b32 v4, 15, v0"); a("v_lshlrev_b32 v3, 2, v2"); a("v_xor_b32 v3, v3, v4")
    a("v_lshlrev_b32 v3, 4, v3"); a("v_lshlrev_b32 v5, 13, v2"); a("v_add_u32 v20, v5, v3")
    a("s_lshl_b32 s37, s20, 3"); a("s_and_b32 s37, s37, 15")
    a("v_add_u32 v3, s37, v2"); a("v_xor_b32 v5, v3, v4"); a("v_lshlrev_b32 v5, 4, v5"); a("v_lshlrev_b32 v6, 10, v2"); a("v_add_u32 v21, v5, v6")
    a("v_add_u32 v3, 4, v3"); a("v_xor_b32 v5, v3, v4"); a("v_lshlrev_b32 v5, 4, v5"); a("v_add_u32 v22, v5, v6")
    a("s_waitcnt lgkmcnt(0)")
    srd(a, 12, 4, 5, 8 * 32 * 512 * 2)
    srd(a, 16, 6, 7, 512 * 4096 * 2)
    srd(a, 24, 8, 9, 0x10000000)
    st()
    if Q_TOUCH:
        a("s_cmp_ge_u32 s20, 6"); a("s_cbranch_scc1 K1_td")
        a("s_cmp_ge_u32 s20, 4"); a("s_cbranch_scc1 K1_tx")
        a("v_lshlrev_b32 v30, 13, v0")
        a("s_lshl_b32 s30, s22, 20"); a("s_lshr_b32 s31, s20, 1"); a("s_lshl_b32 s31, s31, 19"); a("s_add_u32 s30, s30, s31")
        a("s_and_b32 s31, s20, 1"); a("s_lshl_b32 s31, s31, 7"); a("s_add_u32 s30, s30, s31"); a("s_lshl_b32 s31, s21, 8"); a("s_add_u32 s30, s30, s31")
        a("buffer_load_dword v31, v30, s[16:19], s30 offen")
        a("s_branch K1_td")
        a.label("K1_tx")
        a("v_lshlrev_b32 v30, 7, v0")
        a("s_lshl_b32 s30, s22, 16"); a("s_lshl_b32 s31, s23, 14"); a("s_add_u32 s30, s30, s31"); a("s_sub_u32 s31, s20, 4"); a("s_lshl_b32 s31, s31, 13"); a("s_add_u32 s30, s30, s31")
        a("buffer_load_dword v31, v30, s[12:15], s30 offen")
        a.label("K1_td")
        a("s_waitcnt vmcnt(0)")
        a("s_barrier")
    a("s_lshl_b32 s33, s22, 16"); a("s_lshl_b32 s34, s20, 13"); a("s_add_u32 s33, s33, s34")
    a("s_lshl_b32 s34, s20, 11")
    a("s_lshl_b32 s30, s20, 17"); a("s_lshl_b32 s31, s21, 8"); a("s_add_u32 s30, s30, s31")
    a("s_lshl_b32 s32, s20, 12"); a("s_add_u32 s32, s32, 65536")
    def x_stage(i):
        a("s_add_u32 s39, s43, %d" % i); a("s_and_b32 s39, s39, 3"); a("s_lshl_b32 s39, s39, 8"); a("s_add_u32 s39, s39, s33")
        a("s_add_u32 m0, s34, %d" % (i * 16384))
        a("s_add_u32 s36, s39, 4096")
        a("buffer_load_dwordx4 v21, s[12:15], s39 offen lds")
        a("s_add_u32 m0, s34, %d" % (i * 16384 + 1024))
        a("s_nop 0")
        a("buffer_load_dwordx4 v22, s[12:15], s36 offen lds")
    def wq_stage(i):
        a("s_add_u32 s39, s43, %d" % i); a("s_and_b32 s39, s39, 3"); a("s_lshl_b32 s39, s39, 20"); a("s_add_u32 s39, s39, s30")
        for e in range(4):
            a("s_add_u32 m0, s32, %d" % ((i % 3) * 32768 + e * 1024))
            a("s_add_u32 s36, s39, %d" % (e * 32768))
            a("buffer_load_dwordx4 v20, s[16:19], s36 offen lds")
    for i in range(3):
        x_stage(i); wq_stage(i)
    x_stage(3)
    a("s_and_b32 s40, s20, 3"); a("s_lshr_b32 s41, s20, 2")
    a("v_and_b32 v4, 15, v0"); a("v_lshrrev_b32 v4, 2, v4")
    a("v_lshrrev_b32 v5, 5, v0")
    a("v_lshlrev_b32 v6, 3, v5"); a("v_add_u32 v6, v6, v4"); a("v_lshlrev_b32 v6, 8, v6")
    a("v_xor_b32 v7, s40, v4"); a("v_lshlrev_b32 v7, 6, v7"); a("v_add_u32 v6, v6, v7")
    a("v_lshrrev_b32 v7, 4, v0"); a("v_and_b32 v7, 1, v7"); a("v_lshlrev_b32 v7, 5, v7"); a("v_add_u32 v6, v6, v7")
    a("v_and_b32 v7, 3, v0"); a("v_lshlrev_b32 v7, 3, v7"); a("v_add_u32 v6, v6, v7")
    a("v_add_u32 v6, 0x10000, v6")
    a("v_add_u32 v7, 0x10000, v6")
    a("v_and_b32 v8, 31, v0")
    a("v_and_b32 v9, 15, v8"); a("v_xor_b32 v9, v9, v5"); a("v_lshlrev_b32 v9, 4, v9")
    a("v_lshlrev_b32 v8, 8, v8"); a("s_lshl_b32 s42, s41, 13"); a("v_add_u32 v8, s42, v8")
    for e in range(8):
        a("v_xor_b32 v%d, %d, v9" % (10 + e, e * 32)); a("v_add_u32 v%d, v%d, v8" % (10 + e, 10 + e))
    ACC = 32; AF = 48; BF = 80
    def reads(i, e):
        slot = i % 3
        base, off = (6, slot * 32768) if slot < 2 else (7, 0)
        off += e * 4096
        fr = AF + 4 * e; br = BF + 4 * e
        return ["ds_read_b64_tr_b16 v[%d:%d], v%d offset:%d" % (fr, fr + 1, base, off),
                "ds_read_b64_tr_b16 v[%d:%d], v%d offset:%d" % (fr + 2, fr + 3, base, off + 1024),
                "ds_read_b128 v[%d:%d], v%d offset:%d" % (br, br + 3, 10 + e, i * 16384)]
    waits = [14, 8 + 4, 4, 0]
    waits = [14, 12, 4, 0]
    for i in range(4):
        a("s_waitcnt vmcnt(%d)" % waits[i])
        a("s_barrier")
        if i == 0: st()
        for e in range(8):
            for o in reads(i, e): a(o)
        for e in range(8):
            a("s_waitcnt lgkmcnt(%d)" % min(15, 3 * (7 - e)))
            fr = AF + 4 * e; br = BF + 4 * e
            a("v_mfma_f32_32x32x16_bf16 v[%d:%d], v[%d:%d], v[%d:%d], %s" % (ACC, ACC + 15, fr, fr + 3, br, br + 3, "0" if (i == 0 and e == 0) else "v[%d:%d]" % (ACC, ACC + 15)))
        if i == 0:
            a("s_barrier")
            wq_stage(3)
    st()
    a("s_mov_b32 s50, 0x%x" % CSCALE)
    a("s_lshl_b32 s34, s22, 1"); a("s_add_u32 s34, s34, s41"); a("s_lshl_b32 s34, s34, 5"); a("s_add_u32 s34, s34, s21"); a("s_lshl_b32 s34, s34, 13")
    a("s_lshl_b32 s35, s40, 11"); a("s_add_u32 s34, s34, s35")
    if WS_Q: a("s_add_u32 s34, s34, 0x%x" % WS_Q)
    a("v_lshlrev_b32 v2, 4, v0")
    for i in range(16): a("v_mul_f32 v%d, s50, v%d" % (ACC + i, ACC + i))
    for i in range(8): a("v_cvt_pk_bf16_f32 v%d, v%d, v%d" % (24 + i, ACC + 2 * i, ACC + 1 + 2 * i))
    for u in range(2):
        a("v_permlane32_swap_b32 v%d, v%d" % (24 + 4 * u, 26 + 4 * u))
        a("v_permlane32_swap_b32 v%d, v%d" % (25 + 4 * u, 27 + 4 * u))
    a("buffer_store_dwordx4 v[24:27], v2, s[24:27], s34 offen")
    a("buffer_store_dwordx4 v[28:31], v2, s[24:27], s34 offen offset:1024")
    st()
    st.flush(2, 20, 8, "K1_end2")
    a("s_branch K1_end")
    a.label("K1_pf")
    a("s_waitcnt lgkmcnt(0)")
    srd(a, 24, 8, 9, 0x10000000)
    srd(a, 56, 52, 53, 0x2000000); srd(a, 60, 54, 55, 0x2000000)
    a("s_cmp_lg_u32 s20, 0"); a("s_cbranch_scc1 K1_pf2")
    a("v_mov_b32 v4, 0"); a("v_mov_b32 v5, 0")
    a("s_mov_b64 s[44:45], exec"); a("s_mov_b64 exec, 1")
    for d in (8, 0):
        a("s_sub_u32 s30, s2, %d" % d)
        a("s_lshr_b32 s31, s30, 2"); a("s_mul_i32 s31, s31, 0x%x" % GS); a("s_and_b32 s32, s30, 3"); a("s_lshl_b32 s32, s32, 7")
        a("s_add_u32 s31, s31, s32"); a("s_add_u32 s31, s31, 0x%x" % (WS_G + 0x22000))
        a("buffer_store_dword v5, v4, s[24:27], s31 offen")
        a("s_lshr_b32 s31, s30, 5"); a("s_mul_i32 s31, s31, 0x%x" % BS); a("s_and_b32 s32, s30, 31"); a("s_lshl_b32 s32, s32, 7")
        a("s_add_u32 s31, s31, s32"); a("s_add_u32 s31, s31, 0x%x" % (WS_B + 0x100000))
        a("buffer_store_dword v5, v4, s[24:27], s31 offen")
    a("s_mov_b64 exec, s[44:45]")
    a.label("K1_pf2")
    if PF_TILES:
        a("s_lshr_b32 s30, s20, 2"); a("s_lshl_b32 s30, s30, 3"); a("s_sub_u32 s30, s2, s30")
        kv_base(a, 30, 40, 41)
        if ROT: a("s_lshr_b32 s43, s30, 3"); a("s_and_b32 s43, s43, 15")
        else: a("s_mov_b32 s43, 0")
        a("s_bitcmp1_b32 s20, 1")
        a("s_cselect_b32 s56, s60, s56"); a("s_cselect_b32 s57, s61, s57")
        a("v_lshlrev_b32 v30, 7, v0")
        for d in range(PF_DELAY):
            a("v_mov_b32 v31, %d" % (d * 128))
            a("buffer_load_dword v31, v31, s[56:59], s40 offen")
            a("s_waitcnt vmcnt(0)")
        if PF_SEQ:
            a("s_bitcmp1_b32 s20, 0"); a("s_cbranch_scc1 K1_pfd")
            for i, t in enumerate(PF_TILES):
                a("s_add_u32 s41, s40, 0x%x" % (t * 8192))
                a("buffer_load_dword v%d, v30, s[56:59], s41 offen" % (32 + i))
                a("s_waitcnt vmcnt(%d)" % (PF_SEQ - 1))
            a.label("K1_pfd")
        else:
            ta = PF_TILES[0::2]; tb = PF_TILES[1::2]
            n = max(len(ta), len(tb))
            for i in range(n):
                x0 = ta[i] if i < len(ta) else None
                x1 = tb[i] if i < len(tb) else None
                a("s_bitcmp1_b32 s20, 0")
                a("s_mov_b32 s42, %d" % (x0 if x0 is not None else 0))
                a("s_cselect_b32 s41, %d, s42" % (x1 if x1 is not None else (x0 if x0 is not None else 0)))
                a("s_add_u32 s41, s41, s43"); a("s_and_b32 s41, s41, 15"); a("s_lshl_b32 s41, s41, 13")
                a("s_add_u32 s41, s41, s40")
                a("buffer_load_dword v%d, v30, s[56:59], s41 offen" % (32 + i))
        if PF_WO:
            srd(a, 48, 46, 47, 4096 * 512 * 2)
            a("s_and_b32 s30, s2, 7"); a("s_lshl_b32 s30, s30, 19"); a("s_lshr_b32 s31, s2, 4"); a("s_lshl_b32 s31, s31, 15"); a("s_add_u32 s30, s30, s31")
            a("s_lshl_b32 s31, s20, 12"); a("s_add_u32 s30, s30, s31")
            a("s_mov_b64 exec, 0xffffffff") if False else None
            a("v_cmp_gt_u32 vcc, 32, v0"); a("s_and_saveexec_b64 s[44:45], vcc")
            a("buffer_load_dword v40, v30, s[48:51], s30 offen")
            a("s_mov_b64 exec, s[44:45]")
        a("s_waitcnt vmcnt(0)")
    if stamps:
        a("s_memrealtime s[66:67]"); a("s_memrealtime s[68:69]"); a("s_memrealtime s[70:71]"); a("s_memrealtime s[72:73]")
        st.n = 5
        st.flush(2, 20, 8, "K1_end3")
    a.label("K1_end")
    a("s_endpgm")
    return a


def k_q2(stamps=False):
    a = Asm(); st = Stamper(a, stamps, 0, 16)
    st()
    a("s_cmp_ge_u32 s2, 256"); a("s_cbranch_scc1 K1_end")
    a("s_load_dwordx2 s[16:17], s[0:1], 24")
    a("s_load_dwordx2 s[12:13], s[0:1], 0")
    a("s_load_dwordx2 s[24:25], s[0:1], 56")
    a("s_load_dwordx4 s[52:55], s[0:1], 8")
    a("v_lshrrev_b32 v1, 6, v0")
    a("v_and_b32 v0, 63, v0")
    a("v_readfirstlane_b32 s20, v1")
    a("s_mov_b32 s18, 0x400000"); a("s_mov_b32 s19, 0x20000"); a("s_mov_b32 s14, 0x40000"); a("s_mov_b32 s15, 0x20000"); a("s_mov_b32 s26, 0x10000000"); a("s_mov_b32 s27, 0x20000")
    a("s_and_b32 s21, s2, 7"); a("s_lshl_b32 s21, s21, 2"); a("s_lshr_b32 s22, s2, 3"); a("s_and_b32 s23, s22, 3"); a("s_add_u32 s21, s21, s23")
    a("s_lshr_b32 s22, s2, 5")
    a("s_add_u32 s43, s22, s23"); a("s_and_b32 s43, s43, 3")
    a("v_lshrrev_b32 v2, 4, v0"); a("v_and_b32 v4, 15, v0"); a("v_lshlrev_b32 v3, 2, v2"); a("v_xor_b32 v3, v3, v4")
    a("v_lshlrev_b32 v3, 4, v3"); a("v_lshlrev_b32 v5, 13, v2"); a("v_add_u32 v20, v5, v3")
    a("s_lshl_b32 s37, s20, 3"); a("s_and_b32 s37, s37, 15")
    a("v_add_u32 v3, s37, v2"); a("v_xor_b32 v5, v3, v4"); a("v_lshlrev_b32 v5, 4, v5"); a("v_lshlrev_b32 v6, 10, v2"); a("v_add_u32 v21, v5, v6")
    a("v_add_u32 v3, 4, v3"); a("v_xor_b32 v5, v3, v4"); a("v_lshlrev_b32 v5, 4, v5"); a("v_add_u32 v22, v5, v6")
    a("s_lshl_b32 s33, s22, 15"); a("s_lshl_b32 s34, s20, 13"); a("s_add_u32 s33, s33, s34")
    a("s_lshl_b32 s34, s20, 11")
    a("s_lshl_b32 s30, s20, 18"); a("s_lshl_b32 s31, s21, 8"); a("s_add_u32 s30, s30, s31")
    a("s_lshl_b32 s32, s20, 13"); a("s_add_u32 s32, s32, 8192")
    a("s_waitcnt lgkmcnt(0)")
    st()
    if TLBWARM:
        a("s_lshr_b32 s40, s2, 5"); a("s_lshl_b32 s40, s40, 3"); a("s_and_b32 s41, s2, 7"); a("s_add_u32 s40, s40, s41")
        a("s_mul_i32 s46, s40, 0x%x" % GS); a("s_add_u32 s46, s46, 0x%x" % WS_G)
        a("s_lshl_b32 s40, s40, 19"); a("s_lshr_b32 s41, s2, 3"); a("s_and_b32 s41, s41, 3"); a("s_lshl_b32 s41, s41, 17"); a("s_add_u32 s40, s40, s41")
        a("s_lshr_b32 s42, s2, 3"); a("s_and_b32 s42, s42, 15"); a("s_lshl_b32 s42, s42, 13"); a("s_add_u32 s40, s40, s42")
        a("v_lshlrev_b32 v30, 7, v0")
        a("s_mov_b32 s58, 0x2000000"); a("s_mov_b32 s59, 0x20000")
        a("s_mov_b64 s[44:45], exec")
        a("s_cmp_ge_u32 s20, 2"); a("s_cbranch_scc1 K1_tw2")
        a("s_bitcmp1_b32 s20, 0")
        a("s_cselect_b32 s56, s54, s52"); a("s_cselect_b32 s57, s55, s53")
        a("s_mov_b64 exec, 0x%x" % TLBWARM)
        a("buffer_load_dword v31, v30, s[56:59], s40 offen")
        a("s_branch K1_tw3")
        a.label("K1_tw2")
        a("s_cmp_eq_u32 s20, 2"); a("s_cbranch_scc0 K1_tw3")
        a("s_mov_b64 exec, 1")
        a("buffer_load_dword v31, v30, s[24:27], s46 offen")
        a.label("K1_tw3")
        a("s_mov_b64 exec, s[44:45]")
    for i in range(4):
        a("s_add_u32 s38, s43, %d" % i); a("s_and_b32 s38, s38, 3")
        a("s_lshl_b32 s39, s38, 20"); a("s_add_u32 s39, s39, s30")
        for e in range(8):
            a("s_add_u32 m0, s32, %d" % (i * 40960 + e * 1024))
            a("s_add_u32 s36, s39, %d" % (e * 32768))
            a("buffer_load_dwordx4 v20, s[16:19], s36 offen lds")
        a("s_lshl_b32 s39, s38, 8"); a("s_add_u32 s39, s39, s33")
        a("s_add_u32 m0, s34, %d" % (i * 40960))
        a("s_add_u32 s36, s39, 4096")
        a("buffer_load_dwordx4 v21, s[12:15], s39 offen lds")
        a("s_add_u32 m0, s34, %d" % (i * 40960 + 1024))
        a("s_nop 0")
        a("buffer_load_dwordx4 v22, s[12:15], s36 offen lds")
    if KQ2_PF:
        a("s_lshr_b32 s40, s2, 5"); a("s_lshl_b32 s40, s40, 3"); a("s_and_b32 s41, s2, 7"); a("s_add_u32 s40, s40, s41"); a("s_lshl_b32 s40, s40, 19")
        a("s_lshr_b32 s41, s2, 3"); a("s_and_b32 s41, s41, 3"); a("s_lshl_b32 s41, s41, 17"); a("s_add_u32 s40, s40, s41")
        if ROT: a("s_lshr_b32 s42, s2, 3"); a("s_and_b32 s42, s42, 15")
        else: a("s_mov_b32 s42, 0")
        a("v_lshlrev_b32 v30, 7, v0")
        a("s_bitcmp1_b32 s20, 0")
        a("s_cselect_b32 s56, s54, s52"); a("s_cselect_b32 s57, s55, s53"); a("s_mov_b32 s58, 0x2000000"); a("s_mov_b32 s59, 0x20000")
        for rnd, tiles in enumerate(KQ2_PF):
            a("s_lshr_b32 s41, s20, 1")
            a("s_cmp_eq_u32 s41, 0"); a("s_cselect_b32 s41, %d, %d" % (tiles[0], tiles[1]))
            a("s_add_u32 s41, s41, s42"); a("s_and_b32 s41, s41, 15"); a("s_lshl_b32 s41, s41, 13"); a("s_add_u32 s41, s41, s40")
            a("buffer_load_dword v%d, v30, s[56:59], s41 offen" % (28 + rnd))
    a("s_cmp_lg_u32 s20, 0"); a("s_cbranch_scc1 K1_nz")
    a("v_mov_b32 v4, 0"); a("v_mov_b32 v5, 0")
    a("s_mov_b64 s[44:45], exec"); a("s_mov_b64 exec, 1")
    a("s_lshr_b32 s31, s2, 2"); a("s_mul_i32 s31, s31, 0x%x" % GS); a("s_and_b32 s35, s2, 3"); a("s_lshl_b32 s35, s35, 7")
    a("s_add_u32 s31, s31, s35"); a("s_add_u32 s31, s31, 0x%x" % (WS_G + 0x22000))
    a("buffer_store_dword v5, v4, s[24:27], s31 offen")
    a("s_lshr_b32 s31, s2, 5"); a("s_mul_i32 s31, s31, 0x%x" % BS); a("s_and_b32 s35, s2, 31"); a("s_lshl_b32 s35, s35, 7")
    a("s_add_u32 s31, s31, s35"); a("s_add_u32 s31, s31, 0x%x" % (WS_B + 0x100000))
    a("buffer_store_dword v5, v4, s[24:27], s31 offen")
    a("s_mov_b64 exec, s[44:45]")
    a.label("K1_nz")
    a("v_and_b32 v4, 15, v0"); a("v_lshrrev_b32 v4, 2, v4"); a("v_lshrrev_b32 v5, 5, v0")
    a("v_lshlrev_b32 v6, 3, v5"); a("v_add_u32 v6, v6, v4"); a("v_lshlrev_b32 v6, 8, v6")
    a("v_xor_b32 v7, s20, v4"); a("v_lshlrev_b32 v7, 6, v7"); a("v_add_u32 v6, v6, v7")
    a("v_lshrrev_b32 v7, 4, v0"); a("v_and_b32 v7, 1, v7"); a("v_lshlrev_b32 v7, 5, v7"); a("v_add_u32 v6, v6, v7")
    a("v_and_b32 v7, 3, v0"); a("v_lshlrev_b32 v7, 3, v7"); a("v_add_u32 v6, v6, v7")
    a("v_add_u32 v6, 8192, v6")
    a("v_and_b32 v8, 31, v0"); a("v_and_b32 v9, 15, v8"); a("v_xor_b32 v9, v9, v5"); a("v_lshlrev_b32 v9, 4, v9"); a("v_lshlrev_b32 v8, 8, v8")
    for e in range(8):
        a("v_xor_b32 v%d, %d, v9" % (10 + e, e * 32)); a("v_add_u32 v%d, v%d, v8" % (10 + e, 10 + e))
    ACC = 32; AF = [48, 112]; BF = [80, 144]
    def reads(i):
        out = []
        for e in range(8):
            fr = AF[i % 2] + 4 * e; br = BF[i % 2] + 4 * e
            out += ["ds_read_b64_tr_b16 v[%d:%d], v6 offset:%d" % (fr, fr + 1, e * 4096),
                    "ds_read_b64_tr_b16 v[%d:%d], v6 offset:%d" % (fr + 2, fr + 3, e * 4096 + 1024),
                    "ds_read_b128 v[%d:%d], v%d" % (br, br + 3, 10 + e)]
        return out
    def advance():
        a("v_add_u32 v6, 40960, v6")
        for e in range(8): a("v_add_u32 v%d, 40960, v%d" % (10 + e, 10 + e))
    for i in range(4):
        a("s_waitcnt vmcnt(%d)" % (10 * (3 - i)))
        a("s_barrier")
        if i == 0: st()
        for o in reads(i): a(o)
        if i < 3: advance()
        for e in range(8):
            a("s_waitcnt lgkmcnt(%d)" % min(15, 3 * (7 - e)))
            fr = AF[i % 2] + 4 * e; br = BF[i % 2] + 4 * e
            a("v_mfma_f32_32x32x16_bf16 v[%d:%d], v[%d:%d], v[%d:%d], %s" % (ACC, ACC + 15, fr, fr + 3, br, br + 3, "0" if (i == 0 and e == 0) else "v[%d:%d]" % (ACC, ACC + 15)))
    st()
    a("s_mov_b32 s50, 0x%x" % CSCALE)
    a("s_lshl_b32 s34, s22, 5"); a("s_add_u32 s34, s34, s21"); a("s_lshl_b32 s34, s34, 13")
    a("s_lshl_b32 s35, s20, 11"); a("s_add_u32 s34, s34, s35")
    a("v_lshlrev_b32 v2, 4, v0")
    for i in range(16): a("v_mul_f32 v%d, s50, v%d" % (ACC + i, ACC + i))
    for i in range(8): a("v_cvt_pk_bf16_f32 v%d, v%d, v%d" % (24 + i, ACC + 2 * i, ACC + 1 + 2 * i))
    for u in range(2):
        a("v_permlane32_swap_b32 v%d, v%d" % (24 + 4 * u, 26 + 4 * u))
        a("v_permlane32_swap_b32 v%d, v%d" % (25 + 4 * u, 27 + 4 * u))
    a("buffer_store_dwordx4 v[24:27], v2, s[24:27], s34 offen")
    a("buffer_store_dwordx4 v[28:31], v2, s[24:27], s34 offen offset:1024")
    st()
    st.flush(2, 20, 24, "K1_end2")
    a.label("K1_end")
    a("s_endpgm")
    return a

VK0, VK1, VV = 8, 9, 10
LANE16 = 11
KRA = 12
VRA = 20
MREF, LSUM, TS, TS2 = 24, 25, 26, 27
T0, T1 = 28, 29
NEGM = 32
SB = [48, 64]
E = 80
P = 96
KF = 104
VF = 136
O = 168
NV = 232
WOROW = 1088
BIMG = 128 * WOROW
KRING = 81920
VRING = KRING + 32768
OWNP = VRING + 32768
NONL = 114680
SCRL = OWNP + 8192 + 512
LDS_MAIN = 163840

EARLY = 1
TRP = [2, 1, 1, 1]
QROT = 1
PRE2 = 0
LATE0 = 0
XTR = False
CODEWARM = 0
PICK = {0, 2, 4, 5, 7, 9, 10, 14}
class PickStamper(Stamper):
    def __init__(self, *a, pick=None, **k):
        super().__init__(*a, **k); self.pick = pick; self.calls = 0; self.force = False
    def __call__(self):
        c = self.calls; self.calls += 1
        if self.force or c in self.pick: super().__call__()
    def flush(self, *a):
        self.force = True
        super().flush(*a)

class Main:
    def __init__(self, pol="nt", stamps=False, trickle=True, pretouch=True):
        self.a = Asm(); self.pol = pol
        self.st = PickStamper(self.a, stamps, 0, 16, sbase=84, pick=PICK)
        self.rare_id = 0; self.rare = []
        self.trickle = trickle; self.pretouch = pretouch

    def issue(self, k_slot, v_slot, kmode, vmode):
        pol = self.pol; out = []
        if kmode:
            out.append("s_lshl_b32 s34, s64, 13")
            out.append("s_add_u32 m0, s36, %d" % (KRING + k_slot * 8192))
            out.append("s_add_u32 s34, s34, s66")
            if kmode == 'dyn':
                out.append("s_cmp_ge_u32 s42, %d" % self.dyn_limit)
                out.append("s_cselect_b32 s34, 0x4000000, s34")
            out.append("buffer_load_dwordx4 v%d, s[12:15], s34 offen %s lds" % (VK0, pol))
            out.append("buffer_load_dwordx4 v%d, s[12:15], s34 offen offset:1024 %s lds" % (VK1, pol))
            out.append("s_add_u32 s64, s64, 1")
            out.append("s_and_b32 s64, s64, 15")
        if vmode:
            out.append("s_lshl_b32 s35, s65, 13")
            out.append("s_add_u32 m0, s36, %d" % (VRING + v_slot * 8192))
            out.append("s_add_u32 s35, s35, s66")
            out.append("buffer_load_dwordx4 v%d, s[16:19], s35 offen %s lds" % (VV, pol))
            out.append("buffer_load_dwordx4 v%d, s[16:19], s35 offen offset:1024 %s lds" % (VV, pol))
            out.append("s_add_u32 s65, s65, 1")
            out.append("s_and_b32 s65, s65, 15")
        return out
    def wo_rows(self, n):
        out = []
        for _ in range(n):
            out.append("s_mov_b32 m0, s49")
            out.append("s_add_u32 s49, s49, %d" % (4 * WOROW))
            out.append("buffer_load_dwordx4 v%d, s[56:59], s48 offen lds" % LANE16)
            out.append("s_add_u32 s48, s48, 4096")
        return out

    def kreads(self, slot):
        return ["ds_read_b128 %s, v%d offset:%d" % (vr(KF + 4 * j, 4), KRA + j, slot * 8192) for j in range(8)]
    def vread(self, slot, u, db):
        r = VF + (u * 4 + db) * 4
        return ["ds_read_b64_tr_b16 %s, v%d offset:%d" % (vr(r, 2), VRA + db, slot * 8192 + u * 4096),
                "ds_read_b64_tr_b16 %s, v%d offset:%d" % (vr(r + 2, 2), VRA + db, slot * 8192 + u * 4096 + 2048)]
    def qk(self, j, snxt):
        return "v_mfma_f32_32x32x16_bf16 %s, %s, %s, %s" % (vr(snxt, 16), vr(KF + 4 * j, 4), ar(4 * j, 4), vr(NEGM, 16) if j == 0 else vr(snxt, 16))
    def pv(self, u, db):
        return "v_mfma_f32_32x32x16_bf16 %s, %s, %s, %s" % (vr(O + 16 * db, 16), vr(VF + (u * 4 + db) * 4, 4), vr(P + 4 * u, 4), vr(O + 16 * db, 16))
    def softmax_ops(self, scur):
        g = []
        for j in range(9):
            ops = []
            if j < 8:
                ops.append("v_exp_f32 v%d, v%d" % (E + 2 * j, scur + 2 * j))
                ops.append("v_exp_f32 v%d, v%d" % (E + 2 * j + 1, scur + 2 * j + 1))
            if j >= 1:
                i = j - 1
                if i == 1:
                    ops.append("v_add_f32 v%d, v%d, v%d" % (TS, E + 0, E + 2)); ops.append("v_add_f32 v%d, v%d, v%d" % (TS2, E + 1, E + 3))
                elif i > 1:
                    ops.append("v_add_f32 v%d, v%d, v%d" % (TS, TS, E + 2 * i)); ops.append("v_add_f32 v%d, v%d, v%d" % (TS2, TS2, E + 2 * i + 1))
                ops.append("v_cvt_pk_bf16_f32 v%d, v%d, v%d" % (P + i, E + 2 * i, E + 2 * i + 1))
            g.append(ops)
        return g
    def phaseA(self, scur, snxt, do_qk):
        a = self.a
        g = self.softmax_ops(scur)
        for j in range(8):
            if do_qk:
                if j == 0: a("s_waitcnt lgkmcnt(10)")
                a(self.qk(j, snxt))
            for o in g[j]: a(o)
        for o in g[8]: a(o)
        a("v_add_f32 v%d, v%d, v%d" % (TS, TS, TS2))
        a("v_cmp_lt_f32 vcc, s44, v%d" % TS)
        rid = self.rare_id; self.rare_id += 1
        a("s_cbranch_vccnz RARE%d" % rid)
        a.label("RET%d" % rid)
        a("v_add_f32 v%d, v%d, v%d" % (LSUM, LSUM, TS))
        self.rare.append((rid, scur, snxt if do_qk else None))
    def phaseB(self, wait_vm, issue_ops, kslot, vslot, barrier=True):
        a = self.a
        if barrier:
            a("s_waitcnt vmcnt(%d) lgkmcnt(0)" % wait_vm)
            a("s_barrier")
        else:
            a("s_waitcnt lgkmcnt(0)")
        kr = self.kreads(kslot) if kslot is not None else []
        iss = list(issue_ops)
        per = (len(iss) + 7) // 8
        for u in range(2):
            for db in range(4):
                a(self.pv(u, db))
                for _ in range(2):
                    if kr: a(kr.pop(0))
                if vslot is not None:
                    for o in self.vread(vslot, u, db): a(o)
                for _ in range(per):
                    if iss: a(iss.pop(0))
        for o in iss: a(o)
    def poll_counter(self, name, soff, target, depth=4):
        a = self.a
        a("s_mov_b64 exec, 1")
        a("s_mov_b32 s41, 0")
        for k in range(depth):
            a("buffer_load_dword v%d, v2, s[24:27], s%d offen sc1" % (12 + k, soff))
            if k < depth - 1: a("s_sleep 2")
        a.label(name)
        for k in range(depth):
            a("s_waitcnt vmcnt(%d)" % (depth - 1))
            a("v_cmp_gt_u32 vcc, %d, v%d" % (target, 12 + k))
            a("s_cbranch_vccz %s_d" % name)
            a("buffer_load_dword v%d, v2, s[24:27], s%d offen sc1" % (12 + k, soff))
        a("s_add_u32 s41, s41, 1")
        a("s_cmp_lt_u32 s41, 0x2000"); a("s_cbranch_scc1 %s" % name)
        a.label("%s_d" % name)
        a("s_mov_b64 exec, -1")

    def emit_rare(self):
        a = self.a
        for rid, scur, snxt in self.rare:
            a.label("RARE%d" % rid)
            a("s_nop 15")
            a("v_max3_f32 v%d, v%d, v%d, v%d" % (T0, scur, scur + 1, scur + 2))
            for i in range(3, 15, 2): a("v_max3_f32 v%d, v%d, v%d, v%d" % (T0, T0, scur + i, scur + i + 1))
            a("v_max_f32 v%d, v%d, v%d" % (T0, T0, scur + 15))
            a("v_mov_b32 v%d, v%d" % (T1, T0))
            a("s_nop 1")
            a("v_permlane32_swap_b32 v%d, v%d" % (T0, T1))
            a("v_max_f32 v%d, v%d, v%d" % (T0, T0, T1))
            a("v_max_f32 v%d, 0, v%d" % (T0, T0))
            a("v_add_f32 v%d, v%d, v%d" % (MREF, MREF, T0))
            a("v_sub_f32 v%d, 0, v%d" % (T1, T0))
            a("v_exp_f32 v%d, v%d" % (T1, T1))
            for i in range(16): a("v_sub_f32 v%d, v%d, v%d" % (NEGM + i, NEGM + i, T0))
            for i in range(16): a("v_sub_f32 v%d, v%d, v%d" % (scur + i, scur + i, T0))
            if snxt is not None:
                for i in range(16): a("v_sub_f32 v%d, v%d, v%d" % (snxt + i, snxt + i, T0))
            a("v_mul_f32 v%d, v%d, v%d" % (LSUM, LSUM, T1))
            for i in range(64): a("v_mul_f32 v%d, v%d, v%d" % (O + i, O + i, T1))
            for grp in self.softmax_ops(scur):
                for o in grp: a(o)
                a("s_nop 0")
            a("v_add_f32 v%d, v%d, v%d" % (TS, TS, TS2))
            a("s_nop 1")
            a("s_branch RET%d" % rid)

    def poll_flags(self, name, voff, soff, reg=12, depth=4):
        a = self.a
        ld = lambda k: "buffer_load_dwordx2 v[%d:%d], v%d, s[24:27], s%d offen sc1" % (reg + 2 * k, reg + 2 * k + 1, voff, soff)
        a("s_mov_b32 s41, 0")
        for k in range(depth):
            a(ld(k))
            if k < depth - 1: a("s_sleep 2")
        a.label(name)
        for k in range(depth):
            a("s_waitcnt vmcnt(%d)" % (depth - 1))
            a("v_cmp_ne_u64 vcc, s[80:81], v[%d:%d]" % (reg + 2 * k, reg + 2 * k + 1))
            a("s_cbranch_vccz %s_d" % name)
            a(ld(k))
        a("s_add_u32 s41, s41, 1")
        a("s_cmp_lt_u32 s41, 0x10000"); a("s_cbranch_scc1 %s" % name)
        a.label("%s_d" % name)

    def build(self):
        a = self.a; st = self.st
        st()
        a("s_cmp_ge_u32 s2, 256"); a("s_cbranch_scc1 K2_end")
        for reg, off in ((72, 24), (68, 0), (12, 8), (16, 16), (24, 56), (56, 32), (60, 40), (76, 48)):
            a("s_load_dwordx2 s[%d:%d], s[0:1], %d" % (reg, reg + 1, off))
        a("v_lshrrev_b32 v1, 6, v0")
        a("v_and_b32 v0, 63, v0")
        a("v_readfirstlane_b32 s20, v1")
        a("s_and_b32 s21, s2, 7")
        a("s_lshr_b32 s22, s2, 3"); a("s_and_b32 s23, s22, 3")
        a("s_lshr_b32 s22, s22, 2")
        a("s_lshl_b32 s47, s21, 2"); a("s_add_u32 s47, s47, s23")
        a("s_mov_b32 s74, 0x400000"); a("s_mov_b32 s75, 0x20000"); a("s_mov_b32 s70, 0x40000"); a("s_mov_b32 s71, 0x20000")
        a("v_lshrrev_b32 v2, 4, v0"); a("v_and_b32 v4, 15, v0"); a("v_lshlrev_b32 v3, 2, v2"); a("v_xor_b32 v3, v3, v4")
        a("v_lshlrev_b32 v3, 4, v3"); a("v_lshlrev_b32 v5, 13, v2"); a("v_add_u32 v20, v5, v3")
        a("s_lshl_b32 s37, s20, 3"); a("s_and_b32 s37, s37, 15")
        a("v_add_u32 v3, s37, v2"); a("v_xor_b32 v5, v3, v4"); a("v_lshlrev_b32 v5, 4, v5"); a("v_lshlrev_b32 v6, 10, v2"); a("v_add_u32 v21, v5, v6")
        a("v_add_u32 v3, 4, v3"); a("v_xor_b32 v5, v3, v4"); a("v_lshlrev_b32 v5, 4, v5"); a("v_add_u32 v22, v5, v6")
        if QROT == 1: a("s_add_u32 s43, s22, s23"); a("s_and_b32 s43, s43, 3")
        elif QROT == 2: a("s_lshr_b32 s43, s22, 2"); a("s_lshl_b32 s43, s43, 1")
        else: a("s_mov_b32 s43, 0")
        a("s_lshl_b32 s33, s22, 15"); a("s_lshl_b32 s34, s20, 13"); a("s_add_u32 s33, s33, s34")
        a("s_lshl_b32 s34, s20, 11")
        a("s_lshl_b32 s30, s20, 18"); a("s_lshl_b32 s31, s47, 8"); a("s_add_u32 s30, s30, s31")
        a("s_lshl_b32 s32, s20, 13"); a("s_add_u32 s32, s32, 8192")
        if CODEWARM:
            a("s_lshr_b32 s38, s2, 3"); a("s_cmp_ge_u32 s38, %d" % CODEWARM); a("s_cbranch_scc1 K2_ncw")
            a("s_cmp_lg_u32 s20, 3"); a("s_cbranch_scc1 K2_ncw")
            a("s_getpc_b64 s[40:41]")
            a("s_lshl_b32 s38, s38, 13")
            a("v_lshlrev_b32 v24, 7, v0"); a("v_add_u32 v24, s38, v24")
            a("v_mov_b32 v25, s41")
            a("v_add_co_u32 v24, vcc, s40, v24")
            a("v_addc_co_u32 v25, vcc, 0, v25, vcc")
            a("global_load_dword v26, v[24:25], off")
            a.label("K2_ncw")
        a("s_waitcnt lgkmcnt(0)")
        QS = lambda i: (81920, 122880, 40960, 0)[i]
        for i in range(4):
            a("s_add_u32 s38, s43, %d" % i); a("s_and_b32 s38, s38, 3")
            a("s_lshl_b32 s39, s38, 20"); a("s_add_u32 s39, s39, s30")
            for e in range(8):
                a("s_add_u32 m0, s32, %d" % (QS(i) + e * 1024))
                a("s_add_u32 s40, s39, %d" % (e * 32768))
                a("buffer_load_dwordx4 v20, s[72:75], s40 offen lds")
            a("s_lshl_b32 s39, s38, 8"); a("s_add_u32 s39, s39, s33")
            a("s_add_u32 m0, s34, %d" % QS(i))
            a("s_add_u32 s40, s39, 4096")
            a("buffer_load_dwordx4 v21, s[68:71], s39 offen lds")
            a("s_add_u32 m0, s34, %d" % (QS(i) + 1024))
            a("s_nop 0")
            a("buffer_load_dwordx4 v22, s[68:71], s40 offen lds")
        for reg, nb in ((12, 0x2000000), (16, 0x2000000), (24, 0x10000000), (56, 4096 * 512 * 2), (60, 8 * 32 * 512 * 2), (76, 256)):
            a("s_mov_b32 s%d, 0x%x" % (reg + 2, nb)); a("s_mov_b32 s%d, 0x20000" % (reg + 3))
        a("s_lshl_b32 s28, s22, 3"); a("s_add_u32 s28, s28, s21")
        a("s_lshl_b32 s29, s28, 19"); a("s_lshl_b32 s30, s23, 17"); a("s_add_u32 s29, s29, s30")
        a("s_mul_i32 s54, s28, 0x%x" % GS); a("s_add_u32 s54, s54, 0x%x" % WS_G)
        a("s_mul_i32 s55, s22, 0x%x" % BS); a("s_add_u32 s55, s55, 0x%x" % WS_B)
        a("s_cmp_lg_u32 s20, 0"); a("s_cbranch_scc1 K2_noat")
        a("s_memrealtime s[82:83]")
        a("v_mov_b32 v30, 0"); a("v_mov_b32 v31, 0"); a("v_mov_b32 v7, 0")
        a("s_lshl_b32 s38, s22, 5")
        a("s_waitcnt lgkmcnt(0)")
        a("s_or_b32 s82, s82, 1")
        a("v_mov_b32 v28, s82"); a("v_mov_b32 v29, s83")
        a("s_mov_b64 exec, 1")
        a("buffer_atomic_cmpswap_x2 v[28:31], v7, s[76:79], s38 offen sc0 sc1")
        a("s_mov_b64 exec, -1")
        a.label("K2_noat")
        a("v_lshrrev_b32 v2, 4, v0"); a("v_and_b32 v3, 15, v0")
        a("s_lshl_b32 s31, s20, 3"); a("s_and_b32 s31, s31, 15")
        a("v_add_u32 v4, s31, v2")
        a("v_xor_b32 v5, v4, v3"); a("v_lshlrev_b32 v5, 4, v5")
        a("v_lshlrev_b32 v6, 8, v2")
        a("v_add_u32 v%d, v5, v6" % VK0)
        a("v_add_u32 v4, 4, v4")
        a("v_xor_b32 v5, v4, v3"); a("v_lshlrev_b32 v5, 4, v5")
        a("v_add_u32 v%d, v5, v6" % VK1)
        a("v_lshlrev_b32 v5, 2, v2"); a("v_xor_b32 v5, v5, v3"); a("v_lshlrev_b32 v5, 4, v5")
        a("v_add_u32 v%d, v5, v6" % VV)
        a("v_lshlrev_b32 v%d, 4, v0" % LANE16)
        a("s_lshl_b32 s36, s20, 11")
        a("s_add_u32 s66, s29, s36")
        if ROT: a("s_lshr_b32 s64, s2, 3"); a("s_and_b32 s64, s64, 15")
        else: a("s_mov_b32 s64, 0")
        a("s_mov_b32 s65, s64")
        a("s_lshl_b32 s48, s47, 7"); a("s_add_u32 s48, s48, s20"); a("s_lshl_b32 s48, s48, 10")
        a("s_mul_i32 s49, s20, %d" % WOROW)
        a("v_and_b32 v4, 15, v0"); a("v_lshrrev_b32 v4, 2, v4"); a("v_lshrrev_b32 v5, 5, v0")
        a("v_lshlrev_b32 v6, 3, v5"); a("v_add_u32 v6, v6, v4"); a("v_lshlrev_b32 v6, 8, v6")
        a("v_xor_b32 v7, s20, v4"); a("v_lshlrev_b32 v7, 6, v7"); a("v_add_u32 v6, v6, v7")
        a("v_lshrrev_b32 v7, 4, v0"); a("v_and_b32 v7, 1, v7"); a("v_lshlrev_b32 v7, 5, v7"); a("v_add_u32 v6, v6, v7")
        a("v_and_b32 v7, 3, v0"); a("v_lshlrev_b32 v7, 3, v7"); a("v_add_u32 v6, v6, v7")
        a("v_add_u32 v6, %d, v6" % (8192 + QS(0)))
        a("v_and_b32 v1, 31, v0"); a("v_and_b32 v7, 15, v1"); a("v_xor_b32 v7, v7, v5"); a("v_lshlrev_b32 v7, 4, v7"); a("v_lshlrev_b32 v1, 8, v1"); a("v_add_u32 v1, %d, v1" % QS(0))
        for e in range(8):
            a("v_xor_b32 v%d, %d, v7" % (12 + e, e * 32)); a("v_add_u32 v%d, v%d, v1" % (12 + e, 12 + e))
        ACC = SB[0]; AF = [KF, O]; BF = [VF, O + 32]
        def qreads(i):
            out = []
            for e in range(8):
                fr = AF[i % 2] + 4 * e; br = BF[i % 2] + 4 * e
                out += ["ds_read_b64_tr_b16 v[%d:%d], v6 offset:%d" % (fr, fr + 1, e * 4096),
                        "ds_read_b64_tr_b16 v[%d:%d], v6 offset:%d" % (fr + 2, fr + 3, e * 4096 + 1024),
                        "ds_read_b128 v[%d:%d], v%d" % (br, br + 3, 12 + e)]
            return out
        tr = TRP if self.trickle else [0, 0, 0, 0]
        def dummy(n):
            out = []
            for _ in range(n):
                out += ["s_mov_b32 m0, %d" % SCRL, "s_mov_b32 s38, 0x4000000", "buffer_load_dwordx4 v%d, s[56:59], s38 offen lds" % LANE16]
            return out
        for i in range(4):
            if i < 3: a("s_waitcnt vmcnt(%d)" % (30, 20, 16)[i])
            else:
                a("s_waitcnt vmcnt(%d)" % ((6, 2, 0)[LATE0] + sum(4 + tr[t] for t in (1, 2)[:PRE2])))
                a("s_cmp_lg_u32 s20, 0"); a("s_cbranch_scc1 K2_nonl")
                a("v_mov_b32 v1, s82"); a("v_mov_b32 v2, s83")
                a("v_cmp_eq_u32 vcc, 0, v28")
                a("v_cndmask_b32 v28, v28, v1, vcc"); a("v_cndmask_b32 v29, v29, v2, vcc")
                a("v_mov_b32 v1, %d" % NONL)
                a("s_mov_b64 exec, 1")
                a("ds_write_b64 v1, v[28:29]")
                a("s_mov_b64 exec, -1")
                a("s_waitcnt lgkmcnt(0)")
                a.label("K2_nonl")
            a("s_barrier")
            if i == 0: st()
            if i == 1:
                if LATE0 == 0:
                    for o in self.issue(0, None, 'real', None) + self.issue(1, 0, 'real', 'real'): a(o)
                elif LATE0 == 1:
                    for o in self.issue(0, None, 'real', None): a(o)
            if i == 2:
                for t in (1, 2)[:PRE2]:
                    for o in self.issue(t + 1, t, 'real', 'real') + dummy(tr[t]): a(o)
            for o in qreads(i): a(o)
            if i < 3:
                dl = (QS(i + 1) - QS(i)) & 0xffffffff
                a("v_add_u32 v6, 0x%x, v6" % dl)
                for e in range(8): a("v_add_u32 v%d, 0x%x, v%d" % (12 + e, dl, 12 + e))
            if i == 3:
                a("v_mov_b32 v1, %d" % NONL); a("ds_read_b64 v[2:3], v1")
            for e in range(8):
                a("s_waitcnt lgkmcnt(%d)" % min(15, 3 * (7 - e) + (1 if i == 3 else 0)))
                fr = AF[i % 2] + 4 * e; br = BF[i % 2] + 4 * e
                a("v_mfma_f32_32x32x16_bf16 %s, v[%d:%d], v[%d:%d], %s" % (vr(ACC, 16), fr, fr + 3, br, br + 3, "0" if (i == 0 and e == 0) else vr(ACC, 16)))
        st()
        a("s_waitcnt lgkmcnt(0)")
        a("v_readfirstlane_b32 s80, v2"); a("v_readfirstlane_b32 s81, v3")
        a("s_mov_b32 s50, 0x%x" % CSCALE)
        a("s_lshl_b32 s34, s23, 13"); a("s_add_u32 s34, s34, s54"); a("s_add_u32 s34, s34, 0x%x" % G_QX); a("s_add_u32 s34, s34, s36")
        for i in range(16): a("v_mul_f32 v%d, s50, v%d" % (ACC + i, ACC + i))
        for i in range(8): a("v_cvt_pk_bf16_f32 v%d, v%d, v%d" % (E + i, ACC + 2 * i, ACC + 1 + 2 * i))
        for u in range(2):
            a("v_permlane32_swap_b32 v%d, v%d" % (E + 4 * u, E + 2 + 4 * u))
            a("v_permlane32_swap_b32 v%d, v%d" % (E + 1 + 4 * u, E + 3 + 4 * u))
        a("buffer_store_dwordx4 %s, v%d, s[24:27], s34 offen sc1" % (vr(E, 4), LANE16))
        a("buffer_store_dwordx4 %s, v%d, s[24:27], s34 offen offset:1024 sc1" % (vr(E + 4, 4), LANE16))
        a("v_and_b32 v1, 31, v0"); a("v_lshrrev_b32 v2, 5, v0")
        a("v_xor_b32 v3, v1, v2"); a("v_and_b32 v3, 15, v3"); a("v_lshlrev_b32 v3, 4, v3")
        a("v_lshlrev_b32 v6, 8, v1"); a("v_add_u32 v6, 0x%x, v6" % KRING)
        for j in range(8):
            a("v_xor_b32 v%d, %d, v3" % (KRA + j, j * 32))
            a("v_add_u32 v%d, v%d, v6" % (KRA + j, KRA + j))
        a("v_and_b32 v3, 15, v0"); a("v_lshrrev_b32 v3, 2, v3")
        a("v_lshlrev_b32 v6, 2, v2"); a("v_add_u32 v6, v6, v3"); a("v_lshlrev_b32 v6, 8, v6")
        a("v_lshrrev_b32 v4, 4, v0"); a("v_and_b32 v4, 1, v4"); a("v_lshlrev_b32 v4, 5, v4"); a("v_add_u32 v6, v6, v4")
        a("v_and_b32 v4, 3, v0"); a("v_lshlrev_b32 v4, 3, v4"); a("v_add_u32 v6, v6, v4")
        a("v_add_u32 v6, 0x%x, v6" % VRING)
        for db in range(4):
            a("v_xor_b32 v4, %d, v3" % db); a("v_lshlrev_b32 v4, 6, v4")
            a("v_add_u32 v%d, v6, v4" % (VRA + db))
        for i in range(64): a("v_mov_b32 v%d, 0" % (O + i))
        for i in range(16): a("v_mov_b32 v%d, 0" % (NEGM + i))
        a("v_mov_b32 v%d, 0" % LSUM)
        a("s_mov_b32 s44, 0x%x" % THRESH)
        a("s_mov_b32 s42, 0")
        a("v_mov_b32 v%d, s80" % (E + 8)); a("v_mov_b32 v%d, s81" % (E + 9)); a("v_mov_b32 v7, 0")
        a("s_lshl_b32 s37, s23, 5"); a("s_lshl_b32 s38, s20, 3"); a("s_add_u32 s37, s37, s38"); a("s_add_u32 s37, s37, s54"); a("s_add_u32 s37, s37, 0x%x" % G_F0)
        a("s_waitcnt vmcnt(0)")
        st()
        a("s_mov_b64 exec, 1")
        a("buffer_store_dwordx2 v[%d:%d], v7, s[24:27], s37 offen sc1" % (E + 8, E + 9))
        if LATE0 == 0: a("s_barrier")
        a("s_mov_b64 exec, -1")
        if LATE0 == 2:
            for o in self.issue(0, None, 'real', None): a(o)
        if LATE0 >= 1:
            for o in self.issue(1, 0, 'real', 'real'): a(o)
        for t in (1, 2)[PRE2:PRE2 + EARLY]:
            for o in self.issue(t + 1, t, 'real', 'real') + dummy(tr[t]): a(o)
        a("s_mov_b64 exec, 0xf")
        a("v_lshlrev_b32 v7, 3, v0")
        a("s_lshl_b32 s37, s20, 5"); a("s_add_u32 s37, s37, s54"); a("s_add_u32 s37, s37, 0x%x" % G_F0)
        self.poll_flags("POLL0", 7, 37, reg=VF)
        a("s_mov_b64 exec, -1")
        st()
        a("s_lshl_b32 s33, s20, 13"); a("s_add_u32 s33, s33, s54"); a("s_add_u32 s33, s33, 0x%x" % G_QX); a("s_add_u32 s37, s33, 4096")
        for j in range(8):
            a("buffer_load_dwordx4 %s, v%d, s[24:27], s%d offen offset:%d sc1" % (ar(4 * j, 4), LANE16, 33 if j < 4 else 37, (j % 4) * 1024))
        for t in (1, 2)[PRE2 + EARLY:]:
            for o in self.issue(t + 1, t, 'real', 'real') + dummy(tr[t]): a(o)
        if LATE0 == 0:
            for o in self.kreads(0): a(o)
            a("s_waitcnt vmcnt(%d) lgkmcnt(0)" % sum(4 + tr[t] for t in (1, 2)[PRE2 + EARLY:]))
        else:
            a("s_waitcnt vmcnt(%d)" % sum(4 + tr[t] for t in (1, 2)[PRE2 + EARLY:]))
            a("s_barrier")
            for o in self.kreads(0): a(o)
            a("s_waitcnt lgkmcnt(0)")
        for j in range(8): a(self.qk(j, SB[0]))
        a("s_barrier")
        for o in self.issue(0, 3, 'real', 'real') + dummy(tr[3]): a(o)
        for o in self.kreads(1): a(o)
        for u in range(2):
            for db in range(4):
                for o in self.vread(0, u, db): a(o)
        if self.pretouch:
            a("v_mul_u32_u24 v1, 0x%x, v0" % 0x8000)
            a("s_mov_b64 s[50:51], exec"); a("s_mov_b64 exec, 0x1f")
            a("buffer_load_dword v2, v1, s[24:27], s54 offen")
            a("v_lshlrev_b32 v1, 18, v0")
            a("buffer_load_dword v3, v1, s[24:27], s55 offen")
            a("s_mov_b64 exec, 1")
            a("s_lshl_b32 s38, s22, 15")
            a("v_mov_b32 v1, 0")
            a("buffer_load_dword v4, v1, s[60:63], s38 offen")
            a("s_mov_b64 exec, s[50:51]")
        s0 = SB[0]
        a("v_max3_f32 v%d, v%d, v%d, v%d" % (T0, s0, s0 + 1, s0 + 2))
        for i in range(3, 15, 2): a("v_max3_f32 v%d, v%d, v%d, v%d" % (T0, T0, s0 + i, s0 + i + 1))
        a("v_max_f32 v%d, v%d, v%d" % (T0, T0, s0 + 15))
        a("v_mov_b32 v%d, v%d" % (T1, T0))
        a("v_permlane32_swap_b32 v%d, v%d" % (T0, T1))
        a("v_max_f32 v%d, v%d, v%d" % (MREF, T0, T1))
        for i in range(16): a("v_sub_f32 v%d, 0, v%d" % (NEGM + i, MREF))
        for i in range(16): a("v_sub_f32 v%d, v%d, v%d" % (s0 + i, s0 + i, MREF))
        self.dyn_limit = 2
        st()
        a.label("K2_loop")
        for k in range(4):
            self.phaseA(SB[k % 2], SB[(k + 1) % 2], True)
            iss = self.issue((k + 1) % 4, k, 'dyn' if k == 3 else 'real', 'real') + self.wo_rows(tr[k])
            self.phaseB(8 + sum(tr) - tr[k], iss, (k + 2) % 4, (k + 1) % 4)
        a("s_add_u32 s42, s42, 1"); a("s_cmp_lt_u32 s42, 3")
        a("s_cbranch_scc1 K2_loop")
        st()
        x12 = 2 if (self.trickle and XTR) else 0; x13 = 1 if (self.trickle and XTR) else 0
        self.phaseA(SB[0], SB[1], True)
        self.phaseB(8 + tr[1] + tr[2] + tr[3], self.wo_rows(x12), 2, 1)
        self.phaseA(SB[1], SB[0], True)
        self.phaseB(4 + tr[2] + tr[3] + x12, self.wo_rows(x13), 3, 2)
        self.phaseA(SB[0], SB[1], True)
        self.phaseB(0, [], None, None, barrier=False)
        self.phaseA(SB[1], None, False)
        a("s_waitcnt vmcnt(0)")
        a("s_barrier")
        st()
        for db in range(4):
            for u in range(2):
                for o in self.vread(3, u, db): a(o)
        nrow_done = (3 * sum(tr) + x12 + x13) if self.trickle else 0
        a("v_mov_b32 v%d, v%d" % (T0, LSUM))
        a("s_lshl_b32 s46, s20, 15"); a("s_lshl_b32 s37, s23, 13"); a("s_add_u32 s46, s46, s37"); a("s_add_u32 s46, s46, s54")
        a("v_permlane32_swap_b32 v%d, v%d" % (LSUM, T0))
        a("s_lshl_b32 s37, s20, 11"); a("s_lshl_b32 s38, s23, 9"); a("s_add_u32 s37, s37, s38"); a("s_add_u32 s37, s37, s54"); a("s_add_u32 s37, s37, 0x20000")
        a("v_add_f32 v%d, v%d, v%d" % (LSUM, LSUM, T0))
        a("v_mov_b32 v%d, 0" % TS); a("v_mov_b32 v%d, 0" % TS2)
        a("s_mov_b32 s12, s24"); a("s_mov_b32 s13, s25"); a("s_mov_b32 s15, 0x20000")
        a("s_cmp_eq_u32 s20, s23"); a("s_cselect_b32 s14, 0, 0x10000000")
        a("v_cmp_gt_u32 vcc, 32, v0")
        a("s_and_saveexec_b64 s[50:51], vcc")
        a("buffer_store_dwordx4 v[%d:%d], v%d, s[12:15], s37 offen sc1" % (MREF, TS2, LANE16))
        a("s_mov_b64 exec, s[50:51]")
        a("s_add_u32 s38, s46, 4096")
        n = 16
        def pub(db):
            for i in (2 * db, 2 * db + 1):
                for q in range(4):
                    a("v_cvt_pk_bf16_f32 v%d, v%d, v%d" % (KF + 4 * i + q, O + 8 * i + 2 * q, O + 8 * i + 2 * q + 1))
                a("buffer_store_dwordx4 %s, v%d, s[12:15], s%d offen offset:%d sc1" % (vr(KF + 4 * i, 4), LANE16, 46 if i < 4 else 38, (i % 4) * 1024))
        for db in range(4):
            a("s_waitcnt lgkmcnt(%d)" % (12 - 4 * db))
            a(self.pv(0, db)); a(self.pv(1, db))
            if db >= 1: pub(db - 1)
        pub(3)
        st()
        a("s_cmp_lg_u32 s20, s23"); a("s_cbranch_scc1 K2_nown")
        a("v_add_u32 v1, %d, v%d" % (OWNP, LANE16))
        for i in range(8): a("ds_write_b128 v1, %s offset:%d" % (vr(KF + 4 * i, 4), i * 1024))
        a("s_mov_b64 exec, 0xffffffff") if False else None
        a("v_cmp_gt_u32 vcc, 32, v0"); a("s_and_saveexec_b64 s[50:51], vcc")
        a("ds_write_b128 v1, v[%d:%d] offset:8192" % (MREF, TS2))
        a("s_mov_b64 exec, s[50:51]")
        a.label("K2_nown")
        a("s_barrier")
        a("s_lshl_b32 s40, s20, 5"); a("s_lshl_b32 s38, s23, 3"); a("s_add_u32 s40, s40, s38"); a("s_add_u32 s40, s40, s54"); a("s_add_u32 s40, s40, 0x%x" % G_F1)
        a("v_mov_b32 v4, s80"); a("v_mov_b32 v5, s81"); a("v_mov_b32 v2, 0")
        a("s_waitcnt vmcnt(0)")
        st()
        a("s_mov_b64 exec, 1")
        a("buffer_store_dwordx2 v[4:5], v2, s[12:15], s40 offen sc1")
        a("s_mov_b64 exec, -1")
        for o in self.wo_rows(32 - nrow_done): a(o)
        a("s_cmp_lg_u32 s20, 0"); a("s_cbranch_scc1 K2_nopoll")
        a("s_lshl_b32 s40, s23, 5"); a("s_add_u32 s40, s40, s54"); a("s_add_u32 s40, s40, 0x%x" % G_F1)
        a("v_lshlrev_b32 v7, 3, v0")
        a("s_lshl_b32 s38, 1, s23"); a("s_andn2_b32 s38, 0xf, s38"); a("s_mov_b32 s39, 0"); a("s_mov_b64 exec, s[38:39]")
        self.poll_flags("K2_poll", 7, 40, reg=12)
        a("s_mov_b64 exec, -1")
        a.label("K2_nopoll")
        a("s_waitcnt lgkmcnt(0)")
        a("s_barrier")
        st()
        a("v_and_b32 v3, 31, v0"); a("v_lshlrev_b32 v3, 4, v3")
        a("s_lshl_b32 s37, s23, 11"); a("s_add_u32 s37, s37, s54"); a("s_add_u32 s37, s37, 0x20000")
        a("s_lshl_b32 s46, s23, 15"); a("s_add_u32 s46, s46, s54"); a("s_add_u32 s46, s46, s36")
        for k in range(1, 4):
            a("s_add_u32 s38, s23, %d" % k); a("s_and_b32 s38, s38, 3"); a("s_lshl_b32 s39, s38, 9"); a("s_add_u32 s39, s39, s37")
            a("buffer_load_dwordx4 v[%d:%d], v3, s[24:27], s39 offen sc1" % (32 + 4 * k, 35 + 4 * k))
        for k in range(1, 4):
            a("s_add_u32 s38, s23, %d" % k); a("s_and_b32 s38, s38, 3"); a("s_lshl_b32 s39, s38, 13"); a("s_add_u32 s39, s39, s46")
            for i in range(2):
                r = 64 + 8 * k + 4 * i
                a("buffer_load_dwordx4 v[%d:%d], v%d, s[24:27], s39 offen offset:%d sc1" % (r, r + 3, LANE16, i * 1024))
        a("v_add_u32 v1, %d, v3" % (OWNP + 8192)); a("ds_read_b128 v[32:35], v1")
        a("s_add_u32 s39, s36, %d" % OWNP); a("v_add_u32 v1, s39, v%d" % LANE16)
        a("ds_read_b128 v[64:67], v1"); a("ds_read_b128 v[68:71], v1 offset:1024")
        a("v_and_b32 v4, 15, v0"); a("v_lshrrev_b32 v4, 2, v4")
        a("v_lshrrev_b32 v5, 5, v0"); a("v_lshlrev_b32 v5, 2, v5"); a("v_add_u32 v4, v4, v5")
        a("v_mul_u32_u24 v4, %d, v4" % WOROW)
        a("v_lshrrev_b32 v5, 4, v0"); a("v_and_b32 v5, 1, v5"); a("v_lshlrev_b32 v5, 5, v5"); a("v_add_u32 v4, v4, v5")
        a("v_and_b32 v5, 3, v0"); a("v_lshlrev_b32 v5, 3, v5"); a("v_add_u32 v4, v4, v5")
        a("s_lshl_b32 s38, s20, 8"); a("v_add_u32 v4, s38, v4")
        a("v_add_u32 v5, %d, v4" % (64 * WOROW))
        a("s_waitcnt vmcnt(6) lgkmcnt(0)")
        a("v_max3_f32 v16, v32, v36, v40"); a("v_max_f32 v16, v16, v44")
        for s in range(4): a("v_sub_f32 v%d, v%d, v16" % (32 + 4 * s, 32 + 4 * s))
        for s in range(4): a("v_exp_f32 v%d, v%d" % (32 + 4 * s, 32 + 4 * s))
        a("v_mul_f32 v17, v32, v33"); a("v_fmac_f32 v17, v36, v37"); a("v_fmac_f32 v17, v40, v41"); a("v_fmac_f32 v17, v44, v45")
        a("v_rcp_f32 v17, v17")
        for s in range(4): a("v_mul_f32 v%d, v%d, v17" % (32 + 4 * s, 32 + 4 * s))
        a("s_mov_b32 s40, 0xffff0000")
        a("s_waitcnt vmcnt(0)")
        st()
        for i in range(8):
            for s in range(4):
                r = 64 + 8 * s + i
                a("v_lshlrev_b32 v18, 16, v%d" % r); a("v_and_b32 v19, s40, v%d" % r)
                if s == 0:
                    a("v_mul_f32 v20, v18, v32"); a("v_mul_f32 v21, v19, v32")
                else:
                    a("v_fmac_f32 v20, v18, v%d" % (32 + 4 * s)); a("v_fmac_f32 v21, v19, v%d" % (32 + 4 * s))
            a("v_cvt_pk_bf16_f32 v%d, v20, v21" % (24 + i))
        a("s_add_u32 s39, s36, %d" % BIMG)
        a("v_add_u32 v6, s39, v%d" % LANE16)
        a("ds_write_b128 v6, v[24:27]"); a("ds_write_b128 v6, v[28:31] offset:1024")
        a("v_add_u32 v6, %d, v%d" % (BIMG, LANE16))
        a("s_waitcnt lgkmcnt(0)")
        a("s_barrier")
        for i in range(8): a("ds_read_b128 v[%d:%d], v6 offset:%d" % (32 + 4 * i, 35 + 4 * i, i * 1024))
        seq = [(nt, db, u) for nt in range(4) for db in range(4) for u in range(2)]
        AFR = 64; ACC = 168
        a("s_lshl_b32 s34, s20, 18"); a("s_lshl_b32 s35, s47, 10"); a("s_add_u32 s34, s34, s35"); a("s_add_u32 s34, s34, s55")
        def reads(n):
            nt, db, u = seq[n]
            fr = AFR + 4 * (n % 8)
            base = 4 if db < 2 else 5
            off = ((db % 2) * 32 + 16 * u) * WOROW + nt * 64
            return ["ds_read_b64_tr_b16 v[%d:%d], v%d offset:%d" % (fr, fr + 1, base, off),
                    "ds_read_b64_tr_b16 v[%d:%d], v%d offset:%d" % (fr + 2, fr + 3, base, off + 8 * WOROW)]
        def pub2(nt):
            for u in range(2):
                r = 96 + 4 * ((2 * nt + u) % 4)
                for q in range(4):
                    a("v_cvt_pk_bf16_f32 v%d, v%d, v%d" % (r + q, ACC + 16 * nt + 8 * u + 2 * q, ACC + 16 * nt + 8 * u + 2 * q + 1))
                a("buffer_store_dwordx4 v[%d:%d], v%d, s[24:27], s34 offen sc1" % (r, r + 3, LANE16))
                a("s_add_u32 s34, s34, 0x8000")
        D = 6
        for n in range(D):
            for o in reads(n): a(o)
        for n in range(32):
            nt, db, u = seq[n]
            fr = AFR + 4 * (n % 8)
            rem = min(D - 1, 31 - n)
            a("s_waitcnt lgkmcnt(%d)" % (2 * rem))
            bq = 32 + (db * 2 + u) * 4
            first = (db == 0 and u == 0)
            acc = "v[%d:%d]" % (ACC + 16 * nt, ACC + 16 * nt + 15)
            a("v_mfma_f32_32x32x16_bf16 %s, v[%d:%d], v[%d:%d], %s" % (acc, fr, fr + 3, bq, bq + 3, "0" if first else acc))
            if n + D < 32:
                for o in reads(n + D): a(o)
            if n % 8 == 2 and nt >= 1: pub2(nt - 1)
        st()
        pub2(3)
        a("s_lshl_b32 s40, s20, 11"); a("s_lshl_b32 s38, s47, 3"); a("s_add_u32 s40, s40, s38"); a("s_add_u32 s40, s40, s55"); a("s_add_u32 s40, s40, 0x100000")
        a("v_mov_b32 v4, s80"); a("v_mov_b32 v5, s81"); a("v_lshlrev_b32 v2, 8, v0")
        a("s_waitcnt vmcnt(0)")
        st()
        a("s_mov_b64 exec, 0xff")
        a("buffer_store_dwordx2 v[4:5], v2, s[24:27], s40 offen sc1")
        a("s_mov_b64 exec, -1")
        a("s_cmp_lg_u32 s20, 0"); a("s_cbranch_scc1 K2_polled2")
        a("s_lshl_b32 s40, s47, 8"); a("s_add_u32 s40, s40, s55"); a("s_add_u32 s40, s40, 0x100000")
        a("v_lshlrev_b32 v7, 3, v0")
        a("s_mov_b32 s38, -1"); a("s_mov_b32 s39, 0"); a("s_mov_b64 exec, s[38:39]")
        self.poll_flags("K2_poll2", 7, 40, reg=12)
        a("s_mov_b64 exec, -1")
        a.label("K2_polled2")
        a("s_barrier")
        st()
        a("s_lshl_b32 s30, s47, 15"); a("s_lshl_b32 s31, s20, 13"); a("s_add_u32 s30, s30, s31"); a("s_add_u32 s30, s30, s55")
        for i in range(8):
            if i == 4: a("s_add_u32 s30, s30, 4096")
            a("buffer_load_dwordx4 v[%d:%d], v%d, s[24:27], s30 offen offset:%d sc1" % (32 + 4 * i, 35 + 4 * i, LANE16, (i % 4) * 1024))
        a("s_mov_b32 s40, 0xffff0000")
        a("v_add_u32 v3, s36, v%d" % LANE16)
        AC = 64
        for i in range(8):
            a("s_waitcnt vmcnt(%d)" % (7 - i))
            for q in range(4):
                r = 32 + 4 * i + q
                if i == 0:
                    a("v_lshlrev_b32 v%d, 16, v%d" % (AC + 2 * q, r)); a("v_and_b32 v%d, s40, v%d" % (AC + 1 + 2 * q, r))
                else:
                    a("v_lshlrev_b32 v4, 16, v%d" % r); a("v_and_b32 v5, s40, v%d" % r)
                    a("v_add_f32 v%d, v%d, v4" % (AC + 2 * q, AC + 2 * q)); a("v_add_f32 v%d, v%d, v5" % (AC + 1 + 2 * q, AC + 1 + 2 * q))
        st()
        a("ds_write_b128 v3, v[%d:%d]" % (AC, AC + 3)); a("ds_write_b128 v3, v[%d:%d] offset:1024" % (AC + 4, AC + 7))
        a("s_waitcnt lgkmcnt(0)"); a("s_barrier")
        a("s_cmp_lg_u32 s20, 0"); a("s_cbranch_scc1 K2_fin")
        for w in range(1, 4):
            a("ds_read_b128 v[%d:%d], v%d offset:%d" % (72 + 8 * w, 75 + 8 * w, LANE16, w * 2048))
            a("ds_read_b128 v[%d:%d], v%d offset:%d" % (76 + 8 * w, 79 + 8 * w, LANE16, w * 2048 + 1024))
        a("v_and_b32 v3, 31, v0"); a("v_lshlrev_b32 v3, 10, v3")
        a("v_lshrrev_b32 v4, 5, v0"); a("v_lshlrev_b32 v4, 4, v4"); a("v_add_u32 v3, v3, v4")
        a("s_lshl_b32 s32, s22, 15"); a("s_lshl_b32 s33, s47, 5"); a("s_add_u32 s32, s32, s33")
        a("s_waitcnt lgkmcnt(0)")
        for w in range(1, 4):
            for q in range(8): a("v_add_f32 v%d, v%d, v%d" % (AC + q, AC + q, 72 + 8 * w + q))
        for q in range(4): a("v_cvt_pk_bf16_f32 v%d, v%d, v%d" % (20 + q, AC + 2 * q, AC + 1 + 2 * q))
        a("v_permlane32_swap_b32 v20, v22"); a("v_permlane32_swap_b32 v21, v23")
        a("buffer_store_dwordx4 v[20:23], v3, s[60:63], s32 offen")
        a.label("K2_fin")
        st()
        st.flush(2, 20, 24, "K2_end2")
        a.label("K2_end")
        a("s_endpgm")
        self.emit_rare()
        return a

if __name__ == "__main__":
    out = sys.argv[1] if len(sys.argv) > 1 else "v17.s"
    POL = "" if "--plain" in sys.argv else ("sc1 nt" if "--sc1nt" in sys.argv else "nt")
    if "--norot" in sys.argv: ROT = False
    for x in sys.argv:
        if x.startswith("--early="): EARLY = int(x.split("=")[1])
        if x.startswith("--tr="): TRP = [int(v) for v in x.split("=")[1].split(",")]
        if x.startswith("--qrot="): QROT = int(x.split("=")[1])
        if x.startswith("--pre2="): PRE2 = int(x.split("=")[1])
        if x.startswith("--late0="): LATE0 = int(x.split("=")[1])
        if x == "--noxtr": XTR = False
        if x == "--xtr": XTR = True
        if x.startswith("--codewarm="): CODEWARM = int(x.split("=")[1])
        if x.startswith("--pick="): PICK = set(int(v) for v in x.split("=")[1].split(","))
    k2 = Main(POL, stamps=("--stampm" in sys.argv), trickle=("--notrickle" not in sys.argv), pretouch=("--pretouch" in sys.argv)).build()
    build_file([(MAIN, k2, 256, 256, LDS_MAIN, NV + 32, NV, 102)], out)
```
